```python
import torch

def _softmax(x, axis=-1):
    return torch.softmax(x, dim=axis)
def _gelu(x):
    return torch.nn.functional.gelu(x, approximate="tanh")
def _silu(x):
    return torch.nn.functional.silu(x)
def _sigmoid(x):
    return torch.sigmoid(x)
def _layernorm(x, axis=-1, eps=1e-5):
    m = x.mean(dim=axis, keepdim=True)
    v = x.var(dim=axis, keepdim=True, unbiased=False)
    return (x - m) / torch.sqrt(v + eps)
def _scatter_add(tgt, idx, src, axis=0):
    return tgt.clone().index_add_(axis, idx, src)
def _segment_sum(src, seg, n):
    out = torch.zeros((n,) + src.shape[1:], dtype=src.dtype)
    return out.index_add_(0, seg, src)
def _pad(x, pw):
    flat = tuple(v for pair in reversed(pw) for v in pair)
    return torch.nn.functional.pad(x, flat)

kernel_name = 'gated_mix__sliding_block__swiglu_ffn__prompt'

def setup_inputs():

    _w = (lambda a: (lambda t: t.to(torch.bfloat16) if t.is_floating_point() else t)(torch.as_tensor(a)))
    def _A_setup():
        B, S, D = 1, 2048, 512
        return {
            "x": _w((lambda *s: torch.randn(*s, dtype=torch.bfloat16) * 0.05)(B, S, D)),
            "wqkv": _w((lambda *s: torch.randn(*s, dtype=torch.bfloat16) * 0.8)(D, 3 * D)),
            "wo": _w((lambda *s: torch.randn(*s, dtype=torch.bfloat16) * 0.05)(D, D)),
        }
    _A_in = _A_setup()

    def _B_setup():
        B, S, D, F = 1, 2048, 512, 1376
        return {
            "x": _w((lambda *s: torch.randn(*s, dtype=torch.bfloat16) * 0.05)(B, S, D)),
            "w_gate": _w((lambda *s: torch.randn(*s, dtype=torch.bfloat16) * 0.2)(D, F)),
            "w_up": _w((lambda *s: torch.randn(*s, dtype=torch.bfloat16) * 0.2)(D, F)),
            "w_down": _w((lambda *s: torch.randn(*s, dtype=torch.bfloat16) * 0.2)(F, D)),
        }
    _B_in = _B_setup()

    return {
        "A_x": _A_in["x"],
        "A_wqkv": _A_in["wqkv"],
        "A_wo": _A_in["wo"],
        "B_x": _B_in["x"],
        "B_w_gate": _B_in["w_gate"],
        "B_w_up": _B_in["w_up"],
        "B_w_down": _B_in["w_down"],
        "gate_w": _w((lambda *s: torch.randn(*s, dtype=torch.bfloat16) * 0.05)(512) * 16.0),
    }

def reference(A_x, A_wqkv, A_wo, B_x, B_w_gate, B_w_up, B_w_down, gate_w):
    def _A_ref(x, wqkv, wo):
        B, S, D = x.shape
        H = 32; Dh = D // H; W = 256
        qkv = (lambda x, *d: x.permute(*d))((x @ wqkv).reshape(B, S, 3, H, Dh), 2, 0, 3, 1, 4)
        q, k, v = qkv[0], qkv[1], qkv[2]
        scores = torch.einsum("bhqd,bhkd->bhqk", q, k) * (Dh ** -0.5)
        idx = torch.arange(S)
        mask = (idx[:, None] - idx[None, :] >= 0) & (idx[:, None] - idx[None, :] < W)
        scores = torch.where(mask[None, None], scores, -1e9)
        p = _softmax(scores, axis=-1)
        o = torch.einsum("bhqk,bhkd->bhqd", p, v)
        return (lambda x, *d: x.permute(*d))(o, 0, 2, 1, 3).reshape(B, S, D) @ wo

    def _B_ref(x, w_gate, w_up, w_down):
        g = _silu(x @ w_gate)
        u = x @ w_up
        return (g * u) @ w_down

    x = A_x
    g = _sigmoid((x * gate_w).sum(-1, keepdims=True))
    a = _A_ref(x, A_wqkv, A_wo)
    b = _B_ref(x, B_w_gate, B_w_up, B_w_down)
    return g * a + (1 - g) * b
```

```python
import re

TRANS = ("v_exp_f32","v_log_f32","v_rcp_f32","v_rsq_f32","v_sqrt_f32","v_sin_f32","v_cos_f32","v_exp_f16","v_rcp_f16")
_reg = re.compile(r"^(-|abs\()?([vsa])(?:\[(\d+):(\d+)\]|(\d+))\)?$")

def regs_of(op):
    op = op.strip()
    if op in ("vcc",): return {("s","vcc")}
    if op in ("exec",): return {("s","exec")}
    if op in ("exec_lo","exec_hi"): return {("s","exec")}
    if op in ("vcc_lo","vcc_hi"): return {("s","vcc")}
    if op == "m0": return {("s","m0")}
    m = _reg.match(op)
    if not m: return set()
    k = m.group(2)
    if m.group(3) is not None:
        return {(k,i) for i in range(int(m.group(3)), int(m.group(4))+1)}
    return {(k,int(m.group(5)))}

class Ins:
    __slots__=("text","mn","cls","wr","rd","srcA","srcC","passes","wide_store","data","lds_dma","states","dpp")
    def __init__(s, text):
        s.text = text
        t = text.split(";")[0].strip()
        parts = t.split(None,1)
        s.mn = mn = parts[0]
        rest = parts[1] if len(parts)>1 else ""
        ops=[]; depth=0; cur=""
        for ch in rest:
            if ch in "[(": depth+=1
            if ch in "])": depth-=1
            if ch=="," and depth==0: ops.append(cur.strip()); cur=""
            else: cur+=ch
        if cur.strip(): ops.append(cur.strip())
        mods=""
        if ops:
            l = ops[-1].split(None,1)
            ops[-1]=l[0]; mods = l[1] if len(l)>1 else ""
        R=[regs_of(o) for o in ops]
        U=lambda L: set().union(*L) if L else set()
        s.wr=set(); s.rd=set(); s.srcA=set(); s.srcC=set(); s.passes=0; s.wide_store=False; s.data=set(); s.lds_dma=False
        s.states=1; s.dpp = ("dpp" in mn) or ("row_" in mods) or ("quad_perm" in mods)
        if mn=="s_nop":
            s.cls="nop"; s.states=int(ops[0],0)+1
        elif mn.startswith("v_mfma"):
            s.cls="mfma"; s.wr=R[0]; s.srcA=R[1]|R[2]; s.srcC=R[3]; s.rd=s.srcA|s.srcC
            s.passes = 8 if "32x32x16" in mn else 4
            assert "32x32x16" in mn or "16x16x32" in mn
        elif mn.startswith("v_"):
            base = mn.replace("_e32","").replace("_e64","").replace("_dpp","")
            s.cls = "trans" if base in TRANS else ("dot" if base.startswith("v_dot") else "valu")
            if base.startswith("v_permlane") and "swap" in base:
                s.wr=R[0]|R[1]; s.rd=R[0]|R[1]
            elif base in ("v_add_co_u32","v_sub_co_u32","v_addc_co_u32"):
                s.wr=R[0]|R[1]; s.rd=U(R[2:])
            else:
                s.wr=R[0]; s.rd=U(R[1:])
                if base in ("v_fmac_f32","v_dot2c_f32_bf16","v_writelane_b32") or s.dpp: s.rd|=R[0]
                if base.startswith("v_cmpx"): s.wr|={("s","exec")}
                if base.startswith("v_dot"): s.srcC = R[3] if len(R)>3 else R[0]
        elif mn.startswith("buffer_") or mn.startswith("global_"):
            s.cls="vmem"
            if mn in ("buffer_inv","buffer_wbl2"): pass
            elif " lds" in (" "+mods) or "load_lds" in mn:
                s.lds_dma=True; s.rd=U(R)|{("s","m0")}
            elif "_load" in mn:
                s.wr=R[0]; s.rd=U(R[1:])
            elif "atomic" in mn:
                s.rd=U(R)
                if "sc0" in mods: s.wr=R[0]
            else:
                s.rd=U(R)
                s.data = R[0] if mn.startswith("buffer_") else R[1]
                s.wide_store = ("x3" in mn or "x4" in mn)
        elif mn.startswith("ds_"):
            s.cls="ds"
            if mn.startswith("ds_read") or mn.startswith("ds_bpermute") or mn.startswith("ds_swizzle") or "rtn" in mn:
                s.wr=R[0]; s.rd=U(R[1:])
            else: s.rd=U(R)
        elif mn.startswith("s_load") or mn.startswith("s_buffer_load") or mn in ("s_memtime","s_memrealtime"):
            s.cls="smem"; s.wr=R[0]; s.rd=U(R[1:])
        elif mn.startswith("s_"):
            s.cls="salu"
            if mn.startswith("s_cmp") or mn.startswith("s_bitcmp") or mn.startswith("s_cbranch") or mn in ("s_branch","s_waitcnt","s_barrier","s_endpgm","s_sleep","s_setprio","s_setreg_b32"):
                s.rd=U(R)
            else:
                s.wr=R[0]; s.rd=U(R[1:])
                if "saveexec" in mn: s.wr|={("s","exec")}
        else:
            raise ValueError("unknown instr "+text)

VALUC=("valu","trans","dot")
def need(p, c):
    n=0
    vw = {r for r in p.wr if r[0] in "va"}
    sw = {r for r in p.wr if r[0]=="s"}
    if p.cls in VALUC:
        if c.cls=="mfma" and vw & c.rd: n=max(n, 3 if p.cls=="dot" else 2)
        if p.cls=="trans" and c.cls in ("valu","dot") and vw & c.rd: n=max(n,1)
        if sw:
            if c.cls in VALUC and sw & c.rd:
                n=max(n, 4 if c.mn.startswith(("v_readlane","v_writelane")) else 2)
            if c.cls=="vmem" and sw & c.rd: n=max(n,5)
            if ("s","exec") in sw and (c.cls=="mfma" or c.mn.startswith(("v_readlane","v_readfirstlane","v_writelane","v_permlane"))): n=max(n,4)
            if ("s","exec") in sw and c.dpp: n=max(n,5)
            if c.cls in("salu","smem") and sw & c.rd: n=max(n,1)
        if c.mn.startswith(("v_readfirstlane","v_readlane")) and vw & c.rd: n=max(n,1)
        if c.mn.startswith("v_permlane") and vw & c.rd: n=max(n,2)
        if c.dpp and vw & c.rd: n=max(n,2)
        if p.cls=="dot" and c.cls in VALUC+("vmem","ds") and vw & (c.rd|c.wr):
            same = c.mn==p.mn and not (vw & (c.rd - c.srcC))
            if not same: n=max(n,3)
    if p.cls=="mfma":
        big = p.passes==8
        if c.cls=="mfma":
            if vw & c.srcA: n=max(n, 12 if big else 8)
            if vw & c.srcC and not (vw==c.srcC and c.passes==p.passes): n=max(n, 10 if big else 6)
            if vw & c.wr and c.passes!=p.passes: n=max(n, 12 if big else 8)
        elif c.cls in VALUC:
            if vw & (c.rd|c.wr): n=max(n, 12 if big else 8)
            if p.srcC & c.wr: n=max(n, 7 if big else 3)
        elif c.cls in ("vmem","ds"):
            if vw & (c.rd|c.wr): n=max(n, 12 if big else 8)
            if p.srcC & c.wr: n=max(n, 7 if big else 3)
    if p.cls=="salu" and ("s","m0") in sw and c.lds_dma: n=max(n,1)
    if p.wide_store and p.data & c.wr: n=max(n, 2 if c.cls in VALUC+("mfma",) else 1)
    return n

class Asm:
    def __init__(s, verbose=False):
        s.out=[]; s.hist=[]
        s.snap={}
        s.labels={}
        s.seq=[]
        s.vm=[]; s.lg=[]
        s.nops=0; s.verbose=verbose; s.check_pending=True
    def raw(s, t): s.out.append(t)
    def c(s, t): s.out.append("  ; "+t)
    def _age(s, k):
        for h in s.hist: h[1]+=k
        s.hist=[h for h in s.hist if h[1]<20]
    def _push(s, i):
        s.out.append("  "+i.text); s.seq.append(i)
        s._age(i.states); s.hist.append([i,0])
    def __call__(s, text, tag=None):
        i=Ins(text)
        gap=max([need(p,i)-a for p,a in s.hist]+[0])
        if gap>0:
            s.nops+=gap
            if s.verbose: print("nop",gap,"before",text)
            while gap>0:
                k=min(gap,16); s._push(Ins(f"s_nop {k-1}")); gap-=k
        if s.check_pending:
            for q,nm in ((s.vm,"vm"),(s.lg,"lgkm")):
                for tg,d in q:
                    if d & (i.rd|i.wr) and not (i.cls in("vmem","ds") and nm==("vm" if i.cls=="vmem" else "lgkm") and not d & i.rd):
                        raise RuntimeError(f"{text}: touches regs of outstanding {nm} op {tg}")
        if i.mn=="s_waitcnt":
            m=re.search(r"vmcnt\((\d+)\)",text)
            if m:
                n=int(m.group(1)); s.vm=s.vm[len(s.vm)-n:] if n<len(s.vm) and n>0 else ([] if n==0 else s.vm)
            m=re.search(r"lgkmcnt\((\d+)\)",text)
            if m:
                n=int(m.group(1))
                if n>0: assert all(t!="smem" for t,_ in s.lg), "counted lgkmcnt with smem outstanding"
                s.lg=s.lg[len(s.lg)-n:] if n<len(s.lg) and n>0 else ([] if n==0 else s.lg)
        if i.cls=="vmem": s.vm.append((tag,set(i.wr)))
        if i.cls=="ds": s.lg.append((tag,set(i.wr)))
        if i.cls=="smem": s.lg.append(("smem",set(i.wr)))
        s._push(i)
        if i.mn.startswith("s_cbranch") or i.mn=="s_branch":
            lab=text.split()[1]
            if lab in s.labels:
                h=[[p,a] for p,a in s.hist]
                for c in s.seq[s.labels[lab]:s.labels[lab]+24]:
                    g=max([need(p,c)-a for p,a in h]+[0])
                    if g>0: raise RuntimeError(f"back-edge hazard at {lab}: {c.text}")
                    for x in h: x[1]+=c.states
            else:
                s.snap.setdefault(lab,[]).append([[p,a] for p,a in s.hist])
            if i.mn=="s_branch": s.hist=[]
        if i.mn=="s_endpgm": s.hist=[]
    def label(s, name):
        s.out.append(name+":"); s.labels[name]=len(s.seq)
        for sn in s.snap.pop(name,[]): s.hist+= [[p,a] for p,a in sn]
    def _cnt(s,q,tags):
        if not isinstance(tags,(list,tuple,set)): tags=[tags]
        idx=[k for k,(t,_) in enumerate(q) if t in tags]
        return None if not idx else len(q)-1-max(idx)
    def wait(s, vm=None, lg=None, slack_vm=0):
        parts=[]
        if vm is not None:
            n=s._cnt(s.vm,vm)
            if n is not None:
                n=max(0,n-slack_vm); parts.append(f"vmcnt({min(n,63)})")
        if lg is not None:
            n=s._cnt(s.lg,lg)
            if n is not None: parts.append(f"lgkmcnt({min(n,15)})")
        if parts: s("s_waitcnt "+" ".join(parts))
    def text(s): return "\n".join(s.out)+"\n"

def vr(a,n=1): return f"v{a}" if n==1 else f"v[{a}:{a+n-1}]"
def sr(a,n=1): return f"s{a}" if n==1 else f"s[{a}:{a+n-1}]"
```

```python
import sys, math, struct
sys.path.insert(0, "work")
from asmlib import *

NAME = "gated_mix__sliding_block__swiglu_ffn__prompt"
MB = 1<<20
WS_Q, WS_K, WS_V, WS_A3, WS_G = 0, 2*MB, 4*MB, 6*MB, 14*MB
WS_SIZE = 16*MB
A3_TB = 118*1024
LOG2E = math.log2(math.e)
def f2u(f): return struct.unpack("<I", struct.pack("<f", f))[0]
MF = "v_mfma_f32_32x32x16_bf16"

def srd(a, d, lo, size):
    a(f"s_mov_b32 s{d}, s{lo}")
    a(f"s_mov_b32 s{d+1}, s{lo+1}")
    a(f"s_mov_b32 s{d+2}, {size:#x}")
    a(f"s_mov_b32 s{d+3}, 0x20000")

def kdesc(name, nv, ns=102):
    return f""".section .rodata,"a"
.p2align 6
.amdhsa_kernel {name}
  .amdhsa_next_free_vgpr {nv}
  .amdhsa_next_free_sgpr {ns}
  .amdhsa_accum_offset {nv}
  .amdhsa_group_segment_fixed_size 0
  .amdhsa_kernarg_size 88
  .amdhsa_user_sgpr_count 2
  .amdhsa_user_sgpr_kernarg_segment_ptr 1
  .amdhsa_system_sgpr_workgroup_id_x 1
.end_amdhsa_kernel
"""
def khead(name):
    return f""".text
.globl {name}
.p2align 8
.type {name},@function
{name}:
"""

L_LO, L_HI, L_GW, L_G = 0, 65536, 114688, 115712
P1_LDS = 116224
def phase1():
    a = Asm()
    sX, sWQ, sWF, sWS, sGW = 8, 12, 16, 24, 28
    sW, sTB, sCH, sRB, sCG, sSB = 32, 33, 34, 35, 36, 37
    sXo, sQo, sFo, sLx, sLq, sLf, sT, sT2 = 38, 39, 40, 41, 42, 43, 44, 45
    sJ, sSc0, sSc1, sSt0, sSt1, sE = 46, 48, 50, 52, 53, 54
    vL, vX0, vX1, vWq, vWf = 1, 2, 3, 4, 5
    vXr = 6
    vTq, vAL, vBL, vAH, vBH, vGa, vSt, vG, vG2, vT0, vT1, vOm = 10, 11, 12, 13, 14, 15, 16, 17, 18, 20, 22, 24
    GB, WB, ACC, XR = 32, 40, 64, 128
    a("s_cmp_ge_u32 s2, 256"); a("s_cbranch_scc1 P1_END")
    a("s_load_dwordx4 s[56:59], s[0:1], 0")
    a("s_load_dwordx4 s[60:63], s[0:1], 32")
    a("s_load_dwordx2 s[64:65], s[0:1], 56")
    a("s_load_dwordx2 s[66:67], s[0:1], 80")
    a(f"v_and_b32 v{vL}, 63, v0")
    a(f"v_lshrrev_b32 v{vT0}, 6, v0")
    a(f"v_readfirstlane_b32 s{sW}, v{vT0}")
    a(f"s_and_b32 s{sTB}, s{sW}, 3"); a(f"s_lshr_b32 s{sCH}, s{sW}, 2")
    a(f"s_bfe_u32 s{sRB}, s2, 0x10002"); a(f"s_lshl_b32 s{sRB}, s{sRB}, 3")
    a(f"s_bfe_u32 s{sT}, s2, 0x30003"); a(f"s_add_u32 s{sRB}, s{sRB}, s{sT}")
    a(f"s_and_b32 s{sCG}, s2, 3"); a(f"s_lshl_b32 s{sCG}, s{sCG}, 2")
    a(f"s_lshr_b32 s{sT}, s2, 6"); a(f"s_add_u32 s{sCG}, s{sCG}, s{sT}")
    a(f"s_mul_i32 s{sT}, s{sCG}, 43"); a(f"s_lshr_b32 s{sT}, s{sT}, 7")
    a(f"s_mul_i32 s{sSB}, s{sCG}, 3"); a(f"s_sub_u32 s{sSB}, s{sSB}, s{sT}")
    a(f"v_lshrrev_b32 v{vT0}, 3, v{vL}")
    a(f"v_lshrrev_b32 v{vT1}, 4, v{vL}")
    a(f"v_and_b32 v{vX0}, 7, v{vL}")
    a(f"v_xor_b32 v{vX0}, v{vX0}, v{vT1}")
    a(f"v_lshlrev_b32 v{vX0}, 4, v{vX0}")
    a(f"v_lshl_add_u32 v{vX0}, v{vT0}, 10, v{vX0}")
    a(f"v_xor_b32 v{vX1}, 64, v{vX0}")
    a(f"v_add_u32 v{vX1}, 8192, v{vX1}")
    a(f"v_lshrrev_b32 v{vT0}, 2, v{vL}")
    a(f"v_and_b32 v{vT1}, 3, v{vL}")
    a(f"v_mul_u32_u24 v{vWq}, 3072, v{vT0}")
    a(f"v_lshl_add_u32 v{vWq}, v{vT1}, 4, v{vWq}")
    a(f"s_lshl_b32 s{sT}, s{sCH}, 1")
    a(f"v_xor_b32 v{vT1}, s{sT}, v{vT1}")
    a(f"v_mul_u32_u24 v{vWf}, 2752, v{vT0}")
    a(f"v_lshl_add_u32 v{vWf}, v{vT1}, 4, v{vWf}")
    a(f"s_lshl_b32 s{sXo}, s{sRB}, 17"); a(f"s_lshl_b32 s{sT}, s{sW}, 14"); a(f"s_add_u32 s{sXo}, s{sXo}, s{sT}")
    a(f"s_mul_i32 s{sQo}, s{sTB}, {16*3072}"); a(f"s_mul_i32 s{sT}, s{sCG}, 192"); a(f"s_add_u32 s{sQo}, s{sQo}, s{sT}")
    a(f"s_lshl_b32 s{sT}, s{sCH}, 7"); a(f"s_add_u32 s{sQo}, s{sQo}, s{sT}")
    a(f"s_mul_i32 s{sFo}, s{sTB}, {16*2752}"); a(f"s_lshl_b32 s{sT}, s{sSB}, 6"); a(f"s_add_u32 s{sFo}, s{sFo}, s{sT}")
    a(f"s_lshl_b32 s{sLx}, s{sW}, 11")
    a(f"s_mul_i32 s{sLq}, s{sTB}, 3072"); a(f"s_lshl_b32 s{sT}, s{sCH}, 11"); a(f"s_add_u32 s{sLq}, s{sLq}, s{sT}")
    a(f"s_add_u32 s{sLq}, s{sLq}, {L_HI}")
    a(f"s_and_b32 s{sT}, s{sTB}, 1"); a(f"s_lshl_b32 s{sT}, s{sT}, 1"); a(f"s_add_u32 s{sT}, s{sT}, s{sCH}")
    a(f"s_mul_i32 s{sLf}, s{sT}, 3072")
    a(f"s_cmp_ge_u32 s{sTB}, 2")
    a(f"s_cselect_b32 s{sT}, {L_HI}, 0"); a(f"s_add_u32 s{sLf}, s{sLf}, s{sT}")
    a(f"s_cmp_ge_u32 s{sTB}, 2")
    a(f"s_cselect_b32 s{sE}, 3, 4"); a(f"s_lshl_b32 s{sE}, s{sE}, 12")
    a(f"v_and_b32 v{vT0}, 31, v{vL}")
    a(f"v_lshrrev_b32 v{vT1}, 5, v{vL}")
    a(f"v_bfe_u32 v{vXr}, v{vL}, 1, 3")
    a(f"v_xor_b32 v{vXr}, v{vXr}, v{vT1}")
    a(f"v_lshlrev_b32 v{vXr}, 4, v{vXr}")
    a(f"v_lshl_add_u32 v{vXr}, v{vT0}, 7, v{vXr}")
    a(f"s_lshl_b32 s{sT}, s{sTB}, 12")
    a(f"v_add_u32 v{vXr}, s{sT}, v{vXr}")
    for j in (1,2,3): a(f"v_xor_b32 v{vXr+j}, {32*j}, v{vXr}")
    a(f"v_lshlrev_b32 v{vGa}, 4, v{vT1}")
    a(f"v_add_u32 v{vGa}, {L_GW}, v{vGa}")
    a(f"v_bfe_u32 v{vT0}, v{vL}, 2, 2")
    a(f"v_lshl_add_u32 v{vT0}, v{vT1}, 3, v{vT0}")
    a(f"v_lshlrev_b32 v{vT0}, 6, v{vT0}")
    a(f"v_and_b32 v{vT1}, 3, v{vL}")
    a(f"v_lshl_add_u32 v{vT0}, v{vT1}, 3, v{vT0}")
    a(f"v_bfe_u32 v{vT1}, v{vL}, 4, 1")
    a(f"v_lshl_add_u32 v{vTq}, v{vT1}, 5, v{vT0}")
    a(f"s_lshl_b32 s{sT}, s{sCH}, 11"); a(f"s_add_u32 s{sT}, s{sT}, {L_HI}")
    a(f"v_add_u32 v{vTq}, s{sT}, v{vTq}")
    a(f"v_mul_u32_u24 v{vAL}, 3072, v{vT1}")
    a(f"v_add_u32 v{vAL}, v{vAL}, v{vT0}")
    a(f"v_xor_b32 v{vT1}, s{sCH}, v{vT1}")
    a(f"v_lshl_add_u32 v{vAL}, v{vT1}, 5, v{vAL}")
    a(f"v_xor_b32 v{vBL}, 32, v{vAL}")
    a(f"s_lshl_b32 s{sT}, s{sCH}, 10"); a(f"v_add_u32 v{vAL}, s{sT}, v{vAL}")
    a(f"s_lshl_b32 s{sT}, s{sCH}, 11"); a(f"v_add_u32 v{vBL}, s{sT}, v{vBL}")
    a(f"v_add_u32 v{vAH}, {L_HI}, v{vAL}"); a(f"v_add_u32 v{vBH}, {L_HI}, v{vBL}")
    a(f"v_lshlrev_b32 v{vSt}, 4, v{vL}")
    a(f"v_mov_b32 v{vG}, 0")
    a(f"s_mul_i32 s{sJ}, s{sCG}, 3"); a(f"s_lshl_b32 s{sT}, s{sCH}, 1"); a(f"s_add_u32 s{sJ}, s{sJ}, s{sT}")
    a("s_waitcnt lgkmcnt(0)")
    srd(a, sX, 56, 2*MB); srd(a, sWQ, 58, 512*3072)
    a(f"s_cmp_eq_u32 s{sCH}, 0")
    a(f"s_cselect_b32 s60, s60, s62"); a(f"s_cselect_b32 s61, s61, s63")
    srd(a, sWF, 60, 512*2752); srd(a, sGW, 64, 1024); srd(a, sWS, 66, WS_SIZE)

    def dma(voff, srdr, soff_reg, soff_imm, lds_reg, lds_imm, tag):
        a(f"s_add_u32 m0, s{lds_reg}, {lds_imm}")
        a(f"s_add_u32 s{sT}, s{soff_reg}, {soff_imm}")
        a(f"buffer_load_dwordx4 v{voff}, {sr(srdr,4)}, s{sT} offen lds", tag)
    def dma_ops(st, ch):
        q = st & 3; ops=[]
        if st < 8:
            ops.append(lambda: dma(vX0, sX, sXo, st*128, sLx, q*16384, ("d",st)))
            ops.append(lambda: dma(vX1, sX, sXo, st*128, sLx, q*16384+1024, ("d",st)))
            for t in range(2 if ch==0 else 1):
                ops.append(lambda t=t: dma(vWq, sWQ, sQo, st*64*3072+t*64, sLq, q*12288+t*1024, ("d",st)))
        elif st < 16:
            s2 = st-8
            def first():
                a(f"s_mul_i32 s{sT2}, s{sE}, {q}"); a(f"s_add_u32 s{sT2}, s{sT2}, s{sLf}")
                dma(vWf, sWF, sFo, s2*64*2752, sT2, 0, ("d",st))
            ops.append(first)
            for t in (1,2):
                ops.append(lambda t=t: dma(vWf, sWF, sFo, s2*64*2752+t*64, sT2, t*1024, ("d",st)))
        return ops
    def read_ops(i, ch):
        st=i>>2; j=i&3; q=st&3; wb=WB+12*(i&1); ops=[]; tg=("r",i)
        if i<32:
            ops.append(lambda: a(f"ds_read_b128 {vr(XR+4*i,4)}, v{vXr+j} offset:{q*16384}", tg))
            for t in range(2 if ch==0 else 1):
                for e in range(2):
                    ops.append(lambda t=t,e=e: a(f"ds_read_b64_tr_b16 {vr(wb+4*t+2*e,2)}, v{vTq} offset:{q*12288+(j*3+t)*1024+e*256}", tg))
            if ch==1:
                ops.append(lambda: a(f"ds_read_b128 {vr(GB+4*(i&1),4)}, v{vGa} offset:{i*32}", tg))
        elif i<64:
            A,B,base = (vAL,vBL,q*16384+j*6144) if j<2 else (vAH,vBH,q*12288+(j-2)*6144)
            for n,(rg,off) in enumerate(((A,0),(B,0),(A,1024))):
                for e in range(2):
                    ops.append(lambda n=n,e=e,rg=rg,off=off: a(f"ds_read_b64_tr_b16 {vr(wb+4*n+2*e,2)}, v{rg} offset:{base+off+e*256}", tg))
        return ops
    def step(i, ch, isv):
        st=i>>2; j=i&3; wb=WB+12*(i&1); k=i&31
        a.wait(lg=[("r",i)])
        fill=[]
        if j==3 and st<15:
            a.wait(vm=[("d",st+1)])
            a("s_barrier")
        fill += read_ops(i+1, ch)
        if j==3: fill += dma_ops(st+4, ch)
        nt = 3 if i>=32 else (2 if ch==0 else 1)
        mf=[]
        for t in range(nt):
            c = "0" if k==0 else vr(ACC+16*t,16)
            W, X = vr(wb+4*t,4), vr(XR+4*k,4)
            A_,B_ = (X,W) if (isv and i<32) else (W,X)
            mf.append(f"{MF} {vr(ACC+16*t,16)}, {A_}, {B_}, {c}")
        if i<32 and ch==1:
            for d in range(4):
                fill.append(lambda d=d: a(f"v_dot2c_f32_bf16 v{vG}, v{XR+4*i+d}, v{GB+4*(i&1)+d}"))
        per = -(-len(fill)//nt)
        for t in range(nt):
            a(mf[t])
            for f in fill[t*per:(t+1)*per]: f()

    a(f"s_cmp_ge_u32 s{sJ}, 32"); a(f"s_cselect_b32 s{sT2}, 2, 0"); a(f"s_add_u32 s{sT2}, s{sT2}, s{sCH}")
    a(f"s_cmp_eq_u32 s{sT2}, 1"); a("s_cbranch_scc1 P1_V01")
    a(f"s_cmp_eq_u32 s{sT2}, 2"); a("s_cbranch_scc1 P1_V10")
    a(f"s_cmp_eq_u32 s{sT2}, 3"); a("s_cbranch_scc1 P1_V11")
    order = [(0,0),(1,0),(1,1),(0,1)]
    for vi,(isv,ch) in enumerate(order):
        a.label(f"P1_V{isv}{ch}")
        a.vm=[]; a.lg=[]
        if ch==1:
            a(f"s_mov_b32 m0, {L_GW}")
            a(f"buffer_load_dwordx4 v{vSt}, {sr(sGW,4)}, 0 offen lds", ("d",0))
        for st in range(4):
            for f in dma_ops(st,ch): f()
        a.wait(vm=[("d",0)]); a("s_barrier")
        for f in read_ops(0,ch): f()
        for i in range(32): step(i,ch,isv)
        nt = 2 if ch==0 else 1
        a(f"s_lshl_b32 s{sT}, s{sRB}, 2"); a(f"s_add_u32 s{sT}, s{sT}, s{sTB}")
        a(f"s_lshl_b32 s{sT}, s{sT}, {11 if isv else 10}")
        a(f"s_lshl_b32 s{sSt0}, s{sJ}, 17"); a(f"s_add_u32 s{sSt0}, s{sSt0}, s{sT}")
        if ch==1:
            a(f"v_mov_b32 v{vG2}, v{vG}")
            a(f"v_permlane32_swap_b32 v{vG}, v{vG2}")
            a(f"v_add_f32 v{vG}, v{vG}, v{vG2}")
            a(f"v_mul_f32 v{vG}, {f2u(-LOG2E):#x}, v{vG}")
            a(f"v_exp_f32 v{vG}, v{vG}")
            a(f"v_add_f32 v{vG}, 1.0, v{vG}")
            a(f"v_rcp_f32 v{vG}, v{vG}")
            a(f"v_and_b32 v{vT0}, 31, v{vL}")
            a(f"s_lshl_b32 s{sT}, s{sTB}, 7"); a(f"s_add_u32 s{sT}, s{sT}, {L_G}")
            a(f"v_lshl_add_u32 v{vT1}, v{vT0}, 2, s{sT}")
            a(f"ds_write_b32 v{vT1}, v{vG}", "gw")
            a(f"s_lshl_b32 s{sT}, s{sRB}, 2"); a(f"s_add_u32 s{sT}, s{sT}, s{sTB}"); a(f"s_lshl_b32 s{sT}, s{sT}, 7")
            a(f"s_add_u32 s{sT}, s{sT}, {WS_G}")
            a(f"v_lshlrev_b32 v{vT0}, 2, v{vT0}")
            a(f"buffer_store_dword v{vG}, v{vT0}, {sr(sWS,4)}, s{sT} offen", "st")
        for t in range(nt):
            A=ACC+16*t
            if not isv:
                a(f"s_cmp_lt_u32 s{sJ}, {16-t}")
                a(f"s_cselect_b32 s{sSc0}, {f2u(0.25*LOG2E):#x}, 1.0"); a(f"s_mov_b32 s{sSc0+1}, s{sSc0}")
                for r in range(0,16,2): a(f"v_pk_mul_f32 {vr(A+r,2)}, {vr(A+r,2)}, {sr(sSc0,2)}")
            for r in range(8): a(f"v_cvt_pk_bf16_f32 v{A+r}, v{A+2*r}, v{A+2*r+1}")
            for e in range(2):
                a(f"s_add_u32 s{sT}, s{sSt0}, {t*131072 + e*(1024 if isv else 65536)}")
                a(f"buffer_store_dwordx4 {vr(A+4*e,4)}, v{vSt}, {sr(sWS,4)}, s{sT} offen", "st")
        if vi<3: a("s_branch P1_PASS2")
    a.label("P1_PASS2")
    a("s_waitcnt lgkmcnt(0)")
    for i in range(32,64): step(i,1,0)
    a(f"v_and_b32 v{vT0}, 31, v{vL}")
    a(f"s_lshl_b32 s{sT}, s{sTB}, 7"); a(f"s_add_u32 s{sT}, s{sT}, {L_G}")
    a(f"v_lshl_add_u32 v{vT1}, v{vT0}, 2, s{sT}")
    a(f"ds_read_b32 v{vOm}, v{vT1}", "g")
    a(f"s_lshl_b32 s{sT}, s{sRB}, 2"); a(f"s_add_u32 s{sT}, s{sT}, s{sTB}"); a(f"s_mul_i32 s{sSt0}, s{sT}, {A3_TB}")
    a(f"s_lshl_b32 s{sT}, s{sSB}, 11"); a(f"s_add_u32 s{sSt0}, s{sSt0}, s{sT}")
    a(f"s_mul_i32 s{sT}, s{sCH}, 3072"); a(f"s_add_u32 s{sSt0}, s{sSt0}, s{sT}"); a(f"s_add_u32 s{sSt0}, s{sSt0}, {WS_A3}")
    a(f"s_mov_b32 s{sSc0}, {f2u(-LOG2E):#x}"); a(f"s_mov_b32 s{sSc0+1}, s{sSc0}")
    a.wait(lg="g")
    a(f"v_sub_f32 v{vOm}, 1.0, v{vOm}"); a(f"v_mov_b32 v{vOm+1}, v{vOm}")
    T=WB
    for n in range(3):
        A=ACC+16*n
        for r in range(0,8,2): a(f"v_pk_mul_f32 {vr(T+r,2)}, {vr(A+r,2)}, {sr(sSc0,2)}")
        for r in range(8): a(f"v_exp_f32 v{T+r}, v{T+r}")
        for r in range(0,8,2): a(f"v_pk_mul_f32 {vr(A+r,2)}, {vr(A+r,2)}, {vr(A+8+r,2)}")
        for r in range(0,8,2): a(f"v_pk_add_f32 {vr(T+r,2)}, {vr(T+r,2)}, 1.0 op_sel_hi:[1,0]")
        for r in range(8): a(f"v_rcp_f32 v{T+r}, v{T+r}")
        for r in range(0,8,2): a(f"v_pk_mul_f32 {vr(A+r,2)}, {vr(A+r,2)}, {vr(vOm,2)}")
        for r in range(0,8,2): a(f"v_pk_mul_f32 {vr(A+r,2)}, {vr(A+r,2)}, {vr(T+r,2)}")
        for r in range(4): a(f"v_cvt_pk_bf16_f32 v{A+8+r}, v{A+2*r}, v{A+2*r+1}")
        a(f"buffer_store_dwordx4 {vr(A+8,4)}, v{vSt}, {sr(sWS,4)}, s{sSt0} offen offset:{n*1024}", "st")
    a.label("P1_END")
    a("s_endpgm")
    return a

def attention():
    a = Asm()
    sWS=8; sW,sRB,sCG,sHead,sQB,sT,sT2,sKo,sVo,sN = 12,13,14,15,16,17,18,19,20,21
    sM=32
    vL,vSt,vVo,vT0,vT1,vM,vM2,vBig,vGt = 1,2,3,4,5,6,7,8,10
    MK=12; Q=20; KF=28; VF=68; SM=148; S0=164; S1=180; CM=196; O=212; P=228; P2=236
    a("s_cmp_ge_u32 s2, 256"); a("s_cbranch_scc1 AT_END")
    a("s_load_dwordx2 s[66:67], s[0:1], 80")
    a(f"v_and_b32 v{vL}, 63, v0")
    a(f"v_lshrrev_b32 v{vT0}, 6, v0")
    a(f"v_readfirstlane_b32 s{sW}, v{vT0}")
    a(f"s_bfe_u32 s{sRB}, s2, 0x10002"); a(f"s_lshl_b32 s{sRB}, s{sRB}, 3")
    a(f"s_bfe_u32 s{sT}, s2, 0x30003"); a(f"s_add_u32 s{sRB}, s{sRB}, s{sT}")
    a(f"s_and_b32 s{sCG}, s2, 3"); a(f"s_lshl_b32 s{sCG}, s{sCG}, 2")
    a(f"s_lshr_b32 s{sT}, s2, 6"); a(f"s_add_u32 s{sCG}, s{sCG}, s{sT}")
    a(f"s_and_b32 s{sT}, s{sW}, 1"); a(f"s_lshl_b32 s{sHead}, s{sCG}, 1"); a(f"s_add_u32 s{sHead}, s{sHead}, s{sT}")
    a(f"s_and_b32 s{sT2}, s{sW}, 2"); a(f"s_lshl_b32 s{sQB}, s{sRB}, 2"); a(f"s_add_u32 s{sQB}, s{sQB}, s{sT2}")
    a(f"v_lshlrev_b32 v{vSt}, 4, v{vL}")
    a(f"v_and_b32 v{vVo}, 47, v{vL}"); a(f"v_lshlrev_b32 v{vVo}, 4, v{vVo}")
    a(f"s_lshl_b32 s{sKo}, s{sHead}, 16")
    a(f"s_lshl_b32 s{sVo}, s{sCG}, 17"); a(f"s_lshl_b32 s{sT}, s{sT}, 8"); a(f"s_add_u32 s{sVo}, s{sVo}, s{sT}")
    a(f"s_add_u32 s{sVo}, s{sVo}, {WS_V}")
    for r in range(80): a(f"v_mov_b32 v{VF+r}, 0x3f803f80")
    a("s_waitcnt lgkmcnt(0)")
    srd(a, sWS, 66, WS_SIZE)
    a(f"s_lshl_b32 s{sT}, s{sQB}, 10"); a(f"s_add_u32 s{sT}, s{sT}, s{sKo}")
    for u in range(2): a(f"buffer_load_dwordx4 {vr(Q+4*u,4)}, v{vSt}, {sr(sWS,4)}, s{sT} offen offset:{u*1024}", ("q",u))
    a(f"s_add_u32 s{sKo}, s{sKo}, {WS_K}")
    korder=[8,0,7,6,5,4,3,2,1,9]
    for n in korder:
        a(f"s_add_i32 s{sT}, s{sQB}, {n-8}"); a(f"s_max_i32 s{sT}, s{sT}, 0"); a(f"s_lshl_b32 s{sT}, s{sT}, 10"); a(f"s_add_u32 s{sT}, s{sT}, s{sKo}")
        a(f"buffer_load_dwordx4 {vr(KF+4*n,4)}, v{vSt}, {sr(sWS,4)}, s{sT} offen", ("k",n))
    a(f"v_and_b32 v{vT0}, 31, v{vL}"); a(f"v_lshlrev_b32 v{vT1}, 2, v{vT0}")
    a(f"s_lshl_b32 s{sT}, s{sQB}, 7"); a(f"s_add_u32 s{sT}, s{sT}, {WS_G}")
    for u in range(2): a(f"buffer_load_dword v{vGt+u}, v{vT1}, {sr(sWS,4)}, s{sT} offen offset:{u*128}", ("g",u))
    a("s_mov_b32 exec_lo, 0xffff"); a("s_mov_b32 exec_hi, 0xffff")
    for n in korder:
        a(f"s_add_i32 s{sT}, s{sQB}, {n-8}"); a(f"s_max_i32 s{sT}, s{sT}, 0"); a(f"s_lshl_b32 s{sT}, s{sT}, 11"); a(f"s_add_u32 s{sT}, s{sT}, s{sVo}")
        for m in range(2):
            a(f"buffer_load_dwordx4 {vr(VF+8*n+4*m,4)}, v{vVo}, {sr(sWS,4)}, s{sT} offen offset:{m*1024}", ("v",n))
    a("s_mov_b64 exec, -1")
    a(f"v_lshrrev_b32 v{vT1}, 5, v{vL}"); a(f"v_lshlrev_b32 v{vT1}, 2, v{vT1}"); a(f"v_sub_u32 v{vT0}, v{vT0}, v{vT1}")
    for r in range(16):
        a(f"v_cmp_le_i32 {sr(sM+2*r,2)}, {(r&3)+8*(r>>2)}, v{vT0}")
    a(f"v_mov_b32 v{vBig}, 0xffff"); a(f"v_mov_b32 v{vM}, 0xffff0000")
    for i in range(8):
        a(f"v_cndmask_b32 v{MK+i}, 0, v{vBig}, {sr(sM+4*i,2)}")
        a(f"v_cndmask_b32 v{vT1}, 0, v{vM}, {sr(sM+4*i+2,2)}")
        a(f"v_or_b32 v{MK+i}, v{MK+i}, v{vT1}")
    a(f"v_mov_b32 v{vBig}, {f2u(-1e30):#x}")
    for u in range(2):
        Qr=vr(Q+4*u,4); nd=8+u; no=u
        K_=lambda n: vr(KF+4*n,4)
        a(f"s_add_u32 s{sN}, s{sQB}, {u}")
        a.wait(vm=[("q",u),("k",nd),("k",no)])
        a(f"{MF} {vr(S0,16)}, {K_(nd)}, {Qr}, 0")
        a(f"{MF} {vr(S1,16)}, {K_(no)}, {Qr}, 0")
        bufs=[CM,O,S0,S1]
        def smf(d, c="0", buf=None):
            a.wait(vm=[("k",nd-d)])
            a(f"{MF} {vr(buf,16)}, {K_(nd-d)}, {Qr}, {c}")
        smf(1,buf=bufs[0]); smf(2,buf=bufs[1])
        a(f"s_cmp_ge_u32 s{sN}, 8"); a(f"s_cbranch_scc1 AT_OLD{u}")
        for r in range(16): a(f"v_mov_b32 v{S1+r}, v{vBig}")
        a.label(f"AT_OLD{u}")
        for r in range(16): a(f"v_cndmask_b32 v{SM+r}, v{S1+r}, v{S0+r}, {sr(sM+2*r,2)}")
        a(f"v_max3_f32 v{vM}, v{SM}, v{SM+1}, v{SM+2}")
        a(f"v_max3_f32 v{vM2}, v{SM+3}, v{SM+4}, v{SM+5}")
        for r in range(6,16,4):
            a(f"v_max3_f32 v{vM}, v{vM}, v{SM+r}, v{SM+r+1}")
            if r+2<16: a(f"v_max3_f32 v{vM2}, v{vM2}, v{SM+r+2}, v{SM+r+3}")
        for d in range(1,8):
            a(f"s_cmp_lt_u32 s{sN}, {d}"); a(f"s_cbranch_scc1 AT_MX{u}")
            if d+2<8: smf(d+2,buf=bufs[(d+1)%4])
            b=bufs[(d-1)%4]
            for r in range(0,16,4):
                a(f"v_max3_f32 v{vM}, v{vM}, v{b+r}, v{b+r+1}")
                a(f"v_max3_f32 v{vM2}, v{vM2}, v{b+r+2}, v{b+r+3}")
        a.label(f"AT_MX{u}")
        a.wait(vm=[("k",n) for n in range(no,nd+1)])
        a(f"v_max_f32 v{vM}, v{vM}, v{vM2}")
        a(f"v_mov_b32 v{vM2}, v{vM}")
        a(f"v_permlane32_swap_b32 v{vM}, v{vM2}")
        a(f"v_max_f32 v{vM}, v{vM}, v{vM2}")
        a(f"v_sub_f32 v{CM}, 0, v{vM}")
        a(f"v_mov_b32 v{CM+1}, v{CM}")
        for r in range(2,16,2): a(f"v_mov_b64 {vr(CM+r,2)}, {vr(CM,2)}")
        sb=[S0,S1]
        smf(1,vr(CM,16),sb[1])
        for r in range(0,16,2): a(f"v_pk_add_f32 {vr(SM+r,2)}, {vr(SM+r,2)}, {vr(CM,2)}")
        for r in range(16): a(f"v_exp_f32 v{SM+r}, v{SM+r}")
        for r in range(8): a(f"v_cvt_pk_bf16_f32 v{P2+r}, v{SM+2*r}, v{SM+2*r+1}")
        for r in range(8): a(f"v_and_b32 v{P+r}, v{P2+r}, v{MK+r}")
        for r in range(8): a(f"v_xor_b32 v{P2+r}, v{P2+r}, v{P+r}")
        a.wait(vm=[("v",nd),("v",no)])
        a(f"{MF} {vr(O,16)}, {vr(VF+8*nd,4)}, {vr(P,4)}, 0")
        a(f"{MF} {vr(O,16)}, {vr(VF+8*nd+4,4)}, {vr(P+4,4)}, {vr(O,16)}")
        a(f"{MF} {vr(O,16)}, {vr(VF+8*no,4)}, {vr(P2,4)}, {vr(O,16)}")
        a(f"{MF} {vr(O,16)}, {vr(VF+8*no+4,4)}, {vr(P2+4,4)}, {vr(O,16)}")
        for d in range(1,8):
            a(f"s_cmp_lt_u32 s{sN}, {d}"); a(f"s_cbranch_scc1 AT_FIN{u}")
            if d+1<8: smf(d+1,vr(CM,16),sb[(d+1)&1])
            b=sb[d&1]; pb=P if d&1 else P2; n=nd-d
            for r in range(8): a(f"v_exp_f32 v{b+r}, v{b+r}")
            for r in range(4): a(f"v_cvt_pk_bf16_f32 v{pb+r}, v{b+2*r}, v{b+2*r+1}")
            for r in range(8,10): a(f"v_exp_f32 v{b+r}, v{b+r}")
            a.wait(vm=[("v",n)])
            a(f"{MF} {vr(O,16)}, {vr(VF+8*n,4)}, {vr(pb,4)}, {vr(O,16)}")
            for r in range(10,16): a(f"v_exp_f32 v{b+r}, v{b+r}")
            for r in range(4,8): a(f"v_cvt_pk_bf16_f32 v{pb+r}, v{b+2*r}, v{b+2*r+1}")
            a(f"{MF} {vr(O,16)}, {vr(VF+8*n+4,4)}, {vr(pb+4,4)}, {vr(O,16)}")
        a.label(f"AT_FIN{u}")
        a.wait(vm=[("v",n) for n in range(no,nd+1)]+[("g",u)])
        a(f"s_mul_i32 s{sT}, s{sN}, {A3_TB}"); a(f"s_lshl_b32 s{sT2}, s{sHead}, 10"); a(f"s_add_u32 s{sT}, s{sT}, s{sT2}")
        a(f"s_add_u32 s{sT}, s{sT}, {WS_A3+86*1024}")
        a(f"v_rcp_f32 v{vT0}, v{O+8}")
        a(f"v_mul_f32 v{vT0}, v{vT0}, v{vGt+u}")
        for r in range(8): a(f"v_mul_f32 v{O+r}, v{O+r}, v{vT0}")
        for r in range(4): a(f"v_cvt_pk_bf16_f32 v{SM+r}, v{O+2*r}, v{O+2*r+1}")
        a(f"buffer_store_dwordx4 {vr(SM,4)}, v{vSt}, {sr(sWS,4)}, s{sT} offen", "st")
    a.label("AT_END")
    a("s_endpgm")
    return a

P3_LDS = 131072
def phase3():
    a = Asm()
    sWS,sWD,sWO,sWX,sOUT = 8,12,16,20,24
    sW,sTR,sTC,sT,sT2,sAo,sDo,sOo,sXo,sLb = 28,29,30,31,32,33,34,35,36,37
    vL,vSt,vD,vR0,vR1,vT0,vT1,vWa = 1,2,3,4,5,6,7,8
    WB=16; ACC=32; AF=96; DEPTH=14; NS=30
    a("s_cmp_ge_u32 s2, 256"); a("s_cbranch_scc1 P3_END")
    a("s_load_dwordx2 s[56:57], s[0:1], 16")
    a("s_load_dwordx2 s[58:59], s[0:1], 48")
    a("s_load_dwordx2 s[60:61], s[0:1], 64")
    a("s_load_dwordx2 s[62:63], s[0:1], 80")
    a(f"v_and_b32 v{vL}, 63, v0")
    a(f"v_lshrrev_b32 v{vT0}, 6, v0")
    a(f"v_readfirstlane_b32 s{sW}, v{vT0}")
    a(f"s_and_b32 s{sTR}, s2, 7"); a(f"s_lshl_b32 s{sTR}, s{sTR}, 2"); a(f"s_bfe_u32 s{sT}, s2, 0x20003"); a(f"s_add_u32 s{sTR}, s{sTR}, s{sT}")
    a(f"s_lshr_b32 s{sTC}, s2, 5")
    a(f"v_lshlrev_b32 v{vSt}, 4, v{vL}")
    a(f"v_bfe_u32 v{vT0}, v{vL}, 4, 1"); a(f"v_lshlrev_b32 v{vT0}, 2, v{vT0}")
    a(f"v_and_b32 v{vT1}, 7, v{vL}"); a(f"v_xor_b32 v{vT0}, v{vT0}, v{vT1}"); a(f"v_lshlrev_b32 v{vT0}, 4, v{vT0}")
    a(f"v_lshrrev_b32 v{vT1}, 3, v{vL}"); a(f"v_lshl_add_u32 v{vD}, v{vT1}, 10, v{vT0}")
    a(f"v_lshrrev_b32 v{vT0}, 5, v{vL}"); a(f"v_bfe_u32 v{vT1}, v{vL}, 2, 2"); a(f"v_lshl_add_u32 v{vT0}, v{vT0}, 2, v{vT1}")
    a(f"v_lshlrev_b32 v{vR0}, 7, v{vT0}")
    a(f"v_bfe_u32 v{vT0}, v{vL}, 3, 1"); a(f"v_lshl_add_u32 v{vR0}, v{vT0}, 6, v{vR0}")
    a(f"v_bfe_u32 v{vT0}, v{vL}, 4, 1"); a(f"v_lshl_add_u32 v{vR0}, v{vT0}, 5, v{vR0}")
    a(f"v_and_b32 v{vT0}, 3, v{vL}"); a(f"v_lshl_add_u32 v{vR0}, v{vT0}, 3, v{vR0}")
    a(f"s_lshl_b32 s{sLb}, s{sW}, 15")
    a(f"v_add_u32 v{vR0}, s{sLb}, v{vR0}")
    a(f"v_xor_b32 v{vR1}, 64, v{vR0}")
    a(f"s_mul_i32 s{sAo}, s{sTR}, {2*A3_TB}"); a(f"s_lshl_b32 s{sT}, s{sW}, 10"); a(f"s_add_u32 s{sAo}, s{sAo}, s{sT}"); a(f"s_add_u32 s{sAo}, s{sAo}, {WS_A3}")
    a(f"s_lshl_b32 s{sDo}, s{sW}, 14"); a(f"s_lshl_b32 s{sT}, s{sTC}, 7"); a(f"s_add_u32 s{sDo}, s{sDo}, s{sT}")
    a("s_waitcnt lgkmcnt(0)")
    srd(a,sWO,56,512*1024); srd(a,sWD,58,1376*1024); srd(a,sOUT,60,2*MB); srd(a,sWS,62,WS_SIZE)
    a(f"s_cmp_lt_u32 s{sW}, 2")
    a(f"s_cselect_b32 s{sWX}, s58, s56"); a(f"s_cselect_b32 s{sWX+1}, s59, s57")
    a(f"s_cselect_b32 s{sWX+2}, s{sWD+2}, s{sWO+2}"); a(f"s_mov_b32 s{sWX+3}, 0x20000")
    a(f"s_cselect_b32 s{sXo}, 84, -2"); a(f"s_lshl_b32 s{sXo}, s{sXo}, 14"); a(f"s_add_u32 s{sXo}, s{sXo}, s{sDo}")
    def issue(i):
        slot=i%16; af=AF+8*(i%(DEPTH+1))
        for e in range(2):
            a(f"s_add_u32 m0, s{sLb}, {slot*2048+e*1024}")
            if i<21:  a(f"s_add_u32 s{sT}, s{sDo}, {i*65536+e*8192}"); R=sWD
            elif i==21: a(f"s_add_u32 s{sT}, s{sXo}, {e*8192}"); R=sWX
            else: a(f"s_add_u32 s{sT}, s{sDo}, {(4*i-86)*16384+e*8192}"); R=sWO
            a(f"buffer_load_dwordx4 v{vD}, {sr(R,4)}, s{sT} offen lds", ("w",i))
        for tb in range(2):
            a(f"s_add_u32 s{sT}, s{sAo}, {i*4096+tb*A3_TB}")
            a(f"buffer_load_dwordx4 {vr(af+4*tb,4)}, v{vSt}, {sr(sWS,4)}, s{sT} offen", ("a",i))
    def reads(i):
        slot=i%16; wb=WB+8*(i&1)
        for cb in range(2):
            for q in range(2):
                a(f"ds_read_b64_tr_b16 {vr(wb+4*cb+2*q,2)}, v{vR1 if cb else vR0} offset:{slot*2048+q*1024}", ("r",i))
    for i in range(DEPTH): issue(i)
    a.wait(vm=[("w",0)]); reads(0)
    for i in range(NS):
        wb=WB+8*(i&1); af=AF+8*(i%(DEPTH+1))
        if i+1<NS:
            a.wait(vm=[("w",i+1)]); reads(i+1)
        a.wait(vm=[("a",i)], lg=[("r",i)])
        if i==NS-1:
            a(f"s_cmp_ge_u32 s{sW}, 2"); a("s_cbranch_scc1 P3_RED")
        for tb in range(2):
            for cb in range(2):
                A=ACC+16*(2*tb+cb)
                a(f"{MF} {vr(A,16)}, {vr(wb+4*cb,4)}, {vr(af+4*tb,4)}, {'0' if i==0 else vr(A,16)}")
        if i+DEPTH<NS: issue(i+DEPTH)
    a.label("P3_RED")
    a(f"v_and_b32 v{vT0}, 31, v{vL}"); a(f"v_lshrrev_b32 v{vT1}, 5, v{vL}")
    a(f"v_and_b32 v{vWa}, 7, v{vL}"); a(f"v_xor_b32 v{vWa}, v{vWa}, v{vT1}"); a(f"v_lshlrev_b32 v{vWa}, 4, v{vWa}")
    a(f"v_lshl_add_u32 v{vWa}, v{vT0}, 8, v{vWa}"); a(f"v_add_u32 v{vWa}, s{sLb}, v{vWa}")
    for q in range(1,4): a(f"v_xor_b32 v{vWa+q}, {32*q}, v{vWa}")
    for tb in range(2):
        for cb in range(2):
            for q in range(4):
                a(f"ds_write_b128 v{vWa+q}, {vr(ACC+16*(2*tb+cb)+4*q,4)} offset:{tb*8192+cb*128}", "red")
    a("s_waitcnt lgkmcnt(0)"); a("s_barrier")
    a(f"v_lshrrev_b32 v{vT0}, 3, v0"); a(f"v_and_b32 v{vT1}, 7, v0")
    a(f"v_lshlrev_b32 v{vWa}, 1, v{vT1}"); a(f"v_and_b32 v{vWa+1}, 7, v{vT0}"); a(f"v_xor_b32 v{vWa}, v{vWa}, v{vWa+1}")
    a(f"v_lshlrev_b32 v{vWa}, 4, v{vWa}"); a(f"v_lshl_add_u32 v{vWa}, v{vT0}, 8, v{vWa}")
    a(f"v_xor_b32 v{vWa+1}, 16, v{vWa}")
    a(f"v_add_u32 v{vWa+2}, 65536, v{vWa}"); a(f"v_add_u32 v{vWa+3}, 65536, v{vWa+1}")
    a(f"v_lshlrev_b32 v{vT1}, 4, v{vT1}"); a(f"v_lshl_add_u32 v{vT0}, v{vT0}, 10, v{vT1}")
    a(f"s_lshl_b32 s{sT}, s{sTR}, 16"); a(f"s_lshl_b32 s{sT2}, s{sTC}, 7"); a(f"s_add_u32 s{sT}, s{sT}, s{sT2}")
    for p in range(2):
        for w in range(4):
            for hf in range(2):
                a(f"ds_read_b128 {vr(ACC+32*p+8*w+4*hf,4)}, v{vWa+2*(w>>1)+hf} offset:{(w&1)*32768+p*8192}", ("rr",p))
    for p in range(2):
        B=ACC+32*p
        a.wait(lg=[("rr",p)])
        for r in range(0,8,2):
            a(f"v_pk_add_f32 {vr(B+r,2)}, {vr(B+r,2)}, {vr(B+8+r,2)}")
            a(f"v_pk_add_f32 {vr(B+16+r,2)}, {vr(B+16+r,2)}, {vr(B+24+r,2)}")
        for r in range(0,8,2): a(f"v_pk_add_f32 {vr(B+r,2)}, {vr(B+r,2)}, {vr(B+16+r,2)}")
        for r in range(4): a(f"v_cvt_pk_bf16_f32 v{B+8+r}, v{B+2*r}, v{B+2*r+1}")
        if p==1: a(f"s_add_u32 s{sT}, s{sT}, 32768")
        a(f"buffer_store_dwordx4 {vr(B+8,4)}, v{vT0}, {sr(sOUT,4)}, s{sT} offen", "st")
    a.label("P3_END")
    a("s_endpgm")
    return a

def build(extra_empty=0):
    hdr = f"; @launch kernel=p1_kernel grid=(256,1,1) block=(512,1,1) lds={P1_LDS}\n"
    hdr += f"; @launch kernel=at_kernel grid=(256,1,1) block=(256,1,1) lds=0\n"
    hdr += f"; @launch kernel=p3_kernel grid=(256,1,1) block=(256,1,1) lds={P3_LDS}\n"
    for i in range(extra_empty): hdr += f"; @launch kernel=nop_kernel grid=(256,1,1) block=(256,1,1) lds=0\n"
    s = hdr + '.amdgcn_target "amdgcn-amd-amdhsa--gfx950"\n'
    ks=[("p1_kernel",phase1()),("at_kernel",attention()),("p3_kernel",phase3())]
    for n,a in ks:
        s += khead(n)+a.text()
        print(n, "instrs", len(a.seq), "nops", a.nops, file=sys.stderr)
    if extra_empty: s += khead("nop_kernel")+"  s_endpgm\n"
    for n,a in ks: s += kdesc(n,256)
    if extra_empty: s += kdesc("nop_kernel",8)
    return s

if __name__=="__main__":
    out = sys.argv[1] if len(sys.argv)>1 else f"cdna_kernels/{NAME}.s"
    open(out,"w").write(build(int(sys.argv[2]) if len(sys.argv)>2 else 0))
```

```python
import sys, math, struct
sys.path.insert(0, "work")
from asmlib import *

NAME = "gated_mix__sliding_block__swiglu_ffn__prompt"
MB = 1<<20
WS_Q, WS_K, WS_V, WS_A3, WS_G = 0, 2*MB, 4*MB, 6*MB, 14*MB
WS_SIZE = 16*MB
A3_TB = 118*1024
LOG2E = math.log2(math.e)
def f2u(f): return struct.unpack("<I", struct.pack("<f", f))[0]
MF = "v_mfma_f32_32x32x16_bf16"

def srd(a, d, lo, size):
    a(f"s_mov_b32 s{d}, s{lo}")
    a(f"s_mov_b32 s{d+1}, s{lo+1}")
    a(f"s_mov_b32 s{d+2}, {size:#x}")
    a(f"s_mov_b32 s{d+3}, 0x20000")

def kdesc(name, nv, ns=102):
    return f""".section .rodata,"a"
.p2align 6
.amdhsa_kernel {name}
  .amdhsa_next_free_vgpr {nv}
  .amdhsa_next_free_sgpr {ns}
  .amdhsa_accum_offset {nv}
  .amdhsa_group_segment_fixed_size 0
  .amdhsa_kernarg_size 88
  .amdhsa_user_sgpr_count 2
  .amdhsa_user_sgpr_kernarg_segment_ptr 1
  .amdhsa_system_sgpr_workgroup_id_x 1
.end_amdhsa_kernel
"""
def khead(name):
    return f""".text
.globl {name}
.p2align 8
.type {name},@function
{name}:
"""

STAMP=False
WS_ST=15*MB
def stamp(a, idx):
    if STAMP:
        lg=list(a.lg)
        a(f"{STAMP} s[{70+2*idx}:{71+2*idx}]")
        a("s_waitcnt lgkmcnt(0)")
def stamp_flush(a, kid, n, sWS, sW):
    if STAMP:
        a("s_waitcnt vmcnt(0)")
        stamp(a, n-1)
        a(f"s_lshl_b32 s68, s2, 3"); a(f"s_add_u32 s68, s68, s{sW}"); a(f"s_lshl_b32 s68, s68, 6")
        a(f"s_add_u32 s68, s68, {WS_ST+kid*256*8*64}")
        a("v_mov_b32 v0, 0")
        for i in range(n):
            a(f"v_mov_b32 v1, s{70+2*i}")
            a(f"buffer_store_dword v1, v0, {sr(sWS,4)}, s68 offen offset:{4*i}")
L_LO, L_HI, L_GW, L_G = 0, 65536, 114688, 115712
P1_LDS = 116224
def phase1():
    a = Asm()
    sX, sWQ, sWF, sWS, sGW = 8, 12, 16, 24, 28
    sW, sTB, sCH, sRB, sCG, sSB = 32, 33, 34, 35, 36, 37
    sXo, sQo, sFo, sLx, sLq, sLf, sT, sT2 = 38, 39, 40, 41, 42, 43, 44, 45
    sJ, sSc0, sSc1, sSt0, sSt1, sE = 46, 48, 50, 52, 53, 54
    vL, vX0, vX1, vWq, vWf = 1, 2, 3, 4, 5
    vXr = 6
    vTq, vAL, vBL, vAH, vBH, vGa, vSt, vG, vG2, vT0, vT1, vOm = 10, 11, 12, 13, 14, 15, 16, 17, 18, 20, 22, 24
    GB, WB, ACC, XR = 32, 40, 64, 128
    a("s_cmp_ge_u32 s2, 256"); a("s_cbranch_scc1 P1_END"); stamp(a,0)
    a("s_load_dwordx4 s[56:59], s[0:1], 0")
    a("s_load_dwordx4 s[60:63], s[0:1], 32")
    a("s_load_dwordx2 s[64:65], s[0:1], 56")
    a("s_load_dwordx2 s[66:67], s[0:1], 80")
    a(f"v_and_b32 v{vL}, 63, v0")
    a(f"v_lshrrev_b32 v{vT0}, 6, v0")
    a(f"v_readfirstlane_b32 s{sW}, v{vT0}")
    a(f"s_and_b32 s{sTB}, s{sW}, 3"); a(f"s_lshr_b32 s{sCH}, s{sW}, 2")
    a(f"s_bfe_u32 s{sRB}, s2, 0x10002"); a(f"s_lshl_b32 s{sRB}, s{sRB}, 3")
    a(f"s_bfe_u32 s{sT}, s2, 0x30003"); a(f"s_add_u32 s{sRB}, s{sRB}, s{sT}")
    a(f"s_and_b32 s{sCG}, s2, 3"); a(f"s_lshl_b32 s{sCG}, s{sCG}, 2")
    a(f"s_lshr_b32 s{sT}, s2, 6"); a(f"s_add_u32 s{sCG}, s{sCG}, s{sT}")
    a(f"s_mul_i32 s{sT}, s{sCG}, 43"); a(f"s_lshr_b32 s{sT}, s{sT}, 7")
    a(f"s_mul_i32 s{sSB}, s{sCG}, 3"); a(f"s_sub_u32 s{sSB}, s{sSB}, s{sT}")
    a(f"v_lshrrev_b32 v{vT0}, 3, v{vL}")
    a(f"v_lshrrev_b32 v{vT1}, 4, v{vL}")
    a(f"v_and_b32 v{vX0}, 7, v{vL}")
    a(f"v_xor_b32 v{vX0}, v{vX0}, v{vT1}")
    a(f"v_lshlrev_b32 v{vX0}, 4, v{vX0}")
    a(f"v_lshl_add_u32 v{vX0}, v{vT0}, 10, v{vX0}")
    a(f"v_xor_b32 v{vX1}, 64, v{vX0}")
    a(f"v_add_u32 v{vX1}, 8192, v{vX1}")
    a(f"v_lshrrev_b32 v{vT0}, 2, v{vL}")
    a(f"v_and_b32 v{vT1}, 3, v{vL}")
    a(f"v_mul_u32_u24 v{vWq}, 3072, v{vT0}")
    a(f"v_lshl_add_u32 v{vWq}, v{vT1}, 4, v{vWq}")
    a(f"s_lshl_b32 s{sT}, s{sCH}, 1")
    a(f"v_xor_b32 v{vT1}, s{sT}, v{vT1}")
    a(f"v_mul_u32_u24 v{vWf}, 2752, v{vT0}")
    a(f"v_lshl_add_u32 v{vWf}, v{vT1}, 4, v{vWf}")
    a(f"s_lshl_b32 s{sXo}, s{sRB}, 17"); a(f"s_lshl_b32 s{sT}, s{sW}, 14"); a(f"s_add_u32 s{sXo}, s{sXo}, s{sT}")
    a(f"s_mul_i32 s{sQo}, s{sTB}, {16*3072}"); a(f"s_mul_i32 s{sT}, s{sCG}, 192"); a(f"s_add_u32 s{sQo}, s{sQo}, s{sT}")
    a(f"s_lshl_b32 s{sT}, s{sCH}, 7"); a(f"s_add_u32 s{sQo}, s{sQo}, s{sT}")
    a(f"s_mul_i32 s{sFo}, s{sTB}, {16*2752}"); a(f"s_lshl_b32 s{sT}, s{sSB}, 6"); a(f"s_add_u32 s{sFo}, s{sFo}, s{sT}")
    a(f"s_lshl_b32 s{sLx}, s{sW}, 11")
    a(f"s_mul_i32 s{sLq}, s{sTB}, 3072"); a(f"s_lshl_b32 s{sT}, s{sCH}, 11"); a(f"s_add_u32 s{sLq}, s{sLq}, s{sT}")
    a(f"s_add_u32 s{sLq}, s{sLq}, {L_HI}")
    a(f"s_and_b32 s{sT}, s{sTB}, 1"); a(f"s_lshl_b32 s{sT}, s{sT}, 1"); a(f"s_add_u32 s{sT}, s{sT}, s{sCH}")
    a(f"s_mul_i32 s{sLf}, s{sT}, 3072")
    a(f"s_cmp_ge_u32 s{sTB}, 2")
    a(f"s_cselect_b32 s{sT}, {L_HI}, 0"); a(f"s_add_u32 s{sLf}, s{sLf}, s{sT}")
    a(f"s_cmp_ge_u32 s{sTB}, 2")
    a(f"s_cselect_b32 s{sE}, 3, 4"); a(f"s_lshl_b32 s{sE}, s{sE}, 12")
    a(f"v_and_b32 v{vT0}, 31, v{vL}")
    a(f"v_lshrrev_b32 v{vT1}, 5, v{vL}")
    a(f"v_bfe_u32 v{vXr}, v{vL}, 1, 3")
    a(f"v_xor_b32 v{vXr}, v{vXr}, v{vT1}")
    a(f"v_lshlrev_b32 v{vXr}, 4, v{vXr}")
    a(f"v_lshl_add_u32 v{vXr}, v{vT0}, 7, v{vXr}")
    a(f"s_lshl_b32 s{sT}, s{sTB}, 12")
    a(f"v_add_u32 v{vXr}, s{sT}, v{vXr}")
    for j in (1,2,3): a(f"v_xor_b32 v{vXr+j}, {32*j}, v{vXr}")
    a(f"v_lshlrev_b32 v{vGa}, 4, v{vT1}")
    a(f"v_add_u32 v{vGa}, {L_GW}, v{vGa}")
    a(f"v_bfe_u32 v{vT0}, v{vL}, 2, 2")
    a(f"v_lshl_add_u32 v{vT0}, v{vT1}, 3, v{vT0}")
    a(f"v_lshlrev_b32 v{vT0}, 6, v{vT0}")
    a(f"v_and_b32 v{vT1}, 3, v{vL}")
    a(f"v_lshl_add_u32 v{vT0}, v{vT1}, 3, v{vT0}")
    a(f"v_bfe_u32 v{vT1}, v{vL}, 4, 1")
    a(f"v_lshl_add_u32 v{vTq}, v{vT1}, 5, v{vT0}")
    a(f"s_lshl_b32 s{sT}, s{sCH}, 11"); a(f"s_add_u32 s{sT}, s{sT}, {L_HI}")
    a(f"v_add_u32 v{vTq}, s{sT}, v{vTq}")
    a(f"v_mul_u32_u24 v{vAL}, 3072, v{vT1}")
    a(f"v_add_u32 v{vAL}, v{vAL}, v{vT0}")
    a(f"v_xor_b32 v{vT1}, s{sCH}, v{vT1}")
    a(f"v_lshl_add_u32 v{vAL}, v{vT1}, 5, v{vAL}")
    a(f"v_xor_b32 v{vBL}, 32, v{vAL}")
    a(f"s_lshl_b32 s{sT}, s{sCH}, 10"); a(f"v_add_u32 v{vAL}, s{sT}, v{vAL}")
    a(f"s_lshl_b32 s{sT}, s{sCH}, 11"); a(f"v_add_u32 v{vBL}, s{sT}, v{vBL}")
    a(f"v_add_u32 v{vAH}, {L_HI}, v{vAL}"); a(f"v_add_u32 v{vBH}, {L_HI}, v{vBL}")
    a(f"v_lshlrev_b32 v{vSt}, 4, v{vL}")
    a(f"v_mov_b32 v{vG}, 0")
    a(f"s_mul_i32 s{sJ}, s{sCG}, 3"); a(f"s_lshl_b32 s{sT}, s{sCH}, 1"); a(f"s_add_u32 s{sJ}, s{sJ}, s{sT}")
    a("s_waitcnt lgkmcnt(0)")
    srd(a, sX, 56, 2*MB); srd(a, sWQ, 58, 512*3072)
    a(f"s_cmp_eq_u32 s{sCH}, 0")
    a(f"s_cselect_b32 s60, s60, s62"); a(f"s_cselect_b32 s61, s61, s63")
    srd(a, sWF, 60, 512*2752); srd(a, sGW, 64, 1024); srd(a, sWS, 66, WS_SIZE)

    def dma(voff, srdr, soff_reg, soff_imm, lds_reg, lds_imm, tag):
        a(f"s_add_u32 m0, s{lds_reg}, {lds_imm}")
        a(f"s_add_u32 s{sT}, s{soff_reg}, {soff_imm}")
        a(f"buffer_load_dwordx4 v{voff}, {sr(srdr,4)}, s{sT} offen lds", tag)
    def dma_ops(st, ch):
        q = st & 3; ops=[]
        if st < 8:
            ops.append(lambda: dma(vX0, sX, sXo, st*128, sLx, q*16384, ("d",st)))
            ops.append(lambda: dma(vX1, sX, sXo, st*128, sLx, q*16384+1024, ("d",st)))
            for t in range(2 if ch==0 else 1):
                ops.append(lambda t=t: dma(vWq, sWQ, sQo, st*64*3072+t*64, sLq, q*12288+t*1024, ("d",st)))
        elif st < 16:
            s2 = st-8
            def first():
                a(f"s_mul_i32 s{sT2}, s{sE}, {q}"); a(f"s_add_u32 s{sT2}, s{sT2}, s{sLf}")
                dma(vWf, sWF, sFo, s2*64*2752, sT2, 0, ("d",st))
            ops.append(first)
            for t in (1,2):
                ops.append(lambda t=t: dma(vWf, sWF, sFo, s2*64*2752+t*64, sT2, t*1024, ("d",st)))
        return ops
    def read_ops(i, ch):
        st=i>>2; j=i&3; q=st&3; wb=WB+12*(i&1); ops=[]; tg=("r",i)
        if i<32:
            ops.append(lambda: a(f"ds_read_b128 {vr(XR+4*i,4)}, v{vXr+j} offset:{q*16384}", tg))
            for t in range(2 if ch==0 else 1):
                for e in range(2):
                    ops.append(lambda t=t,e=e: a(f"ds_read_b64_tr_b16 {vr(wb+4*t+2*e,2)}, v{vTq} offset:{q*12288+(j*3+t)*1024+e*256}", tg))
            if ch==1:
                ops.append(lambda: a(f"ds_read_b128 {vr(GB+4*(i&1),4)}, v{vGa} offset:{i*32}", tg))
        elif i<64:
            A,B,base = (vAL,vBL,q*16384+j*6144) if j<2 else (vAH,vBH,q*12288+(j-2)*6144)
            for n,(rg,off) in enumerate(((A,0),(B,0),(A,1024))):
                for e in range(2):
                    ops.append(lambda n=n,e=e,rg=rg,off=off: a(f"ds_read_b64_tr_b16 {vr(wb+4*n+2*e,2)}, v{rg} offset:{base+off+e*256}", tg))
        return ops
    def step(i, ch, isv):
        st=i>>2; j=i&3; wb=WB+12*(i&1); k=i&31
        a.wait(lg=[("r",i)])
        fill=[]
        if j==3 and st<15:
            a.wait(vm=[("d",st+1)])
            a("s_barrier")
        fill += read_ops(i+1, ch)
        if j==3: fill += dma_ops(st+4, ch)
        nt = 3 if i>=32 else (2 if ch==0 else 1)
        mf=[]
        for t in range(nt):
            c = "0" if k==0 else vr(ACC+16*t,16)
            W, X = vr(wb+4*t,4), vr(XR+4*k,4)
            A_,B_ = (X,W) if (isv and i<32) else (W,X)
            mf.append(f"{MF} {vr(ACC+16*t,16)}, {A_}, {B_}, {c}")
        if i<32 and ch==1:
            for d in range(4):
                fill.append(lambda d=d: a(f"v_dot2c_f32_bf16 v{vG}, v{XR+4*i+d}, v{GB+4*(i&1)+d}"))
        per = -(-len(fill)//nt)
        for t in range(nt):
            a(mf[t])
            for f in fill[t*per:(t+1)*per]: f()

    a(f"s_cmp_ge_u32 s{sJ}, 32"); a(f"s_cselect_b32 s{sT2}, 2, 0"); a(f"s_add_u32 s{sT2}, s{sT2}, s{sCH}")
    a(f"s_cmp_eq_u32 s{sT2}, 1"); a("s_cbranch_scc1 P1_V01")
    a(f"s_cmp_eq_u32 s{sT2}, 2"); a("s_cbranch_scc1 P1_V10")
    a(f"s_cmp_eq_u32 s{sT2}, 3"); a("s_cbranch_scc1 P1_V11")
    order = [(0,0),(1,0),(1,1),(0,1)]
    for vi,(isv,ch) in enumerate(order):
        a.label(f"P1_V{isv}{ch}")
        a.vm=[]; a.lg=[]
        if ch==1:
            a(f"s_mov_b32 m0, {L_GW}")
            a(f"buffer_load_dwordx4 v{vSt}, {sr(sGW,4)}, 0 offen lds", ("d",0))
        for st in range(4):
            for f in dma_ops(st,ch): f()
        stamp(a,1)
        a.wait(vm=[("d",0)]); a("s_barrier")
        stamp(a,2)
        for f in read_ops(0,ch): f()
        for i in range(32): step(i,ch,isv)
        stamp(a,3)
        nt = 2 if ch==0 else 1
        a(f"s_lshl_b32 s{sT}, s{sRB}, 2"); a(f"s_add_u32 s{sT}, s{sT}, s{sTB}")
        a(f"s_lshl_b32 s{sT}, s{sT}, {11 if isv else 10}")
        a(f"s_lshl_b32 s{sSt0}, s{sJ}, 17"); a(f"s_add_u32 s{sSt0}, s{sSt0}, s{sT}")
        if ch==1:
            a(f"v_mov_b32 v{vG2}, v{vG}")
            a(f"v_permlane32_swap_b32 v{vG}, v{vG2}")
            a(f"v_add_f32 v{vG}, v{vG}, v{vG2}")
            a(f"v_mul_f32 v{vG}, {f2u(-LOG2E):#x}, v{vG}")
            a(f"v_exp_f32 v{vG}, v{vG}")
            a(f"v_add_f32 v{vG}, 1.0, v{vG}")
            a(f"v_rcp_f32 v{vG}, v{vG}")
            a(f"v_and_b32 v{vT0}, 31, v{vL}")
            a(f"s_lshl_b32 s{sT}, s{sTB}, 7"); a(f"s_add_u32 s{sT}, s{sT}, {L_G}")
            a(f"v_lshl_add_u32 v{vT1}, v{vT0}, 2, s{sT}")
            a(f"ds_write_b32 v{vT1}, v{vG}", "gw")
            a(f"s_lshl_b32 s{sT}, s{sRB}, 2"); a(f"s_add_u32 s{sT}, s{sT}, s{sTB}"); a(f"s_lshl_b32 s{sT}, s{sT}, 7")
            a(f"s_add_u32 s{sT}, s{sT}, {WS_G}")
            a(f"v_lshlrev_b32 v{vT0}, 2, v{vT0}")
            a(f"buffer_store_dword v{vG}, v{vT0}, {sr(sWS,4)}, s{sT} offen", "st")
        for t in range(nt):
            A=ACC+16*t
            if not isv:
                a(f"s_cmp_lt_u32 s{sJ}, {16-t}")
                a(f"s_cselect_b32 s{sSc0}, {f2u(0.25*LOG2E):#x}, 1.0"); a(f"s_mov_b32 s{sSc0+1}, s{sSc0}")
                for r in range(0,16,2): a(f"v_pk_mul_f32 {vr(A+r,2)}, {vr(A+r,2)}, {sr(sSc0,2)}")
            for r in range(8): a(f"v_cvt_pk_bf16_f32 v{A+r}, v{A+2*r}, v{A+2*r+1}")
            for e in range(2):
                a(f"s_add_u32 s{sT}, s{sSt0}, {t*131072 + e*(1024 if isv else 65536)}")
                a(f"buffer_store_dwordx4 {vr(A+4*e,4)}, v{vSt}, {sr(sWS,4)}, s{sT} offen", "st")
        if vi<3: a("s_branch P1_PASS2")
    a.label("P1_PASS2")
    a("s_waitcnt lgkmcnt(0)")
    for i in range(32,64): step(i,1,0)
    stamp(a,4)
    a(f"v_and_b32 v{vT0}, 31, v{vL}")
    a(f"s_lshl_b32 s{sT}, s{sTB}, 7"); a(f"s_add_u32 s{sT}, s{sT}, {L_G}")
    a(f"v_lshl_add_u32 v{vT1}, v{vT0}, 2, s{sT}")
    a(f"ds_read_b32 v{vOm}, v{vT1}", "g")
    a(f"s_lshl_b32 s{sT}, s{sRB}, 2"); a(f"s_add_u32 s{sT}, s{sT}, s{sTB}"); a(f"s_mul_i32 s{sSt0}, s{sT}, {A3_TB}")
    a(f"s_lshl_b32 s{sT}, s{sSB}, 11"); a(f"s_add_u32 s{sSt0}, s{sSt0}, s{sT}")
    a(f"s_mul_i32 s{sT}, s{sCH}, 3072"); a(f"s_add_u32 s{sSt0}, s{sSt0}, s{sT}"); a(f"s_add_u32 s{sSt0}, s{sSt0}, {WS_A3}")
    a(f"s_mov_b32 s{sSc0}, {f2u(-LOG2E):#x}"); a(f"s_mov_b32 s{sSc0+1}, s{sSc0}")
    a.wait(lg="g")
    a(f"v_sub_f32 v{vOm}, 1.0, v{vOm}"); a(f"v_mov_b32 v{vOm+1}, v{vOm}")
    T=WB
    for n in range(3):
        A=ACC+16*n
        for r in range(0,8,2): a(f"v_pk_mul_f32 {vr(T+r,2)}, {vr(A+r,2)}, {sr(sSc0,2)}")
        for r in range(8): a(f"v_exp_f32 v{T+r}, v{T+r}")
        for r in range(0,8,2): a(f"v_pk_mul_f32 {vr(A+r,2)}, {vr(A+r,2)}, {vr(A+8+r,2)}")
        for r in range(0,8,2): a(f"v_pk_add_f32 {vr(T+r,2)}, {vr(T+r,2)}, 1.0 op_sel_hi:[1,0]")
        for r in range(8): a(f"v_rcp_f32 v{T+r}, v{T+r}")
        for r in range(0,8,2): a(f"v_pk_mul_f32 {vr(A+r,2)}, {vr(A+r,2)}, {vr(vOm,2)}")
        for r in range(0,8,2): a(f"v_pk_mul_f32 {vr(A+r,2)}, {vr(A+r,2)}, {vr(T+r,2)}")
        for r in range(4): a(f"v_cvt_pk_bf16_f32 v{A+8+r}, v{A+2*r}, v{A+2*r+1}")
        a(f"buffer_store_dwordx4 {vr(A+8,4)}, v{vSt}, {sr(sWS,4)}, s{sSt0} offen offset:{n*1024}", "st")
    stamp(a,5)
    stamp_flush(a,0,7,sWS,sW)
    a.label("P1_END")
    a("s_endpgm")
    return a

def attention():
    a = Asm()
    sWS=8; sW,sRB,sCG,sHead,sQB,sT,sT2,sKo,sVo,sN = 12,13,14,15,16,17,18,19,20,21
    sM=32
    vL,vSt,vVo,vT0,vT1,vM,vM2,vBig,vGt = 1,2,3,4,5,6,7,8,10
    MK=12; Q=20; KF=28; VF=68; SM=148; S0=164; S1=180; CM=196; O=212; P=228; P2=236
    a("s_cmp_ge_u32 s2, 256"); a("s_cbranch_scc1 AT_END"); stamp(a,0)
    a("s_load_dwordx2 s[66:67], s[0:1], 80")
    a(f"v_and_b32 v{vL}, 63, v0")
    a(f"v_lshrrev_b32 v{vT0}, 6, v0")
    a(f"v_readfirstlane_b32 s{sW}, v{vT0}")
    a(f"s_bfe_u32 s{sRB}, s2, 0x10002"); a(f"s_lshl_b32 s{sRB}, s{sRB}, 3")
    a(f"s_bfe_u32 s{sT}, s2, 0x30003"); a(f"s_add_u32 s{sRB}, s{sRB}, s{sT}")
    a(f"s_and_b32 s{sCG}, s2, 3"); a(f"s_lshl_b32 s{sCG}, s{sCG}, 2")
    a(f"s_lshr_b32 s{sT}, s2, 6"); a(f"s_add_u32 s{sCG}, s{sCG}, s{sT}")
    a(f"s_and_b32 s{sT}, s{sW}, 1"); a(f"s_lshl_b32 s{sHead}, s{sCG}, 1"); a(f"s_add_u32 s{sHead}, s{sHead}, s{sT}")
    a(f"s_and_b32 s{sT2}, s{sW}, 2"); a(f"s_lshl_b32 s{sQB}, s{sRB}, 2"); a(f"s_add_u32 s{sQB}, s{sQB}, s{sT2}")
    a(f"v_lshlrev_b32 v{vSt}, 4, v{vL}")
    a(f"v_and_b32 v{vVo}, 47, v{vL}"); a(f"v_lshlrev_b32 v{vVo}, 4, v{vVo}")
    a(f"s_lshl_b32 s{sKo}, s{sHead}, 16")
    a(f"s_lshl_b32 s{sVo}, s{sCG}, 17"); a(f"s_lshl_b32 s{sT}, s{sT}, 8"); a(f"s_add_u32 s{sVo}, s{sVo}, s{sT}")
    a(f"s_add_u32 s{sVo}, s{sVo}, {WS_V}")
    for r in range(80): a(f"v_mov_b32 v{VF+r}, 0x3f803f80")
    a("s_waitcnt lgkmcnt(0)")
    srd(a, sWS, 66, WS_SIZE)
    a(f"s_lshl_b32 s{sT}, s{sQB}, 10"); a(f"s_add_u32 s{sT}, s{sT}, s{sKo}")
    for u in range(2): a(f"buffer_load_dwordx4 {vr(Q+4*u,4)}, v{vSt}, {sr(sWS,4)}, s{sT} offen offset:{u*1024}", ("q",u))
    a(f"s_add_u32 s{sKo}, s{sKo}, {WS_K}")
    korder=[8,0,7,6,5,4,3,2,1,9]
    for n in korder:
        a(f"s_add_i32 s{sT}, s{sQB}, {n-8}"); a(f"s_max_i32 s{sT}, s{sT}, 0"); a(f"s_lshl_b32 s{sT}, s{sT}, 10"); a(f"s_add_u32 s{sT}, s{sT}, s{sKo}")
        a(f"buffer_load_dwordx4 {vr(KF+4*n,4)}, v{vSt}, {sr(sWS,4)}, s{sT} offen", ("k",n))
    a(f"v_and_b32 v{vT0}, 31, v{vL}"); a(f"v_lshlrev_b32 v{vT1}, 2, v{vT0}")
    a(f"s_lshl_b32 s{sT}, s{sQB}, 7"); a(f"s_add_u32 s{sT}, s{sT}, {WS_G}")
    for u in range(2): a(f"buffer_load_dword v{vGt+u}, v{vT1}, {sr(sWS,4)}, s{sT} offen offset:{u*128}", ("g",u))
    a("s_mov_b32 exec_lo, 0xffff"); a("s_mov_b32 exec_hi, 0xffff")
    for n in korder:
        a(f"s_add_i32 s{sT}, s{sQB}, {n-8}"); a(f"s_max_i32 s{sT}, s{sT}, 0"); a(f"s_lshl_b32 s{sT}, s{sT}, 11"); a(f"s_add_u32 s{sT}, s{sT}, s{sVo}")
        for m in range(2):
            a(f"buffer_load_dwordx4 {vr(VF+8*n+4*m,4)}, v{vVo}, {sr(sWS,4)}, s{sT} offen offset:{m*1024}", ("v",n))
    a("s_mov_b64 exec, -1")
    a(f"v_lshrrev_b32 v{vT1}, 5, v{vL}"); a(f"v_lshlrev_b32 v{vT1}, 2, v{vT1}"); a(f"v_sub_u32 v{vT0}, v{vT0}, v{vT1}")
    for r in range(16):
        a(f"v_cmp_le_i32 {sr(sM+2*r,2)}, {(r&3)+8*(r>>2)}, v{vT0}")
    a(f"v_mov_b32 v{vBig}, 0xffff"); a(f"v_mov_b32 v{vM}, 0xffff0000")
    for i in range(8):
        a(f"v_cndmask_b32 v{MK+i}, 0, v{vBig}, {sr(sM+4*i,2)}")
        a(f"v_cndmask_b32 v{vT1}, 0, v{vM}, {sr(sM+4*i+2,2)}")
        a(f"v_or_b32 v{MK+i}, v{MK+i}, v{vT1}")
    a(f"v_mov_b32 v{vBig}, {f2u(-1e30):#x}")
    for u in range(2):
        Qr=vr(Q+4*u,4); nd=8+u; no=u
        K_=lambda n: vr(KF+4*n,4)
        a(f"s_add_u32 s{sN}, s{sQB}, {u}")
        stamp(a,1+2*u)
        a.wait(vm=[("q",u),("k",nd),("k",no)])
        stamp(a,2+2*u)
        a(f"{MF} {vr(S0,16)}, {K_(nd)}, {Qr}, 0")
        a(f"{MF} {vr(S1,16)}, {K_(no)}, {Qr}, 0")
        bufs=[CM,O,S0,S1]
        def smf(d, c="0", buf=None):
            a.wait(vm=[("k",nd-d)])
            a(f"{MF} {vr(buf,16)}, {K_(nd-d)}, {Qr}, {c}")
        smf(1,buf=bufs[0]); smf(2,buf=bufs[1])
        a(f"s_cmp_ge_u32 s{sN}, 8"); a(f"s_cbranch_scc1 AT_OLD{u}")
        for r in range(16): a(f"v_mov_b32 v{S1+r}, v{vBig}")
        a.label(f"AT_OLD{u}")
        for r in range(16): a(f"v_cndmask_b32 v{SM+r}, v{S1+r}, v{S0+r}, {sr(sM+2*r,2)}")
        a(f"v_max3_f32 v{vM}, v{SM}, v{SM+1}, v{SM+2}")
        a(f"v_max3_f32 v{vM2}, v{SM+3}, v{SM+4}, v{SM+5}")
        for r in range(6,16,4):
            a(f"v_max3_f32 v{vM}, v{vM}, v{SM+r}, v{SM+r+1}")
            if r+2<16: a(f"v_max3_f32 v{vM2}, v{vM2}, v{SM+r+2}, v{SM+r+3}")
        for d in range(1,8):
            a(f"s_cmp_lt_u32 s{sN}, {d}"); a(f"s_cbranch_scc1 AT_MX{u}")
            if d+2<8: smf(d+2,buf=bufs[(d+1)%4])
            b=bufs[(d-1)%4]
            for r in range(0,16,4):
                a(f"v_max3_f32 v{vM}, v{vM}, v{b+r}, v{b+r+1}")
                a(f"v_max3_f32 v{vM2}, v{vM2}, v{b+r+2}, v{b+r+3}")
        a.label(f"AT_MX{u}")
        a.wait(vm=[("k",n) for n in range(no,nd+1)])
        a(f"v_max_f32 v{vM}, v{vM}, v{vM2}")
        a(f"v_mov_b32 v{vM2}, v{vM}")
        a(f"v_permlane32_swap_b32 v{vM}, v{vM2}")
        a(f"v_max_f32 v{vM}, v{vM}, v{vM2}")
        a(f"v_sub_f32 v{CM}, 0, v{vM}")
        a(f"v_mov_b32 v{CM+1}, v{CM}")
        for r in range(2,16,2): a(f"v_mov_b64 {vr(CM+r,2)}, {vr(CM,2)}")
        sb=[S0,S1]
        smf(1,vr(CM,16),sb[1])
        for r in range(0,16,2): a(f"v_pk_add_f32 {vr(SM+r,2)}, {vr(SM+r,2)}, {vr(CM,2)}")
        for r in range(16): a(f"v_exp_f32 v{SM+r}, v{SM+r}")
        for r in range(8): a(f"v_cvt_pk_bf16_f32 v{P2+r}, v{SM+2*r}, v{SM+2*r+1}")
        for r in range(8): a(f"v_and_b32 v{P+r}, v{P2+r}, v{MK+r}")
        for r in range(8): a(f"v_xor_b32 v{P2+r}, v{P2+r}, v{P+r}")
        a.wait(vm=[("v",nd),("v",no)])
        a(f"{MF} {vr(O,16)}, {vr(VF+8*nd,4)}, {vr(P,4)}, 0")
        a(f"{MF} {vr(O,16)}, {vr(VF+8*nd+4,4)}, {vr(P+4,4)}, {vr(O,16)}")
        a(f"{MF} {vr(O,16)}, {vr(VF+8*no,4)}, {vr(P2,4)}, {vr(O,16)}")
        a(f"{MF} {vr(O,16)}, {vr(VF+8*no+4,4)}, {vr(P2+4,4)}, {vr(O,16)}")
        for d in range(1,8):
            a(f"s_cmp_lt_u32 s{sN}, {d}"); a(f"s_cbranch_scc1 AT_FIN{u}")
            if d+1<8: smf(d+1,vr(CM,16),sb[(d+1)&1])
            b=sb[d&1]; pb=P if d&1 else P2; n=nd-d
            for r in range(8): a(f"v_exp_f32 v{b+r}, v{b+r}")
            for r in range(4): a(f"v_cvt_pk_bf16_f32 v{pb+r}, v{b+2*r}, v{b+2*r+1}")
            for r in range(8,10): a(f"v_exp_f32 v{b+r}, v{b+r}")
            a.wait(vm=[("v",n)])
            a(f"{MF} {vr(O,16)}, {vr(VF+8*n,4)}, {vr(pb,4)}, {vr(O,16)}")
            for r in range(10,16): a(f"v_exp_f32 v{b+r}, v{b+r}")
            for r in range(4,8): a(f"v_cvt_pk_bf16_f32 v{pb+r}, v{b+2*r}, v{b+2*r+1}")
            a(f"{MF} {vr(O,16)}, {vr(VF+8*n+4,4)}, {vr(pb+4,4)}, {vr(O,16)}")
        a.label(f"AT_FIN{u}")
        a.wait(vm=[("v",n) for n in range(no,nd+1)]+[("g",u)])
        a(f"s_mul_i32 s{sT}, s{sN}, {A3_TB}"); a(f"s_lshl_b32 s{sT2}, s{sHead}, 10"); a(f"s_add_u32 s{sT}, s{sT}, s{sT2}")
        a(f"s_add_u32 s{sT}, s{sT}, {WS_A3+86*1024}")
        a(f"v_rcp_f32 v{vT0}, v{O+8}")
        a(f"v_mul_f32 v{vT0}, v{vT0}, v{vGt+u}")
        for r in range(8): a(f"v_mul_f32 v{O+r}, v{O+r}, v{vT0}")
        for r in range(4): a(f"v_cvt_pk_bf16_f32 v{SM+r}, v{O+2*r}, v{O+2*r+1}")
        a(f"buffer_store_dwordx4 {vr(SM,4)}, v{vSt}, {sr(sWS,4)}, s{sT} offen", "st")
    stamp(a,5)
    stamp_flush(a,1,7,sWS,sW)
    a.label("AT_END")
    a("s_endpgm")
    return a

P3_LDS = 131072
def phase3():
    a = Asm()
    sWS,sWD,sWO,sWX,sOUT = 8,12,16,20,24
    sW,sTR,sTC,sT,sT2,sAo,sDo,sOo,sXo,sLb = 28,29,30,31,32,33,34,35,36,37
    vL,vSt,vD,vR0,vR1,vT0,vT1,vWa = 1,2,3,4,5,6,7,8
    WB=16; ACC=32; AF=96; DEPTH=14; NS=30
    a("s_cmp_ge_u32 s2, 256"); a("s_cbranch_scc1 P3_END"); stamp(a,0)
    a("s_load_dwordx2 s[56:57], s[0:1], 16")
    a("s_load_dwordx2 s[58:59], s[0:1], 48")
    a("s_load_dwordx2 s[60:61], s[0:1], 64")
    a("s_load_dwordx2 s[62:63], s[0:1], 80")
    a(f"v_and_b32 v{vL}, 63, v0")
    a(f"v_lshrrev_b32 v{vT0}, 6, v0")
    a(f"v_readfirstlane_b32 s{sW}, v{vT0}")
    a(f"s_and_b32 s{sTR}, s2, 7"); a(f"s_lshl_b32 s{sTR}, s{sTR}, 2"); a(f"s_bfe_u32 s{sT}, s2, 0x20003"); a(f"s_add_u32 s{sTR}, s{sTR}, s{sT}")
    a(f"s_lshr_b32 s{sTC}, s2, 5")
    a(f"v_lshlrev_b32 v{vSt}, 4, v{vL}")
    a(f"v_bfe_u32 v{vT0}, v{vL}, 4, 1"); a(f"v_lshlrev_b32 v{vT0}, 2, v{vT0}")
    a(f"v_and_b32 v{vT1}, 7, v{vL}"); a(f"v_xor_b32 v{vT0}, v{vT0}, v{vT1}"); a(f"v_lshlrev_b32 v{vT0}, 4, v{vT0}")
    a(f"v_lshrrev_b32 v{vT1}, 3, v{vL}"); a(f"v_lshl_add_u32 v{vD}, v{vT1}, 10, v{vT0}")
    a(f"v_lshrrev_b32 v{vT0}, 5, v{vL}"); a(f"v_bfe_u32 v{vT1}, v{vL}, 2, 2"); a(f"v_lshl_add_u32 v{vT0}, v{vT0}, 2, v{vT1}")
    a(f"v_lshlrev_b32 v{vR0}, 7, v{vT0}")
    a(f"v_bfe_u32 v{vT0}, v{vL}, 3, 1"); a(f"v_lshl_add_u32 v{vR0}, v{vT0}, 6, v{vR0}")
    a(f"v_bfe_u32 v{vT0}, v{vL}, 4, 1"); a(f"v_lshl_add_u32 v{vR0}, v{vT0}, 5, v{vR0}")
    a(f"v_and_b32 v{vT0}, 3, v{vL}"); a(f"v_lshl_add_u32 v{vR0}, v{vT0}, 3, v{vR0}")
    a(f"s_lshl_b32 s{sLb}, s{sW}, 15")
    a(f"v_add_u32 v{vR0}, s{sLb}, v{vR0}")
    a(f"v_xor_b32 v{vR1}, 64, v{vR0}")
    a(f"s_mul_i32 s{sAo}, s{sTR}, {2*A3_TB}"); a(f"s_lshl_b32 s{sT}, s{sW}, 10"); a(f"s_add_u32 s{sAo}, s{sAo}, s{sT}"); a(f"s_add_u32 s{sAo}, s{sAo}, {WS_A3}")
    a(f"s_lshl_b32 s{sDo}, s{sW}, 14"); a(f"s_lshl_b32 s{sT}, s{sTC}, 7"); a(f"s_add_u32 s{sDo}, s{sDo}, s{sT}")
    a("s_waitcnt lgkmcnt(0)")
    srd(a,sWO,56,512*1024); srd(a,sWD,58,1376*1024); srd(a,sOUT,60,2*MB); srd(a,sWS,62,WS_SIZE)
    a(f"s_cmp_lt_u32 s{sW}, 2")
    a(f"s_cselect_b32 s{sWX}, s58, s56"); a(f"s_cselect_b32 s{sWX+1}, s59, s57")
    a(f"s_cselect_b32 s{sWX+2}, s{sWD+2}, s{sWO+2}"); a(f"s_mov_b32 s{sWX+3}, 0x20000")
    a(f"s_cselect_b32 s{sXo}, 84, -2"); a(f"s_lshl_b32 s{sXo}, s{sXo}, 14"); a(f"s_add_u32 s{sXo}, s{sXo}, s{sDo}")
    def issue(i):
        slot=i%16; af=AF+8*(i%(DEPTH+1))
        for e in range(2):
            a(f"s_add_u32 m0, s{sLb}, {slot*2048+e*1024}")
            if i<21:  a(f"s_add_u32 s{sT}, s{sDo}, {i*65536+e*8192}"); R=sWD
            elif i==21: a(f"s_add_u32 s{sT}, s{sXo}, {e*8192}"); R=sWX
            else: a(f"s_add_u32 s{sT}, s{sDo}, {(4*i-86)*16384+e*8192}"); R=sWO
            a(f"buffer_load_dwordx4 v{vD}, {sr(R,4)}, s{sT} offen lds", ("w",i))
        for tb in range(2):
            a(f"s_add_u32 s{sT}, s{sAo}, {i*4096+tb*A3_TB}")
            a(f"buffer_load_dwordx4 {vr(af+4*tb,4)}, v{vSt}, {sr(sWS,4)}, s{sT} offen", ("a",i))
    def reads(i):
        slot=i%16; wb=WB+8*(i&1)
        for cb in range(2):
            for q in range(2):
                a(f"ds_read_b64_tr_b16 {vr(wb+4*cb+2*q,2)}, v{vR1 if cb else vR0} offset:{slot*2048+q*1024}", ("r",i))
    for i in range(DEPTH): issue(i)
    stamp(a,1)
    a.wait(vm=[("w",0)]); stamp(a,2); reads(0)
    for i in range(NS):
        wb=WB+8*(i&1); af=AF+8*(i%(DEPTH+1))
        if i+1<NS:
            a.wait(vm=[("w",i+1)]); reads(i+1)
        a.wait(vm=[("a",i)], lg=[("r",i)])
        if i==NS-1:
            a(f"s_cmp_ge_u32 s{sW}, 2"); a("s_cbranch_scc1 P3_RED")
        for tb in range(2):
            for cb in range(2):
                A=ACC+16*(2*tb+cb)
                a(f"{MF} {vr(A,16)}, {vr(wb+4*cb,4)}, {vr(af+4*tb,4)}, {'0' if i==0 else vr(A,16)}")
        if i+DEPTH<NS: issue(i+DEPTH)
    a.label("P3_RED")
    stamp(a,3)
    a(f"v_and_b32 v{vT0}, 31, v{vL}"); a(f"v_lshrrev_b32 v{vT1}, 5, v{vL}")
    a(f"v_and_b32 v{vWa}, 7, v{vL}"); a(f"v_xor_b32 v{vWa}, v{vWa}, v{vT1}"); a(f"v_lshlrev_b32 v{vWa}, 4, v{vWa}")
    a(f"v_lshl_add_u32 v{vWa}, v{vT0}, 8, v{vWa}"); a(f"v_add_u32 v{vWa}, s{sLb}, v{vWa}")
    for q in range(1,4): a(f"v_xor_b32 v{vWa+q}, {32*q}, v{vWa}")
    for tb in range(2):
        for cb in range(2):
            for q in range(4):
                a(f"ds_write_b128 v{vWa+q}, {vr(ACC+16*(2*tb+cb)+4*q,4)} offset:{tb*8192+cb*128}", "red")
    a("s_waitcnt lgkmcnt(0)"); a("s_barrier"); stamp(a,4)
    a(f"v_lshrrev_b32 v{vT0}, 3, v0"); a(f"v_and_b32 v{vT1}, 7, v0")
    a(f"v_lshlrev_b32 v{vWa}, 1, v{vT1}"); a(f"v_and_b32 v{vWa+1}, 7, v{vT0}"); a(f"v_xor_b32 v{vWa}, v{vWa}, v{vWa+1}")
    a(f"v_lshlrev_b32 v{vWa}, 4, v{vWa}"); a(f"v_lshl_add_u32 v{vWa}, v{vT0}, 8, v{vWa}")
    a(f"v_xor_b32 v{vWa+1}, 16, v{vWa}")
    a(f"v_add_u32 v{vWa+2}, 65536, v{vWa}"); a(f"v_add_u32 v{vWa+3}, 65536, v{vWa+1}")
    a(f"v_lshlrev_b32 v{vT1}, 4, v{vT1}"); a(f"v_lshl_add_u32 v{vT0}, v{vT0}, 10, v{vT1}")
    a(f"s_lshl_b32 s{sT}, s{sTR}, 16"); a(f"s_lshl_b32 s{sT2}, s{sTC}, 7"); a(f"s_add_u32 s{sT}, s{sT}, s{sT2}")
    for p in range(2):
        for w in range(4):
            for hf in range(2):
                a(f"ds_read_b128 {vr(ACC+32*p+8*w+4*hf,4)}, v{vWa+2*(w>>1)+hf} offset:{(w&1)*32768+p*8192}", ("rr",p))
    for p in range(2):
        B=ACC+32*p
        a.wait(lg=[("rr",p)])
        for r in range(0,8,2):
            a(f"v_pk_add_f32 {vr(B+r,2)}, {vr(B+r,2)}, {vr(B+8+r,2)}")
            a(f"v_pk_add_f32 {vr(B+16+r,2)}, {vr(B+16+r,2)}, {vr(B+24+r,2)}")
        for r in range(0,8,2): a(f"v_pk_add_f32 {vr(B+r,2)}, {vr(B+r,2)}, {vr(B+16+r,2)}")
        for r in range(4): a(f"v_cvt_pk_bf16_f32 v{B+8+r}, v{B+2*r}, v{B+2*r+1}")
        if p==1: a(f"s_add_u32 s{sT}, s{sT}, 32768")
        a(f"buffer_store_dwordx4 {vr(B+8,4)}, v{vT0}, {sr(sOUT,4)}, s{sT} offen", "st")
    stamp(a,5)
    stamp_flush(a,2,7,sWS,sW)
    a.label("P3_END")
    a("s_endpgm")
    return a

def build(extra_empty=0):
    hdr = f"; @launch kernel=p1_kernel grid=(256,1,1) block=(512,1,1) lds={P1_LDS}\n"
    hdr += f"; @launch kernel=at_kernel grid=(256,1,1) block=(256,1,1) lds=0\n"
    hdr += f"; @launch kernel=p3_kernel grid=(256,1,1) block=(256,1,1) lds={P3_LDS}\n"
    for i in range(extra_empty): hdr += f"; @launch kernel=nop_kernel grid=(256,1,1) block=(256,1,1) lds=0\n"
    s = hdr + '.amdgcn_target "amdgcn-amd-amdhsa--gfx950"\n'
    ks=[("p1_kernel",phase1()),("at_kernel",attention()),("p3_kernel",phase3())]
    for n,a in ks:
        s += khead(n)+a.text()
        print(n, "instrs", len(a.seq), "nops", a.nops, file=sys.stderr)
    if extra_empty: s += khead("nop_kernel")+"  s_endpgm\n"
    for n,a in ks: s += kdesc(n,256)
    if extra_empty: s += kdesc("nop_kernel",8)
    return s

if __name__=="__main__":
    if "--stamp" in sys.argv: STAMP="s_memrealtime"; sys.argv.remove("--stamp")
    if "--cyc" in sys.argv: STAMP="s_memtime"; sys.argv.remove("--cyc")
    out = sys.argv[1] if len(sys.argv)>1 else f"cdna_kernels/{NAME}.s"
    open(out,"w").write(build(int(sys.argv[2]) if len(sys.argv)>2 else 0))
```

```python
import sys
sys.path.insert(0,"work")
import gen1
from gen1 import *
def probe(kb, aux="", store=False):
    a=Asm(); a.check_pending=False
    a(f"s_cmp_ge_u32 s2, 256"); a("s_cbranch_scc1 PR_END")
    a(f"s_load_dwordx2 s[4:5], s[0:1], 80")
    a("s_waitcnt lgkmcnt(0)")
    srd(a,8,4,256*MB-1)
    a("v_lshlrev_b32 v1, 4, v0")
    a(f"s_mul_i32 s21, s2, {kb*1024}"); a(f"s_add_u32 s21, s21, {64*MB}")
    a(f"s_mov_b32 s20, {kb//8}")
    a.label("PR_L")
    if store: a(f"buffer_store_dwordx4 v[4:7], v1, s[8:11], s21 offen {aux}")
    else: a(f"buffer_load_dwordx4 v[4:7], v1, s[8:11], s21 offen {aux}")
    a("s_waitcnt vmcnt(8)")
    a("s_add_u32 s21, s21, 8192")
    a("s_sub_u32 s20, s20, 1"); a("s_cmp_lg_u32 s20, 0"); a("s_cbranch_scc1 PR_L")
    a.label("PR_END"); a("s_endpgm")
    return a
def mk(out, **kw):
    s=build(0)
    s="; @launch kernel=pr_kernel grid=(256,1,1) block=(512,1,1) lds=0\n"+s
    s=s.replace('.section .rodata', khead("pr_kernel")+probe(**kw).text()+'.section .rodata',1)
    s+=kdesc("pr_kernel",8)
    open(out,"w").write(s)
mk("pr_f.s", kb=8)
mk("pr_g.s", kb=256)
mk("pr_h.s", kb=256, aux="nt")
mk("pr_i.s", kb=32)
mk("pr_j.s", kb=64, store=True, aux="sc1")
mk("pr_k.s", kb=64, store=True)
```

```python
import sys, math, struct
sys.path.insert(0, "work")
from asmlib import *

NAME = "gated_mix__sliding_block__swiglu_ffn__prompt"
MB = 1<<20
WS_Q, WS_K, WS_V, WS_A3, WS_F, WS_ST = 0, 2*MB, 4*MB, 6*MB, 14*MB, 15*MB
WS_SIZE = 16*MB
A3_TB = 118*1024
LOG2E = math.log2(math.e)
def f2u(f): return struct.unpack("<I", struct.pack("<f", f))[0]
MF = "v_mfma_f32_32x32x16_bf16"
MF16 = "v_mfma_f32_16x16x32_bf16"
SLOT=28672
L_GW, L_Z, L_G, L_CNT, L_AF, LDS_SIZE = 159744, 160768, 161792, 162304, 162320, 162560
SPIN_MAX = 200000
OOB = 0x40000000

class Opt:
    stamp=None; rot=5; codepf=1; prio=1; probe=0; p0=9; warm=1; qsig=24; outaux=0; sleep=2; warmx=0; wst=2; rot3=1; prio2=2; tlb=0; NA=4; hpre=1; fast=1; ord=2; thr=0; thr3=6; a2=0; t0=1; align=1; forceslow=0; w2=1; early=2; thr2=0; thr1=0; aprio=0
O=Opt()

sWS,sX,sWQ,sWG,sWU,sWD,sWO,sOUT,sGW,sDBG = 4,8,12,16,20,24,28,32,36,40
sW,sI,sRB,sCG,sSB,sPH,sT,sT2,sT3,sTR,sTC = 44,45,46,47,48,49,50,51,52,53,54
sA,sB,sC,sD,sE,sF,sG_,sH,sLT = 55,56,57,58,59,60,61,62,63
sM=64
s1K,sDo,sHead,sRo = 98,99,100,101
vSTAMP=11

def stamp(a, idx, probe=0):
    if O.stamp and (probe==O.probe or idx in (0,15)):
        a(f"{O.stamp} s[96:97]"); a("s_waitcnt lgkmcnt(0)")
        a(f"v_writelane_b32 v{vSTAMP}, s96, {idx}")
def stamp_flush(a, vtmp):
    if O.stamp:
        a("s_waitcnt vmcnt(0)"); stamp(a,15)
        a(f"s_lshl_b32 s{sT}, s2, 3"); a(f"s_add_u32 s{sT}, s{sT}, s{sW}"); a(f"s_lshl_b32 s{sT}, s{sT}, 6")
        a(f"s_add_u32 s{sT}, s{sT}, {WS_ST}")
        a(f"v_mbcnt_lo_u32_b32 v{vtmp}, -1, 0"); a(f"v_lshlrev_b32 v{vtmp}, 2, v{vtmp}")
        a("s_mov_b64 exec, 0xffff")
        a(f"buffer_store_dword v{vSTAMP}, v{vtmp}, {sr(sWS,4)}, s{sT} offen")

def srd_tail(a, d, size):
    a(f"s_mov_b32 s{d+2}, {size:#x}"); a(f"s_mov_b32 s{d+3}, 0x20000")
def late_srds(a):
    for d,size in ((sWS,WS_SIZE),(sDBG,256),(sWG,512*2752),(sWU,512*2752),(sWD,1376*1024),(sWO,512*1024),(sOUT,2*MB)):
        srd_tail(a,d,size)
def late_scalars(a):
    a(f"s_mul_i32 s{sT}, s{sCG}, 43"); a(f"s_lshr_b32 s{sT}, s{sT}, 7")
    a(f"s_mul_i32 s{sSB}, s{sCG}, 3"); a(f"s_sub_u32 s{sSB}, s{sSB}, s{sT}")
    a(f"s_mul_i32 s{sT}, s{sT}, 3"); a(f"s_sub_u32 s{sT}, s{sCG}, s{sT}"); a(f"s_cmp_eq_u32 s{sT}, 2")
    a(f"s_cselect_b32 s{sLT}, {OOB:#x}, 0")
    a(f"s_and_b32 s{sTR}, s2, 7"); a(f"s_lshl_b32 s{sTR}, s{sTR}, 2"); a(f"s_bfe_u32 s{sT}, s2, 0x20003"); a(f"s_add_u32 s{sTR}, s{sTR}, s{sT}")
    a(f"s_lshr_b32 s{sTC}, s2, 5")
    a(f"s_lshl_b32 s{s1K}, s{sI}, 10")
    a(f"s_lshl_b32 s{sDo}, s{sI}, 14"); a(f"s_lshl_b32 s{sT}, s{sTC}, 7"); a(f"s_add_u32 s{sDo}, s{sDo}, s{sT}")
    if O.rot3:
        a(f"s_lshl_b32 s{sRo}, s{sTR}, 1"); a(f"s_add_u32 s{sRo}, s{sRo}, s{sTC}"); a(f"s_and_b32 s{sRo}, s{sRo}, 7")
    else: a(f"s_mov_b32 s{sRo}, 0")
    a(f"s_mul_i32 s{sH}, s{sRo}, 21"); a(f"s_lshr_b32 s{sH}, s{sH}, 3")
    a(f"s_lshl_b32 s{sH}, s{sH}, 16"); a(f"s_lshl_b32 s{sRo}, s{sRo}, 16")

_uid=[0]
def poll(a, vdst, vaddr, srd, soff, first_tag=None, expect=1):
    _uid[0]+=1; L=f"PL{_uid[0]}"
    if first_tag is not None:
        a.wait(vm=[first_tag])
        a(f"v_cmp_ne_u32 vcc, {expect}, v{vdst}")
        a(f"s_cbranch_vccz {L}_D")
    a(f"s_mov_b32 s{sT3}, {SPIN_MAX}")
    keep=list(a.vm)
    a.label(L)
    a(f"buffer_load_dword v{vdst}, v{vaddr}, {sr(srd,4)}, {soff} offen sc1")
    a("s_waitcnt vmcnt(0)")
    a(f"v_cmp_ne_u32 vcc, {expect}, v{vdst}")
    a(f"s_cbranch_vccz {L}_D")
    if O.sleep: a(f"s_sleep {O.sleep}")
    a(f"s_sub_u32 s{sT3}, s{sT3}, 1")
    a(f"s_cmp_lg_u32 s{sT3}, 0")
    a(f"s_cbranch_scc1 {L}")
    a.label(L+"_D")
    if first_tag is not None: a.vm=keep
def lds_poll(a, vaddr, vdst, expect):
    _uid[0]+=1; L=f"LP{_uid[0]}"
    a(f"s_mov_b32 s{sT3}, {SPIN_MAX}")
    a.label(L); a(f"ds_read_b32 v{vdst}, v{vaddr}"); a("s_waitcnt lgkmcnt(0)")
    a(f"v_cmp_ne_u32 vcc, {expect}, v{vdst}"); a(f"s_cbranch_vccz {L}_D"); a("s_sleep 1")
    a(f"s_sub_u32 s{sT3}, s{sT3}, 1"); a(f"s_cmp_lg_u32 s{sT3}, 0"); a(f"s_cbranch_scc1 {L}")
    a.label(L+"_D")

def signal(a, kind, vtmp, tag=None):
    a(f"s_lshl_b32 s{sT}, s{sRB}, 4"); a(f"s_add_u32 s{sT}, s{sT}, s{sCG}"); a(f"s_lshl_b32 s{sT}, s{sT}, 5")
    a(f"s_add_u32 s{sT}, s{sT}, s{sI}"); a(f"s_lshl_b32 s{sT}, s{sT}, 2"); a(f"s_add_u32 s{sT}, s{sT}, {WS_F+kind*32768}")
    a(f"v_mov_b32 v{vtmp}, 1")
    a("s_mov_b64 exec, 1")
    if tag: a.wait(vm=[tag])
    else: a("s_waitcnt vmcnt(0)")
    a(f"buffer_store_dword v{vtmp}, off, {sr(sWS,4)}, s{sT} sc1", "flag")
    a("s_mov_b64 exec, -1")

def w3_lane_dma(a, vD, vL, t0, t1):
    a(f"v_bfe_u32 v{t0}, v{vL}, 4, 1"); a(f"v_lshlrev_b32 v{t0}, 2, v{t0}")
    a(f"v_and_b32 v{t1}, 7, v{vL}"); a(f"v_xor_b32 v{t0}, v{t0}, v{t1}"); a(f"v_lshlrev_b32 v{t0}, 4, v{t0}")
    a(f"v_lshrrev_b32 v{t1}, 3, v{vL}"); a(f"v_lshl_add_u32 v{vD}, v{t1}, 10, v{t0}")
    a(f"v_add_u32 v{vD}, s{sDo}, v{vD}"); a(f"v_add_u32 v{vD+1}, 8192, v{vD}")

ROWS = list(range(28,39))+[6,13,20] + [0,1,2,3,4,5,7,8,9,10,11,12] + [14,15,16,17,18,19,21,22,23,24,25,26]
NRES=19; NT0=7; NA2=13; NREG=11; NS3=30
LOAD=[0,1,2,3,4,22,23, 5,6,7,8,9,10, 11,12,13,14,15,16, 17,18,19,20,21,24,25,26,27,28,29]
POS={n:p for p,n in enumerate(LOAD)}
def row_of(p,e): return ROWS[2*(p%NRES)+e]

def rot_off(a, n):
    if n<21: return [f"s_add_u32 s{sT2}, s{sH}, {n<<16}", f"s_add_u32 s{sT3}, s{sH}, {((n-21)<<16)&0xffffffff:#x}", f"s_min_u32 s{sT2}, s{sT2}, s{sT3}"]
    if n==21: return [f"s_and_b32 s{sT2}, s{sI}, 2", f"s_lshl_b32 s{sT2}, s{sT2}, 14", f"s_sub_u32 s{sT2}, {21<<16}, s{sT2}"]
    return [f"s_add_u32 s{sT2}, s{sRo}, {(n-22)<<16}", f"s_and_b32 s{sT2}, s{sT2}, {7<<16}"]
def w3_dma(a, p, vD, tag):
    n=LOAD[p]; R=sWD if n<22 else sWO
    a(f"s_add_u32 m0, s{s1K}, {row_of(p,0)*4096}")
    for o in rot_off(a,n): a(o)
    a(f"buffer_load_dwordx4 v{vD}, {sr(R,4)}, s{sT2} offen lds", tag)
    a(f"s_add_u32 m0, s{s1K}, {row_of(p,1)*4096}")
    a(f"buffer_load_dwordx4 v{vD+1}, {sr(R,4)}, s{sT2} offen lds", tag)

def final_reduce(a):
    vL,vA,vO,B = 1,2,6,16
    a(f"v_mbcnt_lo_u32_b32 v{vL}, -1, 0"); a(f"v_mbcnt_hi_u32_b32 v{vL}, -1, v{vL}")
    a(f"v_lshrrev_b32 v3, 3, v{vL}")
    a(f"v_bfe_u32 v4, v{vL}, 4, 1"); a(f"v_bfe_u32 v5, v{vL}, 3, 1"); a(f"v_lshl_or_b32 v4, v5, 1, v4")
    a(f"v_and_b32 v5, 4, v3"); a(f"v_or_b32 v4, v4, v5")
    a(f"v_and_b32 v5, 3, v{vL}"); a(f"v_lshlrev_b32 v5, 1, v5"); a(f"v_xor_b32 v4, v4, v5"); a(f"v_lshlrev_b32 v4, 4, v4")
    a(f"v_lshl_add_u32 v{vA}, v3, 7, v4")
    a(f"v_bfe_u32 v5, v{vL}, 2, 1"); a(f"v_lshl_add_u32 v{vA}, v5, 14, v{vA}")
    a(f"s_lshr_b32 s{sT}, s{sW}, 2"); a(f"s_lshl_b32 s{sT}, s{sT}, 15"); a(f"s_lshl_b32 s{sT2}, s{sI}, 12"); a(f"s_add_u32 s{sT}, s{sT}, s{sT2}")
    a(f"v_add_u32 v{vA}, s{sT}, v{vA}")
    a(f"v_and_b32 v5, 7, v{vL}"); a(f"v_lshlrev_b32 v5, 4, v5"); a(f"v_lshl_add_u32 v{vO}, v3, 10, v5")
    a(f"v_xor_b32 v{vA+1}, 16, v{vA}")
    a(f"s_lshl_b32 s{sT}, s{sTR}, 16"); a(f"s_lshl_b32 s{sT2}, s{sTC}, 7"); a(f"s_add_u32 s{sT}, s{sT}, s{sT2}")
    a(f"s_lshl_b32 s{sT2}, s{sW}, 13"); a(f"s_add_u32 s{sT}, s{sT}, s{sT2}")
    a("s_waitcnt lgkmcnt(0)"); a("s_barrier")
    stamp(a,13)
    for w in range(4):
        for hf in range(2):
            a(f"ds_read_b128 {vr(B+8*w+4*hf,4)}, v{vA+hf} offset:{w*1024}", ("rr",w))
    a.wait(lg=[("rr",1)])
    for r in range(0,8,2): a(f"v_pk_add_f32 {vr(B+r,2)}, {vr(B+r,2)}, {vr(B+8+r,2)}")
    a.wait(lg=[("rr",3)])
    for r in range(0,8,2): a(f"v_pk_add_f32 {vr(B+16+r,2)}, {vr(B+16+r,2)}, {vr(B+24+r,2)}")
    for r in range(0,8,2): a(f"v_pk_add_f32 {vr(B+r,2)}, {vr(B+r,2)}, {vr(B+16+r,2)}")
    for r in range(4): a(f"v_cvt_pk_bf16_f32 v{B+8+r}, v{B+2*r}, v{B+2*r+1}")
    aux=["",""," sc1"," nt"," sc0 sc1"][O.outaux+1] if O.outaux else ""
    a(f"buffer_store_dwordx4 {vr(B+8,4)}, v{vO}, {sr(sOUT,4)}, s{sT} offen{aux}", "out")
    stamp(a,14)
    stamp_flush(a,3)

def g_wave(a, mid):
    vSt,vXa,vTm,vTq,vT2 = 0,1,3,5,7
    WB,NW,ACC,XR = 12,5,32,128
    GF,GA,vGb,vGa = 80,88,92,93
    vC=4; vS2=3
    sJ,sSt,sK = sA,sB,sC
    t0,t1,vL = 12,13,14
    a(f"v_and_b32 v{vL}, 63, v0")
    if O.codepf:
        a(f"s_lshr_b32 s{sT}, s2, 3"); a(f"s_lshl_b32 s{sT}, s{sT}, 7"); a(f"s_lshl_b32 s{sT2}, s{sI}, 14"); a(f"s_add_u32 s{sT}, s{sT}, s{sT2}")
        a(f"v_lshl_add_u32 v{t0}, v{vL}, 12, s{sT}")
        a("s_mov_b64 exec, 15")
        a(f"global_load_dword v97, v{t0}, s[66:67]", "cpf")
        a("s_mov_b64 exec, -1")
    if O.warmx:
        a(f"s_cmp_ge_u32 s{sI}, 2"); a("s_cbranch_scc1 G_NOWX")
        a(f"s_cmp_eq_u32 s{sI}, 0"); a(f"s_cselect_b32 s{sT}, 64, 48"); a(f"s_mul_i32 s{sT}, s{sT}, s2"); a(f"s_lshl_b32 s{sT}, s{sT}, 7")
        a(f"v_lshl_add_u32 v{t0}, v{vL}, 7, s{sT}")
        a("s_waitcnt lgkmcnt(0)")
        a(f"s_cmp_eq_u32 s{sI}, 0")
        a(f"s_cselect_b32 s68, s{sX}, s{sWQ}"); a(f"s_cselect_b32 s69, s{sX+1}, s{sWQ+1}"); a(f"s_cselect_b32 s70, s{sX+2}, s{sWQ+2}"); a("s_mov_b32 s71, 0x20000")
        a(f"s_cselect_b32 exec_hi, -1, 0xffff")
        a(f"buffer_load_dword v96, v{t0}, s[68:71], 0 offen")
        a("s_mov_b32 exec_hi, -1")
        a.label("G_NOWX")
    late_srds(a); late_scalars(a)
    a(f"v_lshlrev_b32 v{vSt}, 4, v{vL}")
    a(f"v_and_b32 v{t0}, 31, v{vL}"); a(f"v_lshrrev_b32 v{t1}, 5, v{vL}")
    a(f"v_bfe_u32 v{vXa}, v{vL}, 1, 3"); a(f"v_xor_b32 v{vXa}, v{vXa}, v{t1}"); a(f"v_lshlrev_b32 v{vXa}, 4, v{vXa}")
    a(f"v_lshl_add_u32 v{vXa}, v{t0}, 7, v{vXa}")
    a(f"s_lshl_b32 s{sT}, s{sI}, 12"); a(f"v_add_u32 v{vXa}, s{sT}, v{vXa}"); a(f"v_add_u32 v{vXa+1}, {2*SLOT}, v{vXa}")
    a(f"v_lshrrev_b32 v{vGb}, 4, v{vL}"); a(f"v_xor_b32 v{vGb}, v{vGb}, v{vL}"); a(f"v_and_b32 v{vGb}, 1, v{vGb}")
    a(f"v_lshlrev_b32 v{vGb}, 10, v{vGb}"); a(f"v_lshl_add_u32 v{vGb}, v{t1}, 4, v{vGb}"); a(f"v_add_u32 v{vGb}, {L_GW}, v{vGb}")
    a(f"v_bfe_u32 v{t0}, v{vL}, 2, 2"); a(f"v_lshl_add_u32 v{t0}, v{t1}, 3, v{t0}"); a(f"v_lshlrev_b32 v{t0}, 6, v{t0}")
    a(f"v_and_b32 v{t1}, 3, v{vL}"); a(f"v_lshl_add_u32 v{t0}, v{t1}, 3, v{t0}")
    a(f"v_bfe_u32 v{t1}, v{vL}, 4, 1")
    a(f"v_lshl_add_u32 v{t0}, v{t1}, 5, v{t0}")
    a(f"v_add_u32 v{vTq}, 16384, v{t0}"); a(f"v_add_u32 v{vTq+1}, {16384+2*SLOT}, v{t0}")
    a(f"v_mul_u32_u24 v{t1}, 3072, v{t1}"); a(f"v_add_u32 v{vT2}, v{t0}, v{t1}")
    a(f"v_xor_b32 v{vT2+1}, 32, v{vT2}")
    a(f"v_add_u32 v{vT2+2}, {2*SLOT}, v{vT2}"); a(f"v_add_u32 v{vT2+3}, {2*SLOT}, v{vT2+1}")
    a(f"s_mul_i32 s{sJ}, s{sCG}, 3")
    a(f"v_cmp_ne_u32 s[64:65], 0, v{t1}")
    for r in (16,17,18,19): a(f"v_mov_b32 v{r}, 0")
    a(f"v_add_u32 v{t0}, {L_Z}, v{vSt}"); a(f"ds_write_b128 v{t0}, v[16:19]")
    a(f"v_mov_b32 v{t0}, {L_CNT}"); a(f"ds_write_b128 v{t0}, v[16:19]"); a(f"ds_write_b128 v{t0}, v[16:19] offset:16")
    a("s_waitcnt lgkmcnt(0)")
    a(f"s_lshl_b32 s{sT}, s{sCG}, 2"); a(f"s_add_u32 s72, s{sT}, s{sI}"); a(f"s_cmp_lg_u32 s72, 3"); a("s_cbranch_scc1 G_NOINIT")
    a(f"v_and_b32 v{t0}, 15, v{vL}"); a(f"v_lshrrev_b32 v{t1}, 4, v{vL}"); a(f"v_lshlrev_b32 v{t0}, 7, v{t0}"); a(f"v_lshl_add_u32 v{t0}, v{t1}, 15, v{t0}")
    a(f"s_lshl_b32 s{sT}, s{sRB}, 11"); a(f"s_add_u32 s{sT}, s{sT}, {WS_F}")
    a("s_mov_b32 exec_hi, 0xffff")
    a(f"buffer_store_dwordx4 v[16:19], v{t0}, {sr(sWS,4)}, s{sT} offen sc1")
    a("s_mov_b32 exec_hi, -1")
    a.label("G_NOINIT")
    if O.warm:
        a(f"s_cmp_eq_u32 s{sI}, 1"); a(f"s_cselect_b32 s68, s{sWU}, s{sWG}"); a(f"s_cselect_b32 s69, s{sWU+1}, s{sWG+1}")
        a(f"s_cmp_eq_u32 s{sI}, 2"); a(f"s_cselect_b32 s68, s{sWD}, s68"); a(f"s_cselect_b32 s69, s{sWD+1}, s69")
        a(f"s_mov_b32 s70, {1376*1024}")
        a(f"s_cmp_eq_u32 s{sI}, 3"); a(f"s_cselect_b32 s68, s{sWO}, s68"); a(f"s_cselect_b32 s69, s{sWO+1}, s69")
        a(f"s_cselect_b32 s70, {512*1024}, s70"); a("s_mov_b32 s71, 0x20000")
        a(f"s_mul_i32 s{sT}, s2, {43*128}")
        a(f"v_lshl_add_u32 v98, v{vL}, 7, s{sT}")
    def warm2():
        if O.warm:
            a(f"s_mov_b32 exec_hi, 0x7ff"); a(f"buffer_load_dword v99, v98, s[68:71], 0 offen"); a(f"s_mov_b32 exec_hi, -1")
    def g_publish():
        a(f"s_cmp_lg_u32 s72, 3"); a("s_cbranch_scc1 G_NOPUB")
        a(f"s_lshl_b32 s{sT}, s{sRB}, 2"); a("v_mov_b32 v100, 1"); a("s_mov_b64 exec, 1"); a("s_waitcnt vmcnt(0)")
        a(f"buffer_store_dword v100, off, {sr(sDBG,4)}, s{sT} sc1"); a("s_mov_b64 exec, -1")
        a.label("G_NOPUB")
    if O.wst<0: warm2()
    if O.probe==3:
        a(f"v_writelane_b32 v{vSTAMP}, s80, 0"); stamp(a,1,3)
    if O.prio: a("s_setprio 2")
    a(f"s_cmp_eq_u32 s{sCG}, 10"); a("s_cbranch_scc1 G_V1")
    a(f"s_cmp_gt_u32 s{sCG}, 10"); a("s_cbranch_scc1 G_V2")
    a("s_branch G_V0")
    mid()

    seq=[]
    for st in range(8):
        for j in range(4):
            for t in range(3): seq.append((st,j,t))
    for j in range(4):
        for u in (3,4,5): seq.append((8,j,u))
    for u in (0,1,2):
        for j in range(4): seq.append((8,j,u))
    for st in range(9,14):
        for j in range(4):
            for u in range(6): seq.append((st,j,u))
    MT=len(seq)
    for u in range(6):
        for st in (14,15):
            for j in range(4): seq.append((st,j,u))
    N=len(seq); AH=NW-1
    seen=set()
    def reads(m):
        if m>=N: return
        st,j,t=seq[m]; q=st&3; wb=WB+4*(m%NW); tg=("r",m)
        if st not in seen and st<15:
            seen.add(st)
            if st==14: a("s_waitcnt lgkmcnt(0)")
            if O.p0<=st<O.p0+4: stamp(a,1+3*(st-O.p0),1)
            a("s_barrier")
            if O.p0<=st<O.p0+4: stamp(a,2+3*(st-O.p0),1)
            if st in (0,1,8,9,14): stamp(a,{0:1,1:2,8:3,9:4,14:5}[st])
            if st<9: stamp(a,2+st,3)
            if st==14: stamp(a,1,4)
        if st<8:
            if t==0:
                k=st*4+j; tm=vTm+(k&1)
                if j: a(f"v_xor_b32 v{tm}, {32*j}, v{vXa+(q>>1)}")
                else:
                    a(f"s_add_u32 s{sK}, s{sPH}, {st}"); a(f"s_and_b32 s{sK}, s{sK}, 7"); a(f"s_lshl_b32 s{sK}, s{sK}, 7")
                    a(f"v_add_u32 v{vGa}, s{sK}, v{vGb}")
                a(f"ds_read_b128 {vr(XR+4*k,4)}, v{tm if j else vXa+(q>>1)} offset:{(q&1)*SLOT}", tg)
                a(f"ds_read_b128 {vr(GF+4*(k&1),4)}, v{vGa} offset:{j*32}", tg)
            for e in range(2):
                a(f"ds_read_b64_tr_b16 {vr(wb+2*e,2)}, v{vTq+(q>>1)} offset:{(q&1)*SLOT+(j*3+t)*1024+e*256}", tg)
        else:
            for e in range(2):
                a(f"ds_read_b64_tr_b16 {vr(wb+2*e,2)}, v{vT2+2*(q>>1)+(t&1)} offset:{(q&1)*SLOT+j*6144+(t>>1)*1024+e*256}", tg)
    def mfma(m, vmask):
        st,j,t=seq[m]; k=(st&7)*4+j; A=vr(ACC+16*t,16)
        W,X=vr(WB+4*(m%NW),4),vr(XR+4*k,4)
        a.wait(lg=[("r",m),("r",m+1)] if (O.w2 and m>=MT and m%2==0) else [("r",m)])
        if st<8 and t==0:
            a(f"{MF16} {vr(GA,4)}, {vr(GF+4*(k&1),4)}, {X}, {'0' if k==0 else vr(GA,4)}")
        p,q_=(X,W) if (st<8 and (vmask>>t)&1) else (W,X)
        a(f"{MF} {A}, {p}, {q_}, {'0' if k==0 else A}")
    def qkv_epi(vmask):
        ops=[]
        ops.append(f"s_lshl_b32 s{sT2}, s{sRB}, 2"); ops.append(f"s_add_u32 s{sT2}, s{sT2}, s{sI}")
        ops.append(f"s_lshl_b32 s{sSt}, s{sJ}, 17")
        for t in range(3):
            A=ACC+16*t; isv=(vmask>>t)&1
            ops.append(f"s_lshl_b32 s{sT}, s{sT2}, {11 if isv else 10}"); ops.append(f"s_add_u32 s{sT}, s{sT}, s{sSt}")
            if t: ops.append(f"s_add_u32 s{sT}, s{sT}, {t*131072}")
            for e in range(2):
                for r in range(4): ops.append(f"v_cvt_pk_bf16_f32 v{A+8*e+r}, v{A+8*e+2*r}, v{A+8*e+2*r+1}")
                if e and not isv: ops.append(f"s_add_u32 s{sT}, s{sT}, 65536")
                ops.append(f"buffer_store_dwordx4 {vr(A+8*e,4)}, v{vSt}, {sr(sWS,4)}, s{sT} offen offset:{1024 if (e and isv) else 0} sc1")
        return ops
    def g_ops():
        return [f"v_mul_f32 v{vC}, {f2u(LOG2E):#x}, v{vC}", f"v_exp_f32 v1, -v{vC}", f"v_exp_f32 v{vC}, v{vC}",
                f"v_add_f32 v1, 1.0, v1", f"v_add_f32 v{vC}, 1.0, v{vC}", f"v_rcp_f32 v1, v1", f"v_min_f32 v{vC}, {f2u(1e38):#x}, v{vC}",
                f"v_bfe_u32 v2, v{vSt}, 4, 5", f"s_lshl_b32 s{sT}, s{sI}, 7", f"s_add_u32 s{sT}, s{sT}, {L_G}",
                f"v_lshl_add_u32 v2, v2, 2, s{sT}", f"ds_write_b32 v2, v1", f"v_add_u32 v{vS2}, s{sLT}, v{vSt}"]
    M8=96; M9=120
    for vi,vmask in enumerate((0,4,7)):
        a.label(f"G_V{vi}")
        a.vm=[]; a.lg=[]; seen.clear()
        for m in range(AH): reads(m)
        epi=qkv_epi(vmask); gops=g_ops()
        slots={}; cur=[]; k=0; SS=[3,7,10,14,16,19]; prev=0
        for op in epi:
            cur.append(op)
            if op.startswith("buffer_store"):
                n=SS[k]-prev
                for i_,o in enumerate(cur): slots.setdefault(prev+1+(i_*n)//len(cur),[]).append(o)
                prev=SS[k]; k+=1; cur=[]
        for i_,o in enumerate(gops): slots.setdefault(20+i_//4,[]).append(o)
        for m in range(M9):
            if m==M8-6: a("s_waitcnt vmcnt(0)")
            if m==M8: a(f"v_cndmask_b32 v{vC}, v{GA}, v{GA+1}, s[64:65]")
            if m==12 and vi==0: g_publish()
            if m==12*O.wst+1: warm2()
            mfma(m,vmask); reads(m+AH)
            for op in slots.get(m-M8,[]): a(op,"st")
        if vi<2: a("s_branch G_P2")
    a.label("G_P2")
    T=XR
    def ffn_epi(n):
        A=ACC+16*n; ops=[]
        for h in range(2):
            R=range(4*h,4*h+4)
            for r in R: ops.append(f"v_mul_f32 v{T+r}, s74, v{A+r}")
            for r in R: ops.append(f"v_exp_f32 v{T+r}, v{T+r}"); ops.append(f"v_mul_f32 v{A+r}, v{A+r}, v{A+8+r}")
            for r in R: ops.append(f"v_fma_f32 v{T+r}, v{T+r}, v{vC}, v{vC}")
            for r in R: ops.append(f"v_rcp_f32 v{T+r}, v{T+r}")
            for r in R: ops.append(f"v_mul_f32 v{A+r}, v{A+r}, v{T+r}")
        for r in range(4): ops.append(f"v_cvt_pk_bf16_f32 v{A+8+r}, v{A+2*r}, v{A+2*r+1}")
        ops.append(f"buffer_store_dwordx4 {vr(A+8,4)}, v{vSt if n<4 else vS2}, {sr(sWS,4)}, s{sSt if n<4 else sD} offen offset:{(n&3)*1024} sc1")
        return ops
    for m in range(M9,N):
        mfma(m,0); reads(m+AH)
        if m==M9+O.qsig: signal(a,0,1)
        if m==MT:
            a(f"s_lshl_b32 s{sT}, s{sRB}, 2"); a(f"s_add_u32 s{sT}, s{sT}, s{sI}"); a(f"s_mul_i32 s{sSt}, s{sT}, {A3_TB}")
        if m==MT+1:
            a(f"s_lshl_b32 s{sT}, s{sSB}, 11"); a(f"s_add_u32 s{sSt}, s{sSt}, s{sT}"); a(f"s_add_u32 s{sSt}, s{sSt}, {WS_A3}")
            a(f"s_add_u32 s{sD}, s{sSt}, 4096"); a(f"s_mov_b32 s74, {f2u(-LOG2E):#x}")
        if m>=MT+8:
            u=(m-MT)//8-1; i=(m-MT)%8
            if i==0: stamp(a,2+u,4)
            if i>=1:
                ops=ffn_epi(u); per=-(-len(ops)//7)
                for op in ops[(i-1)*per:i*per]: a(op,"hst")
    stamp(a,6); stamp(a,7,4)
    vL,t0,t1=1,2,5
    vD,vF,vP,vR,vA = 6,8,9,12,18
    WB3,ACC3,AF,WR = 20,36,100,164; NA=O.NA; NF=22-NA
    sAo=sF
    a(f"v_lshrrev_b32 v{vL}, 4, v{vSt}")
    a(f"v_mov_b32 v{t0}, {L_CNT}"); a(f"v_mov_b32 v{t1}, 1")
    a("s_mov_b64 exec, 1"); a(f"ds_add_u32 v{t0}, v{t1}"); a("s_mov_b64 exec, -1")
    a(f"v_lshrrev_b32 v{t0}, 5, v{vL}"); a(f"v_bfe_u32 v{t1}, v{vL}, 2, 2"); a(f"v_lshl_add_u32 v{t0}, v{t0}, 2, v{t1}")
    a(f"v_lshlrev_b32 v{vR}, 7, v{t0}")
    a(f"v_bfe_u32 v{t0}, v{vL}, 3, 1"); a(f"v_lshl_add_u32 v{vR}, v{t0}, 6, v{vR}")
    a(f"v_bfe_u32 v{t0}, v{vL}, 4, 1"); a(f"v_lshl_add_u32 v{vR}, v{t0}, 5, v{vR}")
    a(f"v_and_b32 v{t0}, 3, v{vL}"); a(f"v_lshl_add_u32 v{vR}, v{t0}, 3, v{vR}")
    a(f"v_add_u32 v{vR}, s{s1K}, v{vR}"); a(f"v_add_u32 v{vR+2}, 65536, v{vR}"); a(f"v_add_u32 v{vR+4}, 131072, v{vR}")
    for g in range(3): a(f"v_xor_b32 v{vR+2*g+1}, 64, v{vR+2*g}")
    def rd3(n, wb):
        for cb in range(2):
            for q in range(2):
                r=row_of(n,q)
                a(f"ds_read_b64_tr_b16 {vr(wb+4*cb+2*q,2)}, v{vR+2*(r>>4)+cb} offset:{(r&15)*4096}", ("r",n))
    ops=ffn_epi(5)
    for i,op in enumerate(ops):
        a(op,"hst")
        if i%7==6 and i//7<NT0: rd3(i//7, WR+8*(i//7))
    stamp(a,7); stamp(a,8,4)
    w3_lane_dma(a,vD,vL,t0,t1)
    a("s_waitcnt lgkmcnt(0)")
    for n in range(NRES,NRES+O.early): w3_dma(a,n,vD,("w",n))
    a(f"v_and_b32 v{t0}, 15, v{vL}"); a(f"v_bfe_u32 v{t1}, v{vL}, 4, 1"); a(f"v_lshlrev_b32 v{t1}, 2, v{t1}")
    a(f"v_lshl_add_u32 v{vF}, v{t0}, 7, v{t1}")
    a(f"s_lshr_b32 s{sG_}, s{sTR}, 1"); a(f"s_lshl_b32 s{sG_}, s{sG_}, 11"); a(f"s_and_b32 s{sT}, s{sTR}, 1"); a(f"s_lshl_b32 s{sT}, s{sT}, 3")
    a(f"s_add_u32 s{sG_}, s{sG_}, s{sT}"); a(f"s_add_u32 s{sG_}, s{sG_}, {WS_F+32768}"); a(f"s_add_u32 s{sE}, s{sG_}, 32768")
    a(f"s_mul_i32 s{sAo}, s{sTR}, {2*A3_TB}"); a(f"s_add_u32 s{sAo}, s{sAo}, s{s1K}"); a(f"s_add_u32 s{sAo}, s{sAo}, {WS_A3}")
    a(f"v_add_u32 v{vA}, s{sAo}, v{vSt}"); a(f"v_add_u32 v{vA+1}, {A3_TB}, v{vA}")
    signal(a,1,t0,"hst")
    if O.prio2==1: a("s_setprio 0")
    stamp(a,8)
    a(f"v_mov_b32 v{t0}, {L_CNT}"); lds_poll(a,t0,t1,4)
    for n in list(range(NA2 if O.a2 else NT0,NRES))+list(range(NRES+O.early,NRES+NT0)):
        w3_dma(a,n,vD,("w",n))
        if O.thr3: a(f"s_waitcnt vmcnt({O.thr3})")
    if not O.a2: a.wait(vm=[("w",NREG-1)])
    a(f"s_lshl_b32 s{sT}, s{sI}, 2"); a(f"s_add_u32 s{sT}, s{sT}, {L_AF}"); a(f"v_mov_b32 v{t0}, s{sT}")
    if O.a2: lds_poll(a,t0,t1,1)
    for n in range(NT0,NREG): rd3(n, WR+8*n)
    if O.hpre: a(f"buffer_load_dword v{vP}, v{vF}, {sr(sWS,4)}, s{sG_} offen sc1", "hf")
    a("s_waitcnt lgkmcnt(0)")
    for n in range(NRES+NT0,NS3): w3_dma(a,n,vD,("w",n))
    stamp(a,9)
    poll(a,vP,vF,sWS,f"s{sG_}",first_tag="hf" if O.hpre else None)
    stamp(a,10)
    NR=NA+1; assert NR<=8
    def aload_ops(n):
        af=AF+8*(n%NR); ops=[(o,None) for o in rot_off(a,n)]
        ops.append((f"s_lshr_b32 s{sT2}, s{sT2}, 4",None))
        if n>=22: ops.append((f"s_add_u32 s{sT2}, s{sT2}, {86*1024}",None))
        for tb in range(2):
            ops.append((f"buffer_load_dwordx4 {vr(af+4*tb,4)}, v{vA+tb}, {sr(sWS,4)}, s{sT2} offen sc1", ("a",n)))
        return ops
    def aload(n):
        for o,t in aload_ops(n): a(o,t)
    def step3(n, sfx, loads):
        af=AF+8*(n%NR); wb=WR+8*POS[n] if POS[n]<NREG else WB3+8*(n&1)
        if n%2==0 and n<28: stamp(a,1+n//2,2)
        nxt = n+1<NS3 and POS[n+1]>=NREG
        a.wait(vm=[("a",n)]+([("w",POS[n+1])] if nxt else []), lg=[("r",POS[n])])
        al = aload_ops(n+NA) if (loads and n+NA<NS3) else []
        def mf(i):
            tb,cb=i>>1,i&1; A=ACC3+16*i
            a(f"{MF} {vr(A,16)}, {vr(wb+4*cb,4)}, {vr(af+4*tb,4)}, {'0' if n==0 else vr(A,16)}")
        if n==21:
            if nxt: rd3(POS[n+1], WB3+8*((n+1)&1))
            for o,t in al: a(o,t)
            a(f"s_cmp_ge_u32 s{sI}, 2"); a(f"s_cbranch_scc1 G_SK21{sfx}")
            for i in range(4): mf(i)
            a.label(f"G_SK21{sfx}")
            return
        mf(0)
        if nxt: rd3(POS[n+1], WB3+8*((n+1)&1))
        mf(1)
        for o,t in al[:-1]: a(o,t)
        mf(2)
        for o,t in al[-1:]: a(o,t)
        mf(3)
    for n in range(NA): aload(n)
    if O.prio2==2: a("s_setprio 0")
    for n in range(NF):
        step3(n,"",True)
        if n==NF-NA+1: a(f"buffer_load_dword v{vP}, v{vF}, {sr(sWS,4)}, s{sE} offen sc1", "of")
    a.wait(vm=["of"])
    a(f"v_cmp_ne_u32 vcc, 1, v{vP}"); a("s_cbranch_vccnz G_SLOW")
    vm0,lg0=list(a.vm),list(a.lg)
    for n in range(NF,22): step3(n,"",True)
    vm1,lg1=list(a.vm),list(a.lg)
    a.label("G_JOIN")
    stamp(a,11)
    for n in range(22,30): step3(n,"",True)
    stamp(a,12)
    vW=12
    a(f"v_bfe_u32 v{t0}, v{vL}, 1, 1"); a(f"v_and_b32 v{t1}, 1, v{vL}"); a(f"v_lshl_or_b32 v{t0}, v{t1}, 1, v{t0}")
    a(f"v_and_b32 v{t1}, 4, v{vL}"); a(f"v_or_b32 v{t0}, v{t0}, v{t1}")
    a(f"v_lshrrev_b32 v{t1}, 5, v{vL}"); a(f"v_xor_b32 v{t0}, v{t0}, v{t1}"); a(f"v_lshlrev_b32 v{t0}, 4, v{t0}")
    a(f"v_and_b32 v{t1}, 7, v{vL}"); a(f"v_lshl_add_u32 v{vW}, v{t1}, 7, v{t0}")
    a(f"v_bfe_u32 v{t1}, v{vL}, 3, 2"); a(f"v_lshl_add_u32 v{vW}, v{t1}, 12, v{vW}"); a(f"v_add_u32 v{vW}, s{s1K}, v{vW}")
    for q in range(1,4): a(f"v_xor_b32 v{vW+q}, {32*q}, v{vW}")
    for p in range(4):
        for q in range(4):
            a(f"ds_write_b128 v{vW+q}, {vr(ACC3+16*p+4*q,4)} offset:{p*16384}", "red")
    a("s_branch FINAL")
    a.label("G_SLOW")
    a.vm,a.lg=list(vm0),list(lg0)
    for n in range(NF,22): step3(n,"S",False)
    poll(a,vP,vF,sWS,f"s{sE}")
    for n in range(22,22+NA): aload(n)
    assert [t for t,_ in a.vm]==[t for t,_ in vm1] and [t for t,_ in a.lg]==[t for t,_ in lg1], (a.vm,vm1,a.lg,lg1)
    a("s_branch G_JOIN")

def a_wave(a, mid):
    vSt,vL,vVo,vT0,vT1,vM,vM2,vBig,vGt = 0,1,2,3,4,5,6,7,8
    vP=10
    MK=12; Q=20; KF=28; VF=68; SM=148; S0=164; S1=180; CM=196; O_=212; P=228; P2=236
    vX0,vX1,vWq,vWg,vWu,vWg2,vWu2,vD = 228,229,230,231,232,233,234,244
    vBig2=246
    sXo,sQo,sFo,sLx,sLq,sK,sIt,sSl = sA,sB,sC,sD,sE,sF,64,65
    a(f"v_and_b32 v{vL}, 63, v0")
    a(f"v_lshrrev_b32 v{vT0}, 3, v{vL}"); a(f"v_lshrrev_b32 v{vT1}, 4, v{vL}")
    a(f"v_and_b32 v{vX0}, 7, v{vL}"); a(f"v_xor_b32 v{vX0}, v{vX0}, v{vT1}"); a(f"v_lshlrev_b32 v{vX0}, 4, v{vX0}")
    a(f"v_lshl_add_u32 v{vX0}, v{vT0}, 10, v{vX0}")
    a(f"v_xor_b32 v{vX1}, 64, v{vX0}"); a(f"v_add_u32 v{vX1}, {8192-1024}, v{vX1}")
    a(f"v_lshrrev_b32 v{vT0}, 2, v{vL}"); a(f"v_and_b32 v{vT1}, 3, v{vL}")
    a(f"v_mul_u32_u24 v{vWq}, 3072, v{vT0}"); a(f"v_lshl_add_u32 v{vWq}, v{vT1}, 4, v{vWq}")
    a(f"s_lshl_b32 s{sXo}, s{sRB}, 2"); a(f"s_add_u32 s{sXo}, s{sXo}, s{sI}"); a(f"s_lshl_b32 s{sXo}, s{sXo}, 15")
    a(f"s_lshl_b32 s{sT}, s{sI}, 8"); a(f"s_add_u32 s{sT}, s{sT}, s{sCG}"); a(f"s_mul_i32 s{sQo}, s{sT}, 192")
    a(f"s_lshl_b32 s{sLx}, s{sI}, 12"); a(f"s_mul_i32 s{sLq}, s{sI}, 3072")
    a(f"s_mov_b32 s{sIt}, 0")
    a(f"v_lshlrev_b32 v{vSt}, 4, v{vL}")
    srd_tail(a,sGW,1024)
    if O.probe==3: a(f"{O.stamp} s[84:85]")
    a("s_waitcnt lgkmcnt(0)")
    if O.probe==3: a(f"{O.stamp} s[86:87]")
    def issue1(first=False, wfirst=False):
        a(f"s_add_u32 s{sK}, s{sPH}, s{sIt}"); a(f"s_and_b32 s{sK}, s{sK}, 7")
        a(f"s_and_b32 s{sSl}, s{sIt}, 3"); a(f"s_mul_i32 s{sSl}, s{sSl}, {SLOT}")
        def xpart():
            a(f"s_add_u32 m0, s{sLx}, s{sSl}")
            a(f"s_lshl_b32 s{sT}, s{sK}, 7"); a(f"s_add_u32 s{sT}, s{sT}, s{sXo}")
            if O.thr1 and not first: a(f"s_waitcnt vmcnt({O.thr1-1})")
            a(f"buffer_load_dwordx4 v{vX0}, {sr(sX,4)}, s{sT} offen lds")
            if O.probe==3 and first: a(f"{O.stamp} s[88:89]")
            a(f"buffer_load_dwordx4 v{vX1}, {sr(sX,4)}, s{sT} offen offset:1024 lds")
            a(f"s_add_u32 s{sT}, s{sT}, {16384-2048}")
            if O.thr1 and not first: a(f"s_waitcnt vmcnt({O.thr1-1})")
            a(f"buffer_load_dwordx4 v{vX0}, {sr(sX,4)}, s{sT} offen offset:2048 lds")
            a(f"buffer_load_dwordx4 v{vX1}, {sr(sX,4)}, s{sT} offen offset:3072 lds")
        def wpart():
            a(f"s_add_u32 s{sT}, s{sSl}, s{sLq}")
            a(f"s_mul_i32 s{sT2}, s{sK}, {64*3072}")
            for t in range(3):
                a(f"s_add_u32 m0, s{sT}, {16384+t*1024-t*64}")
                if t==0: a(f"s_add_u32 s{sT2}, s{sT2}, s{sQo}")
                if O.thr1 and not first: a(f"s_waitcnt vmcnt({O.thr1})")
                a(f"buffer_load_dwordx4 v{vWq}, {sr(sWQ,4)}, s{sT2} offen offset:{t*64} lds")
        if wfirst: wpart(); xpart()
        else: xpart(); wpart()
    def gw():
        a(f"s_mov_b32 m0, {L_GW}"); a(f"buffer_load_dwordx4 v{vSt}, {sr(sGW,4)}, 0 offen lds")
    if O.ord==0: gw(); issue1(True)
    elif O.ord==1: issue1(True); gw()
    else:
        sel = "s2" if O.ord==2 else f"s{sW}"; b0,b1 = (3,4) if O.ord==2 else (0,1)
        a(f"s_bitcmp1_b32 {sel}, {b0}"); a("s_cbranch_scc1 A_O1")
        issue1(True); gw(); a("s_branch A_O2")
        a.label("A_O1"); a.lg=[]
        a(f"s_bitcmp1_b32 {sel}, {b1}"); a("s_cbranch_scc1 A_O3"); gw(); a.label("A_O3")
        issue1(True,True); gw()
        a.label("A_O2")
    a(f"s_mov_b32 s{sIt}, 1")
    issue1()
    stamp(a,1)
    if O.probe==3:
        a(f"{O.stamp} s[90:91]"); a("s_waitcnt lgkmcnt(0)")
        for i in range(6): a(f"v_writelane_b32 v{vSTAMP}, s{80+2*i}, {i}")
    late_srds(a); late_scalars(a)
    a(f"v_mul_u32_u24 v{vWg}, 2752, v{vT0}"); a(f"v_xor_b32 v{vWu}, 2, v{vT1}")
    a(f"v_lshl_add_u32 v{vWu}, v{vWu}, 4, v{vWg}"); a(f"v_lshl_add_u32 v{vWg}, v{vT1}, 4, v{vWg}")
    a(f"v_add_u32 v{vWg2}, s{sLT}, v{vWg}"); a(f"v_add_u32 v{vWu2}, s{sLT}, v{vWu}")
    a(f"s_mul_i32 s{sFo}, s{sI}, {16*2752}"); a(f"s_lshl_b32 s{sT}, s{sSB}, 6"); a(f"s_add_u32 s{sFo}, s{sFo}, s{sT}")
    stamp(a,6,3)
    if O.aprio: a(f"s_setprio {O.aprio}")
    a.label("A_L1")
    a("s_waitcnt vmcnt(7)"); a("s_barrier")
    a(f"s_add_u32 s{sIt}, s{sIt}, 1"); a(f"s_cmp_ge_u32 s{sIt}, 8"); a("s_cbranch_scc1 A_P2")
    issue1()
    a("s_branch A_L1")
    mid()
    a.label("A_P2")
    a.lg=[]
    if O.probe==3: a("s_waitcnt lgkmcnt(0)")
    stamp(a,7,3)
    a.vm=[(("d",7),set())]*7
    a(f"s_lshl_b32 s{sLq}, s{sLq}, 1")
    def dmas(st):
        q=st&3; tg=("d",st)
        a(f"s_add_u32 s{sK}, s{sPH}, {st&7}"); a(f"s_and_b32 s{sK}, s{sK}, 7")
        a(f"s_mul_i32 s{sT2}, s{sK}, {64*2752}"); a(f"s_add_u32 s{sT2}, s{sT2}, s{sFo}")
        for m in range(2):
            for t in range(3):
                v=(vWu2 if m else vWg2) if t==2 else (vWu if m else vWg)
                a(f"s_add_u32 m0, s{sLq}, {q*SLOT+(m*3+t)*1024-t*64}")
                if O.thr2: a(f"s_waitcnt vmcnt({O.thr2})")
                a(f"buffer_load_dwordx4 v{v}, {sr(sWU if m else sWG,4)}, s{sT2} offen offset:{t*64} lds", tg)
    sQB,sKo,sVo,sN = sG_,sA,sB,sD
    korder=[8,0,7,6,5,4,3,2,1,9]
    def setup_attn(part):
        if part==0:
            w3_lane_dma(a,vD,vL,vM,vM2)
            a(f"s_and_b32 s{sT}, s{sI}, 1"); a(f"s_lshl_b32 s{sHead}, s{sCG}, 1"); a(f"s_add_u32 s{sHead}, s{sHead}, s{sT}")
            a(f"s_and_b32 s{sT2}, s{sI}, 2"); a(f"s_lshl_b32 s{sQB}, s{sRB}, 2"); a(f"s_add_u32 s{sQB}, s{sQB}, s{sT2}")
        if part==1:
            a(f"v_mov_b32 v{vGt}, 0x3f803f80"); a(f"v_mov_b32 v{vGt+1}, 0x3f803f80")
            for r in range(0,80,2):
                if r&4: a(f"v_mov_b64 {vr(VF+r,2)}, {vr(vGt,2)}")
        if part==2:
            a(f"v_and_b32 v{vT0}, 31, v{vL}")
            a(f"v_lshrrev_b32 v{vT1}, 5, v{vL}"); a(f"v_lshlrev_b32 v{vT1}, 2, v{vT1}"); a(f"v_sub_u32 v{vT0}, v{vT0}, v{vT1}")
            for r in range(16): a(f"v_cmp_le_i32 {sr(sM+2*r,2)}, {(r&3)+8*(r>>2)}, v{vT0}")
            a(f"v_mov_b32 v{vBig}, 0xffff"); a(f"v_mov_b32 v{vM}, 0xffff0000")
            for i in range(8):
                a(f"v_cndmask_b32 v{MK+i}, 0, v{vBig}, {sr(sM+4*i,2)}")
                a(f"v_cndmask_b32 v{vT1}, 0, v{vM}, {sr(sM+4*i+2,2)}")
                a(f"v_or_b32 v{MK+i}, v{MK+i}, v{vT1}")
            a(f"v_mov_b32 v{vBig}, {f2u(-1e30):#x}"); a(f"v_mov_b32 v{vBig2}, {f2u(2.0**60):#x}")
            a(f"v_and_b32 v{vVo}, 47, v{vL}"); a(f"v_lshlrev_b32 v{vVo}, 4, v{vVo}")
            a(f"v_and_b32 v{vT1}, 16, v{vL}"); a(f"v_lshl_add_u32 v{vVo}, v{vT1}, 6, v{vVo}")
        if part==3:
            a(f"v_and_b32 v{vT0}, 15, v{vL}"); a(f"v_min_u32 v{vT0}, 9, v{vT0}")
            a(f"v_and_b32 v{vT1}, 1, v{vL}"); a(f"v_or_b32 v{vT1}, 8, v{vT1}")
            a(f"v_cmp_le_u32 vcc, 32, v{vL}"); a(f"v_cndmask_b32 v{vT0}, v{vT0}, v{vT1}, vcc")
            a(f"s_sub_u32 s{sT}, s{sQB}, 8"); a(f"v_add_u32 v{vT0}, s{sT}, v{vT0}"); a(f"v_max_i32 v{vT0}, 0, v{vT0}")
            a(f"v_add_u32 v{vT1}, 16, v{vL}"); a(f"v_and_b32 v{vT1}, 48, v{vT1}"); a(f"v_cndmask_b32 v{vT1}, v{vT1}, 0, vcc")
            a(f"v_add_u32 v{vT1}, s{sCG}, v{vT1}"); a(f"v_mul_u32_u24 v{vT1}, 43, v{vT1}"); a(f"v_lshrrev_b32 v{vT1}, 7, v{vT1}")
            a(f"v_lshrrev_b32 v{vM}, 2, v{vT0}"); a(f"v_lshl_add_u32 v{vT1}, v{vM}, 4, v{vT1}"); a(f"v_lshlrev_b32 v{vT1}, 7, v{vT1}")
            a(f"v_and_b32 v{vT0}, 3, v{vT0}"); a(f"v_lshl_add_u32 v{vM2}, v{vT0}, 2, v{vT1}")
            a(f"s_lshl_b32 s{sKo}, s{sHead}, 16")
            a(f"s_and_b32 s{sT}, s{sI}, 1"); a(f"s_lshl_b32 s{sT}, s{sT}, 8")
            a(f"s_lshl_b32 s{sVo}, s{sCG}, 17"); a(f"s_add_u32 s{sVo}, s{sVo}, s{sT}"); a(f"s_add_u32 s{sVo}, s{sVo}, {WS_V}")
            a(f"s_mov_b32 s{sN}, {WS_F}")
        if part==4:
            a(f"v_and_b32 v{vT1}, 31, v{vL}"); a(f"s_and_b32 s{sT}, s{sI}, 2"); a(f"s_lshl_b32 s{sT}, s{sT}, 7"); a(f"s_add_u32 s{sT}, s{sT}, {L_G}")
            a(f"v_lshl_add_u32 v{vT1}, v{vT1}, 2, s{sT}")
            for u in range(2): a(f"ds_read_b32 v{vGt+u}, v{vT1} offset:{u*128}")
            a("s_waitcnt lgkmcnt(0)")
    def attn(fast):
        for u in range(2):
            Qr=vr(Q+4*u,4); nd=8+u; no=u
            K_=lambda n: vr(KF+4*n,4)
            a(f"s_add_u32 s{sN}, s{sQB}, {u}")
            a.wait(vm=[("k",n) for n in range(10)])
            if u==0: stamp(a,7)
            a(f"{MF} {vr(S0,16)}, {K_(nd)}, {Qr}, 0")
            a(f"{MF} {vr(S1,16)}, {K_(no)}, {Qr}, 0")
            bufs=[CM,O_,S0,S1]
            def smf(d, c="0", buf=None): a(f"{MF} {vr(buf,16)}, {K_(nd-d)}, {Qr}, {c}")
            smf(1,buf=bufs[0]); smf(2,buf=bufs[1])
            if not fast:
                a(f"s_cmp_ge_u32 s{sN}, 8"); a(f"s_cbranch_scc1 AT_OLD{u}")
                for r in range(16): a(f"v_mov_b32 v{S1+r}, v{vBig}")
                a.label(f"AT_OLD{u}")
            for r in range(16): a(f"v_cndmask_b32 v{SM+r}, v{S1+r}, v{S0+r}, {sr(sM+2*r,2)}")
            a(f"v_max3_f32 v{vM}, v{SM}, v{SM+1}, v{SM+2}")
            a(f"v_max3_f32 v{vM2}, v{SM+3}, v{SM+4}, v{SM+5}")
            for r in range(6,16,4):
                a(f"v_max3_f32 v{vM}, v{vM}, v{SM+r}, v{SM+r+1}")
                if r+2<16: a(f"v_max3_f32 v{vM2}, v{vM2}, v{SM+r+2}, v{SM+r+3}")
            for d in range(1,8):
                if not fast: a(f"s_cmp_lt_u32 s{sN}, {d}"); a(f"s_cbranch_scc1 AT_MX{u}")
                if d+2<8: smf(d+2,buf=bufs[(d+1)%4])
                b=bufs[(d-1)%4]
                for r in range(0,16,4):
                    a(f"v_max3_f32 v{vM}, v{vM}, v{b+r}, v{b+r+1}")
                    a(f"v_max3_f32 v{vM2}, v{vM2}, v{b+r+2}, v{b+r+3}")
            if not fast: a.label(f"AT_MX{u}")
            a(f"v_max_f32 v{vM}, v{vM}, v{vM2}")
            a(f"v_mov_b32 v{vM2}, v{vM}")
            if u==0:
                a(f"s_lshl_b32 s{sT}, s{sI}, 2"); a(f"s_add_u32 s{sT}, s{sT}, {L_AF}"); a(f"v_mov_b32 v{vT0}, s{sT}"); a(f"v_mov_b32 v{vT1}, 1")
                a("s_waitcnt vmcnt(0)"); a(f"ds_write_b32 v{vT0}, v{vT1}")
            a(f"v_permlane32_swap_b32 v{vM}, v{vM2}")
            a(f"v_max_f32 v{vM}, v{vM}, v{vM2}")
            a(f"v_sub_f32 v{CM}, 0, v{vM}")
            a(f"v_mov_b32 v{CM+1}, v{CM}")
            for r in range(2,16,2): a(f"v_mov_b64 {vr(CM+r,2)}, {vr(CM,2)}")
            sb=[S0,S1]
            a(f"v_sub_f32 v{SM}, v{SM}, v{vM}"); a(f"v_sub_f32 v{SM+1}, v{SM+1}, v{vM}")
            smf(1,vr(CM,16),sb[1])
            for r in range(2,16): a(f"v_sub_f32 v{SM+r}, v{SM+r}, v{vM}")
            for r in range(16): a(f"v_exp_f32 v{SM+r}, v{SM+r}")
            for r in range(8): a(f"v_cvt_pk_bf16_f32 v{P2+r}, v{SM+2*r}, v{SM+2*r+1}")
            for r in range(8): a(f"v_and_b32 v{P+r}, v{P2+r}, v{MK+r}")
            a(f"{MF} {vr(O_,16)}, {vr(VF+8*nd,4)}, {vr(P,4)}, 0")
            for r in range(4): a(f"v_xor_b32 v{P2+r}, v{P2+r}, v{P+r}")
            a(f"{MF} {vr(O_,16)}, {vr(VF+8*nd+4,4)}, {vr(P+4,4)}, {vr(O_,16)}")
            for r in range(4,8): a(f"v_xor_b32 v{P2+r}, v{P2+r}, v{P+r}")
            pend=[f"{MF} {vr(O_,16)}, {vr(VF+8*no,4)}, {vr(P2,4)}, {vr(O_,16)}", f"{MF} {vr(O_,16)}, {vr(VF+8*no+4,4)}, {vr(P2+4,4)}, {vr(O_,16)}"]
            for x in pend: a(x)
            for d in range(1,8):
                if not fast: a(f"s_cmp_lt_u32 s{sN}, {d}"); a(f"s_cbranch_scc1 AT_FIN{u}")
                b=sb[d&1]; pb=P if d&1 else P2; n=nd-d
                for r in range(4): a(f"v_exp_f32 v{b+r}, v{b+r}")
                if d+1<8: smf(d+1,vr(CM,16),sb[(d+1)&1])
                for r in range(4,9): a(f"v_exp_f32 v{b+r}, v{b+r}")
                for r in range(4): a(f"v_cvt_pk_bf16_f32 v{pb+r}, v{b+2*r}, v{b+2*r+1}")
                for r in range(9,11): a(f"v_exp_f32 v{b+r}, v{b+r}")
                a(f"{MF} {vr(O_,16)}, {vr(VF+8*n,4)}, {vr(pb,4)}, {vr(O_,16)}")
                for r in range(11,16): a(f"v_exp_f32 v{b+r}, v{b+r}")
                for r in range(4,8): a(f"v_cvt_pk_bf16_f32 v{pb+r}, v{b+2*r}, v{b+2*r+1}")
                a(f"{MF} {vr(O_,16)}, {vr(VF+8*n+4,4)}, {vr(pb+4,4)}, {vr(O_,16)}")
            if not fast: a.label(f"AT_FIN{u}")
            a(f"s_mul_i32 s{sT}, s{sN}, {A3_TB}"); a(f"s_lshl_b32 s{sT2}, s{sHead}, 10"); a(f"s_add_u32 s{sT}, s{sT}, s{sT2}")
            a(f"s_add_u32 s{sT}, s{sT}, {WS_A3+86*1024}")
            a(f"v_rcp_f32 v{vT0}, v{O_+8}")
            a(f"v_mul_f32 v{vT0}, v{vT0}, v{vGt+u}")
            for r in range(8): a(f"v_mul_f32 v{O_+r}, v{O_+r}, v{vT0}")
            for r in range(4): a(f"v_cvt_pk_bf16_f32 v{SM+r}, v{O_+2*r}, v{O_+2*r+1}")
            a(f"buffer_store_dwordx4 {vr(SM,4)}, v{vSt}, {sr(sWS,4)}, s{sT} offen sc1", "ost")
            stamp(a,8+u)
    def attn_fast():
        K_=lambda n: vr(KF+4*n,4)
        sb=[S0,S1]; sOv=96 if not O.stamp else 2
        sOv=94
        sOv=0
        def edge_mf(u):
            a(f"{MF} {vr(S0,16)}, {K_(8+u)}, {vr(Q+4*u,4)}, 0")
            a(f"{MF} {vr(SM,16)}, {K_(u)}, {vr(Q+4*u,4)}, 0")
        def smf(u,d): a(f"{MF} {vr(sb[d&1],16)}, {K_(8+u-d)}, {vr(Q+4*u,4)}, {vr(CM,16)}")
        def head(u):
            for r in range(16): a(f"v_cndmask_b32 v{SM+r}, v{SM+r}, v{S0+r}, {sr(sM+2*r,2)}")
            a(f"v_max3_f32 v{vM}, v{SM}, v{SM+1}, v{SM+2}")
            a(f"v_max3_f32 v{vM2}, v{SM+3}, v{SM+4}, v{SM+5}")
            a(f"v_max3_f32 v{vM}, v{vM}, v{SM+6}, v{SM+7}"); a(f"v_max3_f32 v{vM2}, v{vM2}, v{SM+8}, v{SM+9}")
            a(f"v_max3_f32 v{vM}, v{vM}, v{SM+10}, v{SM+11}"); a(f"v_max3_f32 v{vM2}, v{vM2}, v{SM+12}, v{SM+13}")
            a(f"v_max3_f32 v{vM}, v{vM}, v{SM+14}, v{SM+15}")
            a(f"v_max_f32 v{vM}, v{vM}, v{vM2}")
            a(f"v_mov_b32 v{vM2}, v{vM}")
            a(f"s_mul_i32 s{sT}, s{sQB}, {A3_TB}"); a(f"s_lshl_b32 s{sT2}, s{sHead}, 10")
            a(f"v_permlane32_swap_b32 v{vM}, v{vM2}")
            a(f"v_max_f32 v{vM}, v{vM}, v{vM2}")
            a(f"v_sub_f32 v{CM}, 0, v{vM}")
            a(f"v_sub_f32 v{CM+1}, 0, v{vM}")
            for r in range(2,16,2): a(f"v_mov_b64 {vr(CM+r,2)}, {vr(CM,2)}")
            a(f"v_sub_f32 v{SM}, v{SM}, v{vM}"); a(f"v_sub_f32 v{SM+1}, v{SM+1}, v{vM}")
            smf(u,1)
        def fin(u):
            a(f"s_add_u32 s{sT}, s{sT}, s{sT2}"); a(f"s_add_u32 s{sT}, s{sT}, {WS_A3+86*1024+u*A3_TB}")
            a(f"v_rcp_f32 v{vT0}, v{O_+8}")
            a(f"v_cmp_ngt_f32 {'vcc' if u else sr(sOv,2)}, v{vBig2}, v{O_+8}")
            a(f"v_mul_f32 v{vT0}, v{vT0}, v{vGt+u}")
            for r in range(8): a(f"v_mul_f32 v{O_+r}, v{O_+r}, v{vT0}")
            for r in range(4): a(f"v_cvt_pk_bf16_f32 v{P+r}, v{O_+2*r}, v{O_+2*r+1}")
            a(f"buffer_store_dwordx4 {vr(P,4)}, v{vSt}, {sr(sWS,4)}, s{sT} offen sc1", "ost")
            stamp(a,8+u)
        def body(u):
            nd=8+u; no=u
            for r in range(2,16): a(f"v_sub_f32 v{SM+r}, v{SM+r}, v{vM}")
            for r in range(16): a(f"v_exp_f32 v{SM+r}, v{SM+r}")
            for r in range(8): a(f"v_cvt_pk_bf16_f32 v{P2+r}, v{SM+2*r}, v{SM+2*r+1}")
            for r in range(6): a(f"v_and_b32 v{P+r}, v{P2+r}, v{MK+r}")
            a(f"{MF} {vr(O_,16)}, {vr(VF+8*nd,4)}, {vr(P,4)}, 0")
            for r in range(6,8): a(f"v_and_b32 v{P+r}, v{P2+r}, v{MK+r}")
            for r in range(4): a(f"v_xor_b32 v{P2+r}, v{P2+r}, v{P+r}")
            a(f"{MF} {vr(O_,16)}, {vr(VF+8*nd+4,4)}, {vr(P+4,4)}, {vr(O_,16)}")
            for r in range(4,8): a(f"v_xor_b32 v{P2+r}, v{P2+r}, v{P+r}")
            pend=[f"{MF} {vr(O_,16)}, {vr(VF+8*no,4)}, {vr(P2,4)}, {vr(O_,16)}", f"{MF} {vr(O_,16)}, {vr(VF+8*no+4,4)}, {vr(P2+4,4)}, {vr(O_,16)}"]
            for d in range(1,8):
                b=sb[d&1]; pb=P if d&1 else P2; n=nd-d
                for r in range(1): a(f"v_exp_f32 v{b+r}, v{b+r}")
                if len(pend)>1: a(pend.pop(0))
                for r in range(1,4): a(f"v_exp_f32 v{b+r}, v{b+r}")
                a(pend.pop(0))
                for r in range(4,8): a(f"v_exp_f32 v{b+r}, v{b+r}")
                if d<7: smf(u,d+1)
                elif u==0: a(f"{MF} {vr(S0,16)}, {K_(9)}, {vr(Q+4,4)}, 0")
                a(f"v_exp_f32 v{b+8}, v{b+8}")
                for r in range(4): a(f"v_cvt_pk_bf16_f32 v{pb+r}, v{b+2*r}, v{b+2*r+1}")
                for r in range(9,11): a(f"v_exp_f32 v{b+r}, v{b+r}")
                a(f"{MF} {vr(O_,16)}, {vr(VF+8*n,4)}, {vr(pb,4)}, {vr(O_,16)}")
                for r in range(11,14): a(f"v_exp_f32 v{b+r}, v{b+r}")
                if d==7 and u==0: a(f"{MF} {vr(SM,16)}, {K_(1)}, {vr(Q+4,4)}, 0")
                for r in range(14,16): a(f"v_exp_f32 v{b+r}, v{b+r}")
                for r in range(4,8): a(f"v_cvt_pk_bf16_f32 v{pb+r}, v{b+2*r}, v{b+2*r+1}")
                pend=[f"{MF} {vr(O_,16)}, {vr(VF+8*n+4,4)}, {vr(pb+4,4)}, {vr(O_,16)}"]
            a(pend.pop(0))
        a.wait(vm=[("k",n) for n in range(10)])
        stamp(a,7)
        edge_mf(0)
        vswap(range(0,4))
        head(0)
        vswap(range(4,10))
        a2flag()
        body(0)
        head(1)
        fin(0)
        a(f"s_mul_i32 s{sT}, s{sQB}, {A3_TB}")
        body(1)
        fin(1)
        a(f"s_or_b64 vcc, vcc, {sr(sOv,2)}")
        if O.forceslow: a("s_branch AT_SLOW2")
        else: a("s_cbranch_scc1 AT_SLOW2")
    def vswap(ns):
        a.wait(vm=[("v",n) for n in range(10)])
        for n in ns:
            for r in range(4): a(f"v_permlane16_swap_b32 v{VF+8*n+r}, v{VF+8*n+4+r}")
    def a2flag():
        a(f"s_lshl_b32 s{sT3}, s{sI}, 2"); a(f"s_add_u32 s{sT3}, s{sT3}, {L_AF}"); a(f"v_mov_b32 v{vT0}, s{sT3}"); a(f"v_mov_b32 v{vT1}, 1")
        a("s_waitcnt vmcnt(0)"); a(f"ds_write_b32 v{vT0}, v{vT1}")
    t0sched={9:[0],10:[1],11:[2],12:[3,4],13:[5],14:[6]}
    a(f"v_and_b32 v{vBig}, 15, v{vL}"); a(f"v_lshlrev_b32 v{vBig}, 2, v{vBig}")
    for it in range(8,16):
        k=it-1
        if it==8: a(f"buffer_load_dword v{vP}, v{vBig}, {sr(sDBG,4)}, 0 offen sc1", "init")
        dmas(it)
        if it==15: a(f"buffer_load_dword v{vP}, v{vM2}, {sr(sWS,4)}, s{sN} offen sc1", "qf")
        if it==8: setup_attn(0)
        for n in t0sched.get(it,[]):
            if O.thr2: a(f"s_waitcnt vmcnt({max(O.thr2-1,0)})")
            if O.t0: w3_dma(a,n,vD,("t0",n))
        if O.p0<=k-1<O.p0+4: stamp(a,3+3*(k-1-O.p0),1)
        if it in (10,11,12,13): setup_attn(it-9)
        a.wait(vm=[("d",k)] if it<15 else [("d",15)])
        if it==9: poll(a,vP,vBig,sDBG,"0",first_tag="init")
        if O.p0<=k<O.p0+4: stamp(a,1+3*(k-O.p0),1)
        a("s_barrier")
        if O.p0<=k<O.p0+4: stamp(a,2+3*(k-O.p0),1)
        if k in (8,14): stamp(a,{8:3,14:4}[k])
    if O.aprio: a("s_setprio 0")
    poll(a,vP,vM2,sWS,f"s{sN}",first_tag="qf")
    stamp(a,5)
    a(f"s_lshl_b32 s{sT}, s{sQB}, 10"); a(f"s_add_u32 s{sT}, s{sT}, s{sKo}")
    for u in range(2): a(f"buffer_load_dwordx4 {vr(Q+4*u,4)}, v{vSt}, {sr(sWS,4)}, s{sT} offen offset:{u*1024} sc1", ("q",u))
    a(f"s_add_u32 s{sKo}, s{sKo}, {WS_K}")
    for n in korder:
        a(f"s_add_i32 s{sT}, s{sQB}, {n-8}"); a(f"s_max_i32 s{sT}, s{sT}, 0"); a(f"s_lshl_b32 s{sT}, s{sT}, 10"); a(f"s_add_u32 s{sT}, s{sT}, s{sKo}")
        a(f"buffer_load_dwordx4 {vr(KF+4*n,4)}, v{vSt}, {sr(sWS,4)}, s{sT} offen sc1", ("k",n))
        if O.thr: a(f"s_waitcnt vmcnt({O.thr})")
    for n in korder:
        a(f"s_add_i32 s{sT}, s{sQB}, {n-8}"); a(f"s_max_i32 s{sT}, s{sT}, 0"); a(f"s_lshl_b32 s{sT}, s{sT}, 11"); a(f"s_add_u32 s{sT}, s{sT}, s{sVo}")
        a(f"buffer_load_dwordx4 {vr(VF+8*n,4)}, v{vVo}, {sr(sWS,4)}, s{sT} offen sc1", ("v",n))
        if O.thr: a(f"s_waitcnt vmcnt({O.thr})")
    for n in range(NT0,NA2):
        if O.a2: w3_dma(a,n,vD,("a2",n))
        if O.thr: a(f"s_waitcnt vmcnt({O.thr})")
    stamp(a,6)
    if O.prio2: a("s_setprio 1")
    a.wait(vm=[("q",1)])
    for r in range(8):
        a(f"v_lshlrev_b32 v{S0+2*r}, 16, v{Q+r}"); a(f"v_and_b32 v{S0+2*r+1}, 0xffff0000, v{Q+r}")
    for r in range(16): a(f"v_mul_f32 v{S0+r}, {f2u(0.25*LOG2E):#x}, v{S0+r}")
    for r in range(8): a(f"v_cvt_pk_bf16_f32 v{Q+r}, v{S0+2*r}, v{S0+2*r+1}")
    a(f"s_cmp_lt_u32 s{sQB}, 8"); a("s_cbranch_scc1 AT_SLOW")
    vm0=list(a.vm)
    attn_fast()
    a.label("AT_DONE")
    signal(a,2,vT0)
    stamp(a,10)
    def slow():
        a.label("AT_SLOW"); a.vm=list(vm0); a.lg=[]
        vswap(range(10))
        a.label("AT_SLOW2")
        attn(False); a("s_branch AT_DONE")
    return slow

def kernel():
    a=Asm()
    if O.probe==3: a(f"{O.stamp} s[80:81]")
    a("s_getpc_b64 s[66:67]")
    a(f"s_load_dwordx2 {sr(sX,2)}, s[0:1], 0"); a(f"s_load_dwordx2 {sr(sWQ,2)}, s[0:1], 8")
    a("s_cmp_ge_u32 s2, 256"); a("s_cbranch_scc1 END")
    a("v_lshrrev_b32 v1, 6, v0")
    for d,off in ((sGW,56),(sWS,80),(sDBG,72),(sWG,32),(sWU,40),(sWD,48),(sWO,16),(sOUT,64)):
        a(f"s_load_dwordx2 {sr(d,2)}, s[0:1], {off}")
    if O.stamp:
        a(f"v_mov_b32 v{vSTAMP}, 0")
        if O.probe!=3: stamp(a,0)
        else: a(f"{O.stamp} s[82:83]")
    a(f"v_readfirstlane_b32 s{sW}, v1")
    srd_tail(a,sX,2*MB); srd_tail(a,sWQ,512*3072)
    a(f"s_bfe_u32 s{sRB}, s2, 0x10002"); a(f"s_lshl_b32 s{sRB}, s{sRB}, 3")
    a(f"s_bfe_u32 s{sT}, s2, 0x30003"); a(f"s_add_u32 s{sRB}, s{sRB}, s{sT}")
    a(f"s_and_b32 s{sCG}, s2, 3"); a(f"s_lshl_b32 s{sCG}, s{sCG}, 2")
    a(f"s_lshr_b32 s{sT}, s2, 6"); a(f"s_add_u32 s{sCG}, s{sCG}, s{sT}")
    if O.rot==1:
        a(f"s_lshl_b32 s{sPH}, s{sT}, 1"); a(f"s_add_u32 s{sPH}, s{sPH}, s{sRB}"); a(f"s_and_b32 s{sT}, s2, 1"); a(f"s_add_u32 s{sPH}, s{sPH}, s{sT}")
    elif O.rot==2:
        a(f"s_add_u32 s{sPH}, s{sT}, s{sRB}"); a(f"s_lshl_b32 s{sPH}, s{sPH}, 2")
    elif O.rot==3:
        a(f"s_add_u32 s{sPH}, s{sT}, s{sRB}"); a(f"s_lshl_b32 s{sPH}, s{sPH}, 1")
    elif O.rot==4:
        a(f"s_and_b32 s{sPH}, s2, 7")
    elif O.rot==5:
        a(f"s_add_u32 s{sPH}, s{sT}, s{sRB}"); a(f"s_lshl_b32 s{sPH}, s{sPH}, 2"); a(f"s_and_b32 s{sT}, s2, 3"); a(f"s_add_u32 s{sPH}, s{sPH}, s{sT}")
    else: a(f"s_mov_b32 s{sPH}, 0")
    a(f"s_and_b32 s{sI}, s{sW}, 3")
    if O.tlb:
        a(f"s_cmp_ge_u32 s{sW}, 4"); a("s_cbranch_scc1 A_WAVE")
        lg0=list(a.lg)
        a("s_waitcnt lgkmcnt(0)")
        a.check_pending=False
        for d in (sWQ,sX,sGW,sWG,sWU,sWD,sWO,sOUT,sDBG): a(f"s_load_dword s73, {sr(d,2)}, 0")
        a(f"s_lshl_b32 s{sT}, s{sI}, 22")
        a(f"s_load_dword s73, {sr(sWS,2)}, s{sT}"); a(f"s_add_u32 s{sT}, s{sT}, {2*MB}"); a(f"s_load_dword s73, {sr(sWS,2)}, s{sT}")
        a.check_pending=True
        lg=list(a.lg)
        a("s_branch G_WAVE")
        a.label("A_WAVE"); a.lg=lg0
    else:
        a(f"s_cmp_lt_u32 s{sW}, 4"); a("s_cbranch_scc1 G_WAVE")
        lg=list(a.lg)
    import threading
    ev={"g":threading.Semaphore(0),"a":threading.Semaphore(0)}
    err=[]
    def g_thread():
        try:
            ev["g"].acquire()
            a.label("G_WAVE"); a.vm=[]; a.lg=list(lg)
            def mid(): ev["a"].release(); ev["g"].acquire()
            g_wave(a,mid)
        except BaseException as e: err.append(e)
        finally: ev["a"].release()
    th=threading.Thread(target=g_thread,daemon=True); th.start()
    def amid(): ev["g"].release(); ev["a"].acquire()
    slow=a_wave(a,amid)
    a.label("FINAL")
    final_reduce(a)
    a.label("END")
    a("s_endpgm")
    slow()
    ev["g"].release(); th.join()
    if err: raise err[0]
    return a

PROMO=("v_exp_f32","v_rcp_f32","v_mul_f32","v_add_f32","v_sub_f32","v_and_b32","v_xor_b32","v_or_b32","v_mov_b32","v_max_f32","v_lshlrev_b32","v_mov_b64","v_add_u32","v_lshrrev_b32","v_min_f32")
def align_pass(a):
    import subprocess, re, os, tempfile
    d=tempfile.mkdtemp()
    open(d+"/a.s","w").write('.amdgcn_target "amdgcn-amd-amdhsa--gfx950"\n.text\nK:\n'+a.text())
    subprocess.run(["clang","-x","assembler","-target","amdgcn-amd-amdhsa","-mcpu=gfx950","-c",d+"/a.s","-o",d+"/a.o"],check=True)
    dis=subprocess.run(["llvm-objdump","-d","--mcpu=gfx950",d+"/a.o"],capture_output=True,text=True).stdout
    sizes=[4*len(m.group(1).split()) for m in re.finditer(r"// [0-9A-F]{12}: ((?:[0-9A-F]{8} ?)+)",dis)]
    idx=[i for i,l in enumerate(a.out) if l.startswith("  ") and not l.startswith("  ;")]
    assert len(idx)==len(sizes),(len(idx),len(sizes))
    off=0; cand=None; n=0; bad=0
    for i,sz in zip(idx,sizes):
        mn=a.out[i].split()[0]
        if sz>=8:
            if off%8==4:
                if cand is not None:
                    m2=a.out[cand].split()[0]; a.out[cand]=a.out[cand].replace(m2,m2+"_e64",1); off+=4; n+=1
                else: bad+=1
            cand=None
        elif mn in PROMO:
            if off%8==0 or cand is None: cand=i
        off+=sz
    print("align: promoted",n,"left misaligned",bad,file=sys.stderr)

def build():
    a=kernel()
    if O.align: align_pass(a)
    print("instrs",len(a.seq),"nops",a.nops,file=sys.stderr)
    K=NAME+"_kernel"
    s=f"; @launch grid=(256,1,1) block=(512,1,1) lds={LDS_SIZE}\n"
    s+='.amdgcn_target "amdgcn-amd-amdhsa--gfx950"\n'
    s+=f".text\n.p2align 12\n.globl {K}\n.p2align 8\n.type {K},@function\n{K}:\n"
    s+=a.text()
    s+="  s_endpgm\n.fill 8192, 4, 0xBF800000\n"
    s+=f""".section .rodata,"a"
.p2align 6
.amdhsa_kernel {K}
  .amdhsa_next_free_vgpr 256
  .amdhsa_next_free_sgpr 102
  .amdhsa_accum_offset 256
  .amdhsa_group_segment_fixed_size 0
  .amdhsa_kernarg_size 88
  .amdhsa_user_sgpr_count 2
  .amdhsa_user_sgpr_kernarg_segment_ptr 1
  .amdhsa_system_sgpr_workgroup_id_x 1
.end_amdhsa_kernel
"""
    return s

if __name__=="__main__":
    args=sys.argv[1:]
    out=f"cdna_kernels/{NAME}.s"
    for x in args:
        if x=="--stamp": O.stamp="s_memrealtime"
        elif x=="--cyc": O.stamp="s_memtime"
        elif x.startswith("--"):
            k,v=x[2:].split("="); assert hasattr(O,k); setattr(O,k,int(v))
        else: out=x
    open(out,"w").write(build())
```

```python
import sys, math, struct
sys.path.insert(0, "work")
from asmlib import *

NAME = "gated_mix__sliding_block__swiglu_ffn__prompt"
MB = 1<<20
WS_Q, WS_K, WS_V, WS_A3, WS_F, WS_ST = 0, 2*MB, 4*MB, 6*MB, 14*MB, 15*MB
WS_SIZE = 16*MB
A3_TB = 118*1024
LOG2E = math.log2(math.e)
def f2u(f): return struct.unpack("<I", struct.pack("<f", f))[0]
MF = "v_mfma_f32_32x32x16_bf16"
MF16 = "v_mfma_f32_16x16x32_bf16"
SLOT=28672
L_GW, L_Z, L_G, L_SY, LDS_SIZE = 159744, 160768, 161792, 162304, 162560
L_CNT, L_C14, L_C13, L_OF, L_AF = L_SY, L_SY+4, L_SY+8, L_SY+12, L_SY+16
PARK=33*4096
SPIN_MAX = 200000
OOB = 0x40000000

class Opt:
    stamp=None; probe=0; p0=9
    rot=5; codepf=1; warm=1; wst=0; outaux=2; sleep=2; align=1; forceslow=0
    NA=4; dl=1; thr=0; thrA=6; thr3=6; nA2=0; early=2; hpos=3; qs=4; w2=1; prio2=2; t0s=5; osl=4; dbl=11; park=0; qsig=24; sigk=10; rsl=1; pst=-1; wmode=1; wn=8; wsp=6; ap=0; afl=0
O=Opt()

sWS,sX,sWQ,sWG,sWU,sWD,sWO,sOUT,sGW,sDBG = 4,8,12,16,20,24,28,32,36,40
sW,sI,sRB,sCG,sSB,sPH,sT,sT2,sT3,sTR,sTC = 44,45,46,47,48,49,50,51,52,53,54
sA,sB,sC,sD,sE,sF,sG_,sH,sLT = 55,56,57,58,59,60,61,62,63
sM=64
s1K,sDo,sHead,sRo = 98,99,100,101
vSTAMP=11

def stamp(a, idx, probe=0):
    if O.stamp and (probe==O.probe or idx in (0,15)):
        a(f"{O.stamp} s[96:97]"); a("s_waitcnt lgkmcnt(0)")
        a(f"v_writelane_b32 v{vSTAMP}, s96, {idx}")
def stamp_flush(a, vtmp):
    if O.stamp:
        a("s_waitcnt vmcnt(0)"); stamp(a,15)
        a(f"s_lshl_b32 s{sT}, s2, 3"); a(f"s_add_u32 s{sT}, s{sT}, s{sW}"); a(f"s_lshl_b32 s{sT}, s{sT}, 6")
        a(f"s_add_u32 s{sT}, s{sT}, {WS_ST}")
        a(f"v_mbcnt_lo_u32_b32 v{vtmp}, -1, 0"); a(f"v_lshlrev_b32 v{vtmp}, 2, v{vtmp}")
        a("s_mov_b64 exec, 0xffff")
        a(f"buffer_store_dword v{vSTAMP}, v{vtmp}, {sr(sWS,4)}, s{sT} offen")

def srd_tail(a, d, size):
    a(f"s_mov_b32 s{d+2}, {size:#x}"); a(f"s_mov_b32 s{d+3}, 0x20000")
def late_srds(a):
    for d,size in ((sWS,WS_SIZE),(sDBG,256),(sWG,512*2752),(sWU,512*2752),(sWD,1376*1024),(sWO,512*1024),(sOUT,2*MB)):
        srd_tail(a,d,size)
def late_scalars(a):
    a(f"s_mul_i32 s{sT}, s{sCG}, 43"); a(f"s_lshr_b32 s{sT}, s{sT}, 7")
    a(f"s_mul_i32 s{sSB}, s{sCG}, 3"); a(f"s_sub_u32 s{sSB}, s{sSB}, s{sT}")
    a(f"s_mul_i32 s{sT}, s{sT}, 3"); a(f"s_sub_u32 s{sT}, s{sCG}, s{sT}"); a(f"s_cmp_eq_u32 s{sT}, 2")
    a(f"s_cselect_b32 s{sLT}, {OOB:#x}, 0")
    a(f"s_and_b32 s{sTR}, s2, 7"); a(f"s_lshl_b32 s{sTR}, s{sTR}, 2"); a(f"s_bfe_u32 s{sT}, s2, 0x20003"); a(f"s_add_u32 s{sTR}, s{sTR}, s{sT}")
    a(f"s_lshr_b32 s{sTC}, s2, 5")
    a(f"s_lshl_b32 s{s1K}, s{sI}, 10")
    a(f"s_lshl_b32 s{sDo}, s{sI}, 14"); a(f"s_lshl_b32 s{sT}, s{sTC}, 7"); a(f"s_add_u32 s{sDo}, s{sDo}, s{sT}")
    a(f"s_lshl_b32 s{sRo}, s{sTR}, 1"); a(f"s_add_u32 s{sRo}, s{sRo}, s{sTC}"); a(f"s_and_b32 s{sRo}, s{sRo}, 7")
    a(f"s_mul_i32 s{sH}, s{sRo}, 21"); a(f"s_lshr_b32 s{sH}, s{sH}, 3")
    a(f"s_lshl_b32 s{sH}, s{sH}, 16"); a(f"s_lshl_b32 s{sRo}, s{sRo}, 16")

_uid=[0]
def uid(p): _uid[0]+=1; return f"{p}{_uid[0]}"
def poll(a, vdst, vaddr, srd, soff, first_tag=None, expect=1, sleep=None):
    L=uid("PL")
    if first_tag is not None:
        a.wait(vm=[first_tag])
        a(f"v_cmp_ne_u32 vcc, {expect}, v{vdst}")
        a(f"s_cbranch_vccz {L}_D")
    a(f"s_mov_b32 s{sT3}, {SPIN_MAX}")
    keep=list(a.vm)
    a.label(L)
    a(f"buffer_load_dword v{vdst}, v{vaddr}, {sr(srd,4)}, {soff} offen sc1")
    a("s_waitcnt vmcnt(0)")
    a(f"v_cmp_ne_u32 vcc, {expect}, v{vdst}")
    a(f"s_cbranch_vccz {L}_D")
    a(f"s_sleep {sleep or O.sleep}")
    a(f"s_sub_u32 s{sT3}, s{sT3}, 1")
    a(f"s_cmp_lg_u32 s{sT3}, 0")
    a(f"s_cbranch_scc1 {L}")
    a.label(L+"_D")
    if first_tag is not None: a.vm=keep
def lds_poll(a, vaddr, vdst, expect, off=0):
    L=uid("LP")
    a(f"s_mov_b32 s{sT3}, {SPIN_MAX}")
    a.label(L); a(f"ds_read_b32 v{vdst}, v{vaddr} offset:{off}"); a("s_waitcnt lgkmcnt(0)")
    a(f"v_cmp_ne_u32 vcc, {expect}, v{vdst}"); a(f"s_cbranch_vccz {L}_D"); a("s_sleep 1")
    a(f"s_sub_u32 s{sT3}, s{sT3}, 1"); a(f"s_cmp_lg_u32 s{sT3}, 0"); a(f"s_cbranch_scc1 {L}")
    a.label(L+"_D")
def lds_inc(a, vaddr, vone, off):
    a("s_mov_b64 exec, 1"); a(f"ds_add_u32 v{vaddr}, v{vone} offset:{off}"); a("s_mov_b64 exec, -1")
def emit(a, ops, tag=None):
    for op in ops:
        for o in (op if isinstance(op,tuple) else (op,)): a(o,tag)

def signal(a, kind, vtmp, tag=None):
    a(f"s_lshl_b32 s{sT}, s{sRB}, 4"); a(f"s_add_u32 s{sT}, s{sT}, s{sCG}"); a(f"s_lshl_b32 s{sT}, s{sT}, 5")
    a(f"s_add_u32 s{sT}, s{sT}, s{sI}"); a(f"s_lshl_b32 s{sT}, s{sT}, 2"); a(f"s_add_u32 s{sT}, s{sT}, {WS_F+kind*32768}")
    a(f"v_mov_b32 v{vtmp}, 1")
    a("s_mov_b64 exec, 1")
    if tag: a.wait(vm=[tag])
    else: a("s_waitcnt vmcnt(0)")
    a(f"buffer_store_dword v{vtmp}, off, {sr(sWS,4)}, s{sT} sc1", "flag")
    a("s_mov_b64 exec, -1")

def flag_lane_ops(vF, vL, t0, t1, sdst, kind):
    return [f"v_and_b32 v{t0}, 15, v{vL}", f"v_bfe_u32 v{t1}, v{vL}, 4, 1", f"v_lshlrev_b32 v{t1}, 2, v{t1}", f"v_lshl_add_u32 v{vF}, v{t0}, 7, v{t1}",
            f"s_lshr_b32 s{sdst}, s{sTR}, 1", f"s_lshl_b32 s{sdst}, s{sdst}, 11", f"s_and_b32 s{sT}, s{sTR}, 1", f"s_lshl_b32 s{sT}, s{sT}, 3",
            f"s_add_u32 s{sdst}, s{sdst}, s{sT}", f"s_add_u32 s{sdst}, s{sdst}, {WS_F+kind*32768}"]
def qaddr_ops(i):
    t,e=i>>1,i&1
    o=[f"s_mul_i32 s{sT}, s{sCG}, 3", f"s_add_u32 s{sT}, s{sT}, {t}", f"s_lshl_b32 s{sT2}, s{sRB}, 2", f"s_add_u32 s{sT2}, s{sT2}, s{sI}",
       (f"s_cmp_ge_u32 s{sT}, 32", f"s_cselect_b32 s{sT3}, 11, 10"), f"s_lshl_b32 s{sT2}, s{sT2}, s{sT3}"]
    if e: o+=[(f"s_cmp_ge_u32 s{sT}, 32", f"s_cselect_b32 s{sT3}, 1, 64"), f"s_lshl_b32 s{sT3}, s{sT3}, 10", f"s_add_u32 s{sT2}, s{sT2}, s{sT3}"]
    return o+[f"s_lshl_b32 s{sT}, s{sT}, 17", f"s_add_u32 s{sT}, s{sT}, s{sT2}"]
def w3_lane_ops(vD, vL, t0, t1):
    return [f"v_bfe_u32 v{t0}, v{vL}, 4, 1", f"v_lshlrev_b32 v{t0}, 2, v{t0}", f"v_and_b32 v{t1}, 7, v{vL}", f"v_xor_b32 v{t0}, v{t0}, v{t1}",
            f"v_lshlrev_b32 v{t0}, 4, v{t0}", f"v_lshrrev_b32 v{t1}, 3, v{vL}", f"v_lshl_add_u32 v{vD}, v{t1}, 10, v{t0}",
            f"v_add_u32 v{vD}, s{sDo}, v{vD}", f"v_add_u32 v{vD+1}, 8192, v{vD}"]

ROWS = list(range(28,39))+[6,13,20] + [0,1,2,3,4,5,7,8,9,10,11,12] + [14,15,16,17,18,19,21,22,23,24,25,26]
NRES=19; NT0=7; NREG=11; NS3=30
LOAD=[0,1,2,3,4,22,23, 5,6,7,8,9,10, 11,12,13,14,15,16, 17,18,19,20,21,24,25,26,27,28,29]
POS={n:p for p,n in enumerate(LOAD)}
A2LIST=list(range(7,13))+list(range(19,26))
def row_of(p,e): return ROWS[2*(p%NRES)+e]
def rot_off(n):
    if n<21: return [f"s_add_u32 s{sT2}, s{sH}, {n<<16}", f"s_add_u32 s{sT3}, s{sH}, {((n-21)<<16)&0xffffffff:#x}", f"s_min_u32 s{sT2}, s{sT2}, s{sT3}"]
    if n==21: return [f"s_and_b32 s{sT2}, s{sI}, 2", f"s_lshl_b32 s{sT2}, s{sT2}, 14", f"s_sub_u32 s{sT2}, {21<<16}, s{sT2}"]
    return [f"s_add_u32 s{sT2}, s{sRo}, {(n-22)<<16}", f"s_and_b32 s{sT2}, s{sT2}, {7<<16}"]
def w3_dma(a, p, vD, tag):
    n=LOAD[p]; R=sWD if n<22 else sWO
    a(f"s_add_u32 m0, s{s1K}, {row_of(p,0)*4096}")
    emit(a,rot_off(n))
    a(f"buffer_load_dwordx4 v{vD}, {sr(R,4)}, s{sT2} offen lds", tag)
    a(f"s_add_u32 m0, s{s1K}, {row_of(p,1)*4096}")
    a(f"buffer_load_dwordx4 v{vD+1}, {sr(R,4)}, s{sT2} offen lds", tag)

def final_reduce(a):
    vL,vA,vO,B = 1,2,6,16
    a(f"v_mbcnt_lo_u32_b32 v{vL}, -1, 0"); a(f"v_mbcnt_hi_u32_b32 v{vL}, -1, v{vL}")
    a(f"v_lshrrev_b32 v3, 3, v{vL}")
    a(f"v_bfe_u32 v4, v{vL}, 4, 1"); a(f"v_bfe_u32 v5, v{vL}, 3, 1"); a(f"v_lshl_or_b32 v4, v5, 1, v4")
    a(f"v_and_b32 v5, 4, v3"); a(f"v_or_b32 v4, v4, v5")
    a(f"v_and_b32 v5, 3, v{vL}"); a(f"v_lshlrev_b32 v5, 1, v5"); a(f"v_xor_b32 v4, v4, v5"); a(f"v_lshlrev_b32 v4, 4, v4")
    a(f"v_lshl_add_u32 v{vA}, v3, 7, v4")
    a(f"v_bfe_u32 v5, v{vL}, 2, 1"); a(f"v_lshl_add_u32 v{vA}, v5, 14, v{vA}")
    a(f"s_lshr_b32 s{sT}, s{sW}, 2"); a(f"s_lshl_b32 s{sT}, s{sT}, 15"); a(f"s_lshl_b32 s{sT2}, s{sI}, 12"); a(f"s_add_u32 s{sT}, s{sT}, s{sT2}")
    a(f"v_add_u32 v{vA}, s{sT}, v{vA}")
    a(f"v_and_b32 v5, 7, v{vL}"); a(f"v_lshlrev_b32 v5, 4, v5"); a(f"v_lshl_add_u32 v{vO}, v3, 10, v5")
    a(f"v_xor_b32 v{vA+1}, 16, v{vA}")
    a(f"s_lshl_b32 s{sT}, s{sTR}, 16"); a(f"s_lshl_b32 s{sT2}, s{sTC}, 7"); a(f"s_add_u32 s{sT}, s{sT}, s{sT2}")
    a(f"s_lshl_b32 s{sT2}, s{sW}, 13"); a(f"s_add_u32 s{sT}, s{sT}, s{sT2}")
    a("s_waitcnt lgkmcnt(0)"); a("s_barrier")
    stamp(a,13)
    for w in range(4):
        for hf in range(2):
            a(f"ds_read_b128 {vr(B+8*w+4*hf,4)}, v{vA+hf} offset:{w*1024}", ("rr",w))
    a.wait(lg=[("rr",1)])
    for r in range(0,8,2): a(f"v_pk_add_f32 {vr(B+r,2)}, {vr(B+r,2)}, {vr(B+8+r,2)}")
    a.wait(lg=[("rr",3)])
    for r in range(0,8,2): a(f"v_pk_add_f32 {vr(B+16+r,2)}, {vr(B+16+r,2)}, {vr(B+24+r,2)}")
    for r in range(0,8,2): a(f"v_pk_add_f32 {vr(B+r,2)}, {vr(B+r,2)}, {vr(B+16+r,2)}")
    for r in range(4): a(f"v_cvt_pk_bf16_f32 v{B+8+r}, v{B+2*r}, v{B+2*r+1}")
    aux=[""," sc1"," nt"," sc0 sc1"][O.outaux]
    a(f"buffer_store_dwordx4 {vr(B+8,4)}, v{vO}, {sr(sOUT,4)}, s{sT} offen{aux}", "out")
    stamp(a,14)
    stamp_flush(a,3)

def g_wave(a):
    vSt,vXa,vTm,vTq,vT2 = 0,1,3,5,7
    WB,NW,ACC,XR = 12,5,32,128
    GF,GA,vGb,vGa = 80,88,92,93
    vC,vS2,vPk,vSy = 4,3,5,6
    sSt,sK = sB,sC
    t0,t1,vL = 12,13,14
    a(f"v_and_b32 v{vL}, 63, v0")
    if O.codepf:
        a(f"s_lshr_b32 s{sT}, s2, 3"); a(f"s_lshl_b32 s{sT}, s{sT}, 7"); a(f"s_lshl_b32 s{sT2}, s{sI}, 14"); a(f"s_add_u32 s{sT}, s{sT}, s{sT2}")
        a(f"v_lshl_add_u32 v{t0}, v{vL}, 12, s{sT}")
        a("s_mov_b64 exec, 15")
        a(f"global_load_dword v97, v{t0}, s[66:67]", "cpf")
        a("s_mov_b64 exec, -1")
    late_srds(a); late_scalars(a)
    a(f"v_lshlrev_b32 v{vSt}, 4, v{vL}")
    a(f"v_and_b32 v{t0}, 31, v{vL}"); a(f"v_lshrrev_b32 v{t1}, 5, v{vL}")
    a(f"v_bfe_u32 v{vXa}, v{vL}, 1, 3"); a(f"v_xor_b32 v{vXa}, v{vXa}, v{t1}"); a(f"v_lshlrev_b32 v{vXa}, 4, v{vXa}")
    a(f"v_lshl_add_u32 v{vXa}, v{t0}, 7, v{vXa}")
    a(f"s_lshl_b32 s{sT}, s{sI}, 12"); a(f"v_add_u32 v{vXa}, s{sT}, v{vXa}"); a(f"v_add_u32 v{vXa+1}, {2*SLOT}, v{vXa}")
    a(f"v_lshrrev_b32 v{vGb}, 4, v{vL}"); a(f"v_xor_b32 v{vGb}, v{vGb}, v{vL}"); a(f"v_and_b32 v{vGb}, 1, v{vGb}")
    a(f"v_lshlrev_b32 v{vGb}, 10, v{vGb}"); a(f"v_lshl_add_u32 v{vGb}, v{t1}, 4, v{vGb}"); a(f"v_add_u32 v{vGb}, {L_GW}, v{vGb}")
    a(f"v_bfe_u32 v{t0}, v{vL}, 2, 2"); a(f"v_lshl_add_u32 v{t0}, v{t1}, 3, v{t0}"); a(f"v_lshlrev_b32 v{t0}, 6, v{t0}")
    a(f"v_and_b32 v{t1}, 3, v{vL}"); a(f"v_lshl_add_u32 v{t0}, v{t1}, 3, v{t0}")
    a(f"v_bfe_u32 v{t1}, v{vL}, 4, 1")
    a(f"v_lshl_add_u32 v{t0}, v{t1}, 5, v{t0}")
    a(f"v_add_u32 v{vTq}, 16384, v{t0}"); a(f"v_add_u32 v{vTq+1}, {16384+2*SLOT}, v{t0}")
    a(f"v_mul_u32_u24 v{t1}, 3072, v{t1}"); a(f"v_add_u32 v{vT2}, v{t0}, v{t1}")
    a(f"v_xor_b32 v{vT2+1}, 32, v{vT2}")
    a(f"v_add_u32 v{vT2+2}, {2*SLOT}, v{vT2}"); a(f"v_add_u32 v{vT2+3}, {2*SLOT}, v{vT2+1}")
    a(f"v_cmp_ne_u32 s[64:65], 0, v{t1}")
    for r in (16,17,18,19): a(f"v_mov_b32 v{r}, 0")
    a(f"v_add_u32 v{t0}, {L_Z}, v{vSt}"); a(f"ds_write_b128 v{t0}, v[16:19]")
    a(f"v_mov_b32 v{t0}, {L_SY}"); a(f"ds_write_b128 v{t0}, v[16:19]"); a(f"ds_write_b128 v{t0}, v[16:19] offset:16")
    a("s_waitcnt lgkmcnt(0)")
    a(f"s_lshl_b32 s{sT}, s{sCG}, 2"); a(f"s_add_u32 s72, s{sT}, s{sI}"); a(f"s_cmp_lg_u32 s72, 3"); a("s_cbranch_scc1 G_NOINIT")
    a(f"v_and_b32 v{t0}, 15, v{vL}"); a(f"v_lshrrev_b32 v{t1}, 4, v{vL}"); a(f"v_lshlrev_b32 v{t0}, 7, v{t0}"); a(f"v_lshl_add_u32 v{t0}, v{t1}, 15, v{t0}")
    a(f"s_lshl_b32 s{sT}, s{sRB}, 11"); a(f"s_add_u32 s{sT}, s{sT}, {WS_F}")
    a("s_mov_b32 exec_hi, 0xffff")
    a(f"buffer_store_dwordx4 v[16:19], v{t0}, {sr(sWS,4)}, s{sT} offen sc1")
    a("s_mov_b32 exec_hi, -1")
    a.label("G_NOINIT")
    for r in (104,105,106,107): a(f"v_mov_b32 v{r}, -1")
    a(f"s_and_b32 s{sT2}, s{sI}, 2"); a(f"s_lshl_b32 s{sT}, s{sRB}, 2"); a(f"s_add_u32 s{sT}, s{sT}, s{sT2}"); a(f"s_mul_i32 s{sT}, s{sT}, {A3_TB}")
    a(f"s_and_b32 s{sT2}, s{sI}, 1"); a(f"s_lshl_b32 s{sT3}, s{sCG}, 1"); a(f"s_add_u32 s{sT2}, s{sT2}, s{sT3}"); a(f"s_lshl_b32 s{sT2}, s{sT2}, 10")
    a(f"s_add_u32 s{sT}, s{sT}, s{sT2}"); a(f"s_add_u32 s82, s{sT}, {WS_A3+86*1024}"); a(f"s_add_u32 s83, s82, {A3_TB}")
    def poison():
        for i in range(2): a(f"buffer_store_dwordx4 v[104:107], v{vSt}, {sr(sWS,4)}, s{82+i} offen sc1")
    if O.warm:
        a(f"s_cmp_eq_u32 s{sI}, 1"); a(f"s_cselect_b32 s68, s{sWU}, s{sWG}"); a(f"s_cselect_b32 s69, s{sWU+1}, s{sWG+1}")
        a(f"s_cmp_eq_u32 s{sI}, 2"); a(f"s_cselect_b32 s68, s{sWD}, s68"); a(f"s_cselect_b32 s69, s{sWD+1}, s69")
        a(f"s_mov_b32 s70, {1376*1024}")
        a(f"s_cmp_eq_u32 s{sI}, 3"); a(f"s_cselect_b32 s68, s{sWO}, s68"); a(f"s_cselect_b32 s69, s{sWO+1}, s69")
        a(f"s_cselect_b32 s70, {512*1024}, s70"); a("s_mov_b32 s71, 0x20000")
        a(f"s_mul_i32 s{sT}, s2, {43*128}")
        a(f"v_lshl_add_u32 v98, v{vL}, 7, s{sT}")
    def warm2():
        if O.warm:
            a(f"s_mov_b32 exec_hi, 0x7ff"); a(f"buffer_load_dword v99, v98, s[68:71], 0 offen"); a(f"s_mov_b32 exec_hi, -1")
    if O.wmode==1: a(f"s_lshr_b32 s84, s2, 3"); a(f"s_and_b32 s84, s84, {O.wn-1}")
    if O.wmode==2: a(f"s_mov_b32 s84, s{sI}")
    if O.wmode==3: a(f"s_and_b32 s84, s2, {O.wn-1}")
    def warm_slot(k):
        L=uid("GW"); a(f"s_cmp_lg_u32 s84, {k}"); a(f"s_cbranch_scc1 {L}"); warm2()
        if O.pst<0: poison()
        a.label(L)
    def g_publish():
        a(f"s_cmp_lg_u32 s72, 3"); a("s_cbranch_scc1 G_NOPUB")
        a(f"s_lshl_b32 s{sT}, s{sRB}, 2"); a("v_mov_b32 v100, 1"); a("s_mov_b64 exec, 1"); a("s_waitcnt vmcnt(0)")
        a(f"buffer_store_dword v100, off, {sr(sDBG,4)}, s{sT} sc1"); a("s_mov_b64 exec, -1")
        a.label("G_NOPUB")
    if O.wst<0 and not O.wmode: warm2()
    if O.wst<0 and O.wmode: warm_slot(0)
    if not O.park:
        for i in range(6): emit(a,qaddr_ops(i)); a(f"s_mov_b32 s{76+i}, s{sT}")
    a("s_setprio 2")
    a(f"s_cmp_eq_u32 s{sCG}, 10"); a("s_cbranch_scc1 G_V1")
    a(f"s_cmp_gt_u32 s{sCG}, 10"); a("s_cbranch_scc1 G_V2")
    a("s_branch G_V0")
    yield

    seq=[]
    for st in range(8):
        for j in range(4):
            for t in range(3): seq.append((st,j,t))
    for j in range(4):
        for u in (3,4,5): seq.append((8,j,u))
    for u in (0,1,2):
        for j in range(4): seq.append((8,j,u))
    for st in range(9,14):
        for j in range(4):
            for u in range(6): seq.append((st,j,u))
    MT=len(seq)
    for u in range(6):
        for st in (14,15):
            for j in range(4): seq.append((st,j,u))
    N=len(seq); AH=NW-1; M8=96
    first={}
    for m,(st,j,t) in enumerate(seq): first.setdefault(st,m)
    ool=[]
    def reads(m):
        st,j,t=seq[m]; q=st&3; wb=WB+4*(m%NW); tg=("r",m)
        if first[st]==m and st<14:
            if O.dbl<=st<13: a("s_waitcnt lgkmcnt(0)")
            if O.p0<=st<O.p0+4: stamp(a,1+3*(st-O.p0),1)
            a("s_barrier")
            if O.p0<=st<O.p0+4: stamp(a,2+3*(st-O.p0),1)
            if st in (0,1,8,9): stamp(a,{0:1,1:2,8:3,9:4}[st])
            if st<9: stamp(a,2+st,3)
        if m==MT:
            a.wait(lg=["c14"])
            a(f"v_cmp_ne_u32 vcc, 4, v2"); a("s_cbranch_vccnz G_W14"); a.label("G_R14")
            def w14():
                a.label("G_W14"); a.lg=[]; lds_poll(a,vSy,2,4,L_C14-L_SY); a("s_branch G_R14")
            ool.append(w14)
            stamp(a,5); stamp(a,1,4)
        if st<8:
            if t==0:
                k=st*4+j; tm=vTm+(k&1)
                if j: a(f"v_xor_b32 v{tm}, {32*j}, v{vXa+(q>>1)}")
                else:
                    a(f"s_add_u32 s{sK}, s{sPH}, {st}"); a(f"s_and_b32 s{sK}, s{sK}, 7"); a(f"s_lshl_b32 s{sK}, s{sK}, 7")
                    a(f"v_add_u32 v{vGa}, s{sK}, v{vGb}")
                a(f"ds_read_b128 {vr(XR+4*k,4)}, v{tm if j else vXa+(q>>1)} offset:{(q&1)*SLOT}", tg)
                a(f"ds_read_b128 {vr(GF+4*(k&1),4)}, v{vGa} offset:{j*32}", tg)
            for e in range(2):
                a(f"ds_read_b64_tr_b16 {vr(wb+2*e,2)}, v{vTq+(q>>1)} offset:{(q&1)*SLOT+(j*3+t)*1024+e*256}", tg)
        else:
            for e in range(2):
                a(f"ds_read_b64_tr_b16 {vr(wb+2*e,2)}, v{vT2+2*(q>>1)+(t&1)} offset:{(q&1)*SLOT+j*6144+(t>>1)*1024+e*256}", tg)
    rp=[0]
    def pump(m):
        while rp[0]<N and rp[0]<=m+AH:
            r=rp[0]; st=seq[r][0]
            if first[st]==r and O.dbl<=st<13 and m<r-AH+O.dl: break
            reads(r); rp[0]+=1
    def mfma(m, vmask):
        st,j,t=seq[m]; k=(st&7)*4+j; A=vr(ACC+16*t,16)
        W,X=vr(WB+4*(m%NW),4),vr(XR+4*k,4)
        a.wait(lg=[("r",m),("r",m+1)] if (O.w2 and m>=MT+8 and m%2==0) else [("r",m)])
        if st<8 and t==0:
            a(f"{MF16} {vr(GA,4)}, {vr(GF+4*(k&1),4)}, {X}, {'0' if k==0 else vr(GA,4)}")
        p,q_=(X,W) if (st<8 and (vmask>>t)&1) else (W,X)
        a(f"{MF} {A}, {p}, {q_}, {'0' if k==0 else A}")
    for vi,vmask in ((1,4),(2,7),(0,0)):
        a.label(f"G_V{vi}")
        a.vm=[]; a.lg=[]; rp[0]=0
        pump(-1)
        for m in range(M8):
            if m==M8-6: a("s_waitcnt vmcnt(0)")
            if m==12 and vi==0: g_publish()
            if not O.wmode and m==12*O.wst+1: warm2()
            if O.wmode:
                for k in range(O.wn):
                    if m==12*O.wst+1+k*O.wsp: warm_slot(k)
            if m==O.pst: poison()
            mfma(m,vmask); pump(m)
        if vi: a("s_branch G_P2")
    a.label("G_P2")
    fill={}
    def spread(ops, m0, m1):
        for i,o in enumerate(ops): fill.setdefault(m0+(i*(m1-m0))//len(ops),[]).append(o)
    SS=[0,4,8,11,15,17,20] if not O.park else [0,3,6,8,11,13,15]
    for i in range(6):
        A=ACC+8*i
        ops=[f"s_add_u32 s{sT}, s{s1K}, {PARK}", f"v_add_u32 v{vPk}, s{sT}, v{vSt}"] if (i==0 and O.park) else []
        for r in range(4): ops.append(f"v_cvt_pk_bf16_f32 v{A+r}, v{A+2*r}, v{A+2*r+1}")
        ops.append(f"ds_write_b128 v{vPk}, {vr(A,4)} offset:{i*4096}" if O.park else f"buffer_store_dwordx4 {vr(A,4)}, v{vSt}, {sr(sWS,4)}, s{76+i} offen sc1")
        spread(ops,M8+SS[i],M8+SS[i+1])
    spread([f"v_mul_f32 v{vC}, {f2u(LOG2E):#x}, v{vC}", f"v_exp_f32 v1, -v{vC}", f"v_exp_f32 v{vC}, v{vC}",
            f"v_add_f32 v1, 1.0, v1", f"v_add_f32 v{vC}, 1.0, v{vC}", f"v_rcp_f32 v1, v1", f"v_min_f32 v{vC}, {f2u(1e38):#x}, v{vC}",
            f"v_bfe_u32 v2, v{vSt}, 4, 5", f"s_lshl_b32 s{sT}, s{sI}, 7", f"s_add_u32 s{sT}, s{sT}, {L_G}",
            f"v_lshl_add_u32 v2, v2, 2, s{sT}", f"ds_write_b32 v2, v1", f"v_add_u32 v{vS2}, s{sLT}, v{vSt}",
            f"v_mov_b32 v{vSy}, {L_SY}"], M8+20, M8+27)
    vL,vD,vR,vA,vW,t0,t1,vF,vP = 147,148,150,156,158,162,163,146,145
    WB3,ACC3,AF,WR = 12,32,96,164; NA=O.NA; NF=22-NA; NR=NA+1; assert AF+8*NR<=144
    ops=[f"v_lshrrev_b32 v{vL}, 4, v{vSt}"]+w3_lane_ops(vD,vL,t0,t1)
    ops+=[f"v_lshrrev_b32 v{t0}, 5, v{vL}", f"v_bfe_u32 v{t1}, v{vL}, 2, 2", f"v_lshl_add_u32 v{t0}, v{t0}, 2, v{t1}", f"v_lshlrev_b32 v{vR}, 7, v{t0}",
          f"v_bfe_u32 v{t0}, v{vL}, 3, 1", f"v_lshl_add_u32 v{vR}, v{t0}, 6, v{vR}", f"v_bfe_u32 v{t0}, v{vL}, 4, 1", f"v_lshl_add_u32 v{vR}, v{t0}, 5, v{vR}",
          f"v_and_b32 v{t0}, 3, v{vL}", f"v_lshl_add_u32 v{vR}, v{t0}, 3, v{vR}", f"v_add_u32 v{vR}, s{s1K}, v{vR}",
          f"v_add_u32 v{vR+2}, 65536, v{vR}", f"v_add_u32 v{vR+4}, 131072, v{vR}"]
    ops+=[f"v_xor_b32 v{vR+2*g+1}, 64, v{vR+2*g}" for g in range(3)]
    ops+=[f"s_mul_i32 s{sT}, s{sTR}, {2*A3_TB}", f"s_add_u32 s{sT}, s{sT}, s{s1K}", f"s_add_u32 s{sT}, s{sT}, {WS_A3}",
          f"v_add_u32 v{vA}, s{sT}, v{vSt}", f"v_add_u32 v{vA+1}, {A3_TB}, v{vA}"]
    ops+=[f"v_bfe_u32 v{t0}, v{vL}, 1, 1", f"v_and_b32 v{t1}, 1, v{vL}", f"v_lshl_or_b32 v{t0}, v{t1}, 1, v{t0}", f"v_and_b32 v{t1}, 4, v{vL}",
          f"v_or_b32 v{t0}, v{t0}, v{t1}", f"v_lshrrev_b32 v{t1}, 5, v{vL}", f"v_xor_b32 v{t0}, v{t0}, v{t1}", f"v_lshlrev_b32 v{t0}, 4, v{t0}",
          f"v_and_b32 v{t1}, 7, v{vL}", f"v_lshl_add_u32 v{vW}, v{t1}, 7, v{t0}", f"v_bfe_u32 v{t1}, v{vL}, 3, 2",
          f"v_lshl_add_u32 v{vW}, v{t1}, 12, v{vW}", f"v_add_u32 v{vW}, s{s1K}, v{vW}"]
    ops+=[f"v_xor_b32 v{vW+q}, {32*q}, v{vW}" for q in range(1,4)]
    ops+=[f"s_lshl_b32 s{sT}, s{sRB}, 2", f"s_add_u32 s{sT}, s{sT}, s{sI}", f"s_mul_i32 s{sSt}, s{sT}, {A3_TB}", f"s_lshl_b32 s{sT}, s{sSB}, 11",
          f"s_add_u32 s{sSt}, s{sSt}, s{sT}", f"s_add_u32 s{sSt}, s{sSt}, {WS_A3}", f"s_add_u32 s{sD}, s{sSt}, 4096", f"s_mov_b32 s{sA}, {f2u(-LOG2E):#x}",
          f"v_mov_b32 v1, 1"]+flag_lane_ops(vF,vL,t0,t1,sG_,1)
    spread(ops,first[11]+2,first[13]+12)
    def rd3_ops(p, wb):
        return [(f"ds_read_b64_tr_b16 {vr(wb+4*cb+2*q,2)}, v{vR+2*(row_of(p,q)>>4)+cb} offset:{(row_of(p,q)&15)*4096}", ("r3",p)) for cb in range(2) for q in range(2)]
    def rd3(p,wb):
        for o,t in rd3_ops(p,wb): a(o,t)
    T=XR
    def ffn_epi(n):
        A=ACC+16*n; ops=[]; R=range(8)
        for r in R: ops.append(f"v_mul_f32 v{T+r}, s{sA}, v{A+r}")
        for r in R: ops.append(f"v_exp_f32 v{T+r}, v{T+r}"); ops.append(f"v_mul_f32 v{A+r}, v{A+r}, v{A+8+r}")
        for r in R: ops.append(f"v_fma_f32 v{T+r}, v{T+r}, v{vC}, v{vC}")
        for r in R: ops.append(f"v_rcp_f32 v{T+r}, v{T+r}")
        for r in R: ops.append(f"v_mul_f32 v{A+r}, v{A+r}, v{T+r}")
        for r in range(4): ops.append(f"v_cvt_pk_bf16_f32 v{A+8+r}, v{A+2*r}, v{A+2*r+1}")
        ops.append(f"buffer_store_dwordx4 {vr(A+8,4)}, v{vSt if n<4 else vS2}, {sr(sWS,4)}, s{sSt if n<4 else sD} offen offset:{(n&3)*1024} sc1")
        return ops
    for u in range(5): spread(ffn_epi(u), MT+8*(u+1)+1, MT+8*(u+2)+(1 if u<4 else 0))
    a(f"v_cndmask_b32 v{vC}, v{GA}, v{GA+1}, s[64:65]")
    for m in range(M8,N):
        if m>=MT+8 and (m-MT)%8==0: stamp(a,1+(m-MT)//8,4)
        mfma(m,0)
        if m==MT-AH-3: a(f"ds_read_b32 v2, v{vSy} offset:{L_C14-L_SY}", "c14")
        pump(m)
        if not O.park and m==first[9]+O.qsig: signal(a,0,vPk)
        if MT<=m<MT+NT0: rd3(m-MT, WR+8*(m-MT))
        if m==MT+NT0: lds_inc(a,vSy,1,L_C13-L_SY)
        if m==N-AH: lds_inc(a,vSy,1,L_CNT-L_SY)
        emit(a,fill.get(m,[]),"hst")
    stamp(a,6); stamp(a,7,4)
    emit(a,ffn_epi(5),"hst")
    stamp(a,7); stamp(a,8,4)
    glist=list(range(13,19))+[p for p in A2LIST[O.nA2:]]
    glist.sort(key=lambda p: (p>=13,p))
    lds_poll(a,vSy,t1,4,L_CNT-L_SY)
    for p in glist[:O.early]: w3_dma(a,p,vD,("w",p))
    signal(a,1,t0,"hst")
    if O.prio2==1: a("s_setprio 0")
    stamp(a,8)
    def preread():
        a(f"s_lshl_b32 s{sT}, s{sI}, 2"); a(f"v_add_u32 v{t0}, s{sT}, v{vSy}")
        lds_poll(a,t0,t1,1,L_AF-L_SY)
        a.wait(vm=[("w",p) for p in range(NT0,NREG)])
        for p in range(NT0,NREG): rd3(p, WR+8*p)
        a("s_waitcnt lgkmcnt(0)")
    rest=glist[O.early:]+list(range(26,30)); npre=len(rest)-4
    if O.nA2>=4: npre=min(npre,2)
    hp=max(len(rest)-O.hpos,npre)
    for i,p in enumerate(rest):
        if i==npre: preread()
        if i==hp: a(f"buffer_load_dword v{vP}, v{vF}, {sr(sWS,4)}, s{sG_} offen sc1", "hf")
        w3_dma(a,p,vD,("w",p))
        if O.thr3: a(f"s_waitcnt vmcnt({O.thr3})")
    stamp(a,9)
    poll(a,vP,vF,sWS,f"s{sG_}",first_tag="hf" if hp<len(rest) else None)
    stamp(a,10)
    def aload_ops(n):
        af=AF+8*(n%NR); ops=[(o,None) for o in rot_off(n)]
        ops.append((f"s_lshr_b32 s{sT2}, s{sT2}, 4",None))
        if n>=22: ops.append((f"s_add_u32 s{sT2}, s{sT2}, {86*1024}",None))
        for tb in range(2):
            ops.append((f"buffer_load_dwordx4 {vr(af+4*tb,4)}, v{vA+tb}, {sr(sWS,4)}, s{sT2} offen sc1", ("a",n)))
        return ops
    def aload(n):
        for o,t in aload_ops(n): a(o,t)
    def chk_ops(n):
        af=AF+8*(n%NR)
        return [f"v_max3_u32 v{t0}, v{af}, v{af+1}, v{af+2}", f"v_max3_u32 v{t1}, v{af+3}, v{af+4}, v{af+5}",
                f"v_max3_u32 v{t0}, v{t0}, v{af+6}, v{af+7}", f"v_max_u32 v{t0}, v{t0}, v{t1}", f"v_cmp_eq_u32 vcc, -1, v{t0}"]
    def check(n):
        emit(a,chk_ops(n)); a(f"s_cbranch_vccnz G_RT{n}"); a.label(f"G_OK{n}")
        def retry():
            a.label(f"G_RT{n}"); a.vm=[]; a.lg=[]
            a(f"s_mov_b32 s{sE}, {SPIN_MAX}")
            a.label(f"G_RL{n}")
            a(f"s_sleep {O.rsl}")
            aload(n); a("s_waitcnt vmcnt(0)")
            emit(a,chk_ops(n)); a(f"s_cbranch_vccz G_OK{n}")
            a(f"s_sub_u32 s{sE}, s{sE}, 1"); a(f"s_cmp_lg_u32 s{sE}, 0"); a(f"s_cbranch_scc1 G_RL{n}")
            a(f"s_branch G_OK{n}")
        ool.append(retry)
    def step3(n):
        af=AF+8*(n%NR); wb=WR+8*POS[n] if POS[n]<NREG else WB3+8*(n&1)
        if n%2==0 and n<28: stamp(a,1+n//2,2)
        nxt = n+1<NS3 and POS[n+1]>=NREG
        a.wait(vm=[("a",n)]+([("w",POS[n+1])] if nxt else []), lg=[("r3",POS[n])])
        al = aload_ops(n+NA) if n+NA<NS3 else []
        def mf(i):
            tb,cb=i>>1,i&1; A=ACC3+16*i
            a(f"{MF} {vr(A,16)}, {vr(wb+4*cb,4)}, {vr(af+4*tb,4)}, {'0' if n==0 else vr(A,16)}")
        if n==21:
            if nxt: rd3(POS[n+1], WB3+8*((n+1)&1))
            for o,t in al: a(o,t)
            a(f"s_cmp_ge_u32 s{sI}, 2"); a(f"s_cbranch_scc1 G_SK21")
            for i in range(4): mf(i)
            a.label(f"G_SK21")
        else:
            mf(0)
            if nxt: rd3(POS[n+1], WB3+8*((n+1)&1))
            mf(1)
            for o,t in al[:-1]: a(o,t)
            mf(2)
            for o,t in al[-1:]: a(o,t)
            mf(3)
        if 22<=n+1<NS3:
            a.wait(vm=[("a",n+1)]); check(n+1)
    for n in range(NA): aload(n)
    if O.prio2==2: a("s_setprio 0")
    for n in range(NS3):
        if n==21: stamp(a,11)
        step3(n)
    stamp(a,12)
    for p in range(4):
        for q in range(4):
            a(f"ds_write_b128 v{vW+q}, {vr(ACC3+16*p+4*q,4)} offset:{p*16384}", "red")
    a("s_branch FINAL")
    for f in ool: f()
    yield

def a_wave(a):
    vSt,vL,vVo,vT0,vT1,vM,vM2,vBig,vGt = 0,1,2,3,4,5,6,7,8
    vP=10
    MK=12; Q=20; KF=28; VF=68; SM=148; S0=164; S1=180; CM=196; O_=212; P=228; P2=236
    vX0,vX1,vWq,vWg,vWu,vWg2,vWu2,vD,vBig2,vSy,vOne = 228,229,230,231,232,233,234,244,246,247,248
    PK=SM
    sXo,sQo,sFo,sLx,sLq,sK,sIt,sSl = sA,sB,sC,sD,sE,sF,64,65
    a(f"v_and_b32 v{vL}, 63, v0")
    a(f"v_lshrrev_b32 v{vT0}, 3, v{vL}"); a(f"v_lshrrev_b32 v{vT1}, 4, v{vL}")
    a(f"v_and_b32 v{vX0}, 7, v{vL}"); a(f"v_xor_b32 v{vX0}, v{vX0}, v{vT1}"); a(f"v_lshlrev_b32 v{vX0}, 4, v{vX0}")
    a(f"v_lshl_add_u32 v{vX0}, v{vT0}, 10, v{vX0}")
    a(f"v_xor_b32 v{vX1}, 64, v{vX0}"); a(f"v_add_u32 v{vX1}, {8192-1024}, v{vX1}")
    a(f"v_lshrrev_b32 v{vT0}, 2, v{vL}"); a(f"v_and_b32 v{vT1}, 3, v{vL}")
    a(f"v_mul_u32_u24 v{vWq}, 3072, v{vT0}"); a(f"v_lshl_add_u32 v{vWq}, v{vT1}, 4, v{vWq}")
    a(f"s_lshl_b32 s{sXo}, s{sRB}, 2"); a(f"s_add_u32 s{sXo}, s{sXo}, s{sI}"); a(f"s_lshl_b32 s{sXo}, s{sXo}, 15")
    a(f"s_lshl_b32 s{sT}, s{sI}, 8"); a(f"s_add_u32 s{sT}, s{sT}, s{sCG}"); a(f"s_mul_i32 s{sQo}, s{sT}, 192")
    a(f"s_lshl_b32 s{sLx}, s{sI}, 12"); a(f"s_mul_i32 s{sLq}, s{sI}, 3072")
    a(f"s_mov_b32 s{sIt}, 0")
    a(f"v_lshlrev_b32 v{vSt}, 4, v{vL}")
    srd_tail(a,sGW,1024)
    a("s_waitcnt lgkmcnt(0)")
    def issue1():
        a(f"s_add_u32 s{sK}, s{sPH}, s{sIt}"); a(f"s_and_b32 s{sK}, s{sK}, 7")
        a(f"s_and_b32 s{sSl}, s{sIt}, 3"); a(f"s_mul_i32 s{sSl}, s{sSl}, {SLOT}")
        a(f"s_add_u32 m0, s{sLx}, s{sSl}")
        a(f"s_lshl_b32 s{sT}, s{sK}, 7"); a(f"s_add_u32 s{sT}, s{sT}, s{sXo}")
        a(f"buffer_load_dwordx4 v{vX0}, {sr(sX,4)}, s{sT} offen lds")
        a(f"buffer_load_dwordx4 v{vX1}, {sr(sX,4)}, s{sT} offen offset:1024 lds")
        a(f"s_add_u32 s{sT}, s{sT}, {16384-2048}")
        a(f"buffer_load_dwordx4 v{vX0}, {sr(sX,4)}, s{sT} offen offset:2048 lds")
        a(f"buffer_load_dwordx4 v{vX1}, {sr(sX,4)}, s{sT} offen offset:3072 lds")
        a(f"s_add_u32 s{sT}, s{sSl}, s{sLq}")
        a(f"s_mul_i32 s{sT2}, s{sK}, {64*3072}")
        for t in range(3):
            a(f"s_add_u32 m0, s{sT}, {16384+t*1024-t*64}")
            if t==0: a(f"s_add_u32 s{sT2}, s{sT2}, s{sQo}")
            a(f"buffer_load_dwordx4 v{vWq}, {sr(sWQ,4)}, s{sT2} offen offset:{t*64} lds")
    issue1()
    a(f"s_mov_b32 m0, {L_GW}"); a(f"s_mov_b32 s{sIt}, 1"); a(f"buffer_load_dwordx4 v{vSt}, {sr(sGW,4)}, 0 offen lds")
    issue1()
    stamp(a,1)
    late_srds(a); late_scalars(a)
    a(f"v_mul_u32_u24 v{vWg}, 2752, v{vT0}"); a(f"v_xor_b32 v{vWu}, 2, v{vT1}")
    a(f"v_lshl_add_u32 v{vWu}, v{vWu}, 4, v{vWg}"); a(f"v_lshl_add_u32 v{vWg}, v{vT1}, 4, v{vWg}")
    a(f"v_add_u32 v{vWg2}, s{sLT}, v{vWg}"); a(f"v_add_u32 v{vWu2}, s{sLT}, v{vWu}")
    a(f"s_mul_i32 s{sFo}, s{sI}, {16*2752}"); a(f"s_lshl_b32 s{sT}, s{sSB}, 6"); a(f"s_add_u32 s{sFo}, s{sFo}, s{sT}")
    a.label("A_L1")
    a("s_waitcnt vmcnt(7)"); a("s_barrier")
    a(f"s_add_u32 s{sIt}, s{sIt}, 1"); a(f"s_cmp_ge_u32 s{sIt}, 8"); a("s_cbranch_scc1 A_P2")
    issue1()
    a("s_branch A_L1")
    yield
    a.label("A_P2")
    a.lg=[]; a.vm=[(("d",7),set())]*7
    a(f"s_lshl_b32 s{sLq}, s{sLq}, 1")
    def dmas(st):
        q=st&3; tg=("d",st)
        a(f"s_add_u32 s{sK}, s{sPH}, {st&7}"); a(f"s_and_b32 s{sK}, s{sK}, 7")
        a(f"s_mul_i32 s{sT2}, s{sK}, {64*2752}"); a(f"s_add_u32 s{sT2}, s{sT2}, s{sFo}")
        for m in range(2):
            for t in range(3):
                v=(vWu2 if m else vWg2) if t==2 else (vWu if m else vWg)
                a(f"s_add_u32 m0, s{sLq}, {q*SLOT+(m*3+t)*1024-t*64}")
                a(f"buffer_load_dwordx4 v{v}, {sr(sWU if m else sWG,4)}, s{sT2} offen offset:{t*64} lds", tg)
    sQB,sKo,sVo,sN = sG_,sA,sB,sD
    korder=[8,0,7,6,5,4,3,2,1,9]
    def setup_attn(part):
        if part==0:
            emit(a,w3_lane_ops(vD,vL,vM,vM2))
            a(f"s_and_b32 s{sT}, s{sI}, 1"); a(f"s_lshl_b32 s{sHead}, s{sCG}, 1"); a(f"s_add_u32 s{sHead}, s{sHead}, s{sT}")
            a(f"s_and_b32 s{sT2}, s{sI}, 2"); a(f"s_lshl_b32 s{sQB}, s{sRB}, 2"); a(f"s_add_u32 s{sQB}, s{sQB}, s{sT2}")
            a(f"v_mov_b32 v{vSy}, {L_SY}"); a(f"v_mov_b32 v{vOne}, 1")
        if part==1:
            a(f"v_mov_b32 v{vGt}, 0x3f803f80"); a(f"v_mov_b32 v{vGt+1}, 0x3f803f80")
            for r in range(0,80,2):
                if r&4: a(f"v_mov_b64 {vr(VF+r,2)}, {vr(vGt,2)}")
        if part==2:
            a(f"v_and_b32 v{vT0}, 31, v{vL}")
            a(f"v_lshrrev_b32 v{vT1}, 5, v{vL}"); a(f"v_lshlrev_b32 v{vT1}, 2, v{vT1}"); a(f"v_sub_u32 v{vT0}, v{vT0}, v{vT1}")
            for r in range(16): a(f"v_cmp_le_i32 {sr(sM+2*r,2)}, {(r&3)+8*(r>>2)}, v{vT0}")
            a(f"v_mov_b32 v{vBig}, 0xffff"); a(f"v_mov_b32 v{vM}, 0xffff0000")
            for i in range(8):
                a(f"v_cndmask_b32 v{MK+i}, 0, v{vBig}, {sr(sM+4*i,2)}")
                a(f"v_cndmask_b32 v{vT1}, 0, v{vM}, {sr(sM+4*i+2,2)}")
                a(f"v_or_b32 v{MK+i}, v{MK+i}, v{vT1}")
            a(f"v_mov_b32 v{vBig}, {f2u(-1e30):#x}"); a(f"v_mov_b32 v{vBig2}, {f2u(2.0**60):#x}")
            a(f"v_and_b32 v{vVo}, 47, v{vL}"); a(f"v_lshlrev_b32 v{vVo}, 4, v{vVo}")
            a(f"v_and_b32 v{vT1}, 16, v{vL}"); a(f"v_lshl_add_u32 v{vVo}, v{vT1}, 6, v{vVo}")
        if part==3:
            a(f"v_and_b32 v{vT0}, 15, v{vL}"); a(f"v_min_u32 v{vT0}, 9, v{vT0}")
            a(f"v_and_b32 v{vT1}, 1, v{vL}"); a(f"v_or_b32 v{vT1}, 8, v{vT1}")
            a(f"v_cmp_le_u32 vcc, 32, v{vL}"); a(f"v_cndmask_b32 v{vT0}, v{vT0}, v{vT1}, vcc")
            a(f"s_sub_u32 s{sT}, s{sQB}, 8"); a(f"v_add_u32 v{vT0}, s{sT}, v{vT0}"); a(f"v_max_i32 v{vT0}, 0, v{vT0}")
            a(f"v_add_u32 v{vT1}, 16, v{vL}"); a(f"v_and_b32 v{vT1}, 48, v{vT1}"); a(f"v_cndmask_b32 v{vT1}, v{vT1}, 0, vcc")
            a(f"v_add_u32 v{vT1}, s{sCG}, v{vT1}"); a(f"v_mul_u32_u24 v{vT1}, 43, v{vT1}"); a(f"v_lshrrev_b32 v{vT1}, 7, v{vT1}")
            a(f"v_lshrrev_b32 v{vM}, 2, v{vT0}"); a(f"v_lshl_add_u32 v{vT1}, v{vM}, 4, v{vT1}"); a(f"v_lshlrev_b32 v{vT1}, 7, v{vT1}")
            a(f"v_and_b32 v{vT0}, 3, v{vT0}"); a(f"v_lshl_add_u32 v{vM2}, v{vT0}, 2, v{vT1}")
            a(f"s_lshl_b32 s{sKo}, s{sHead}, 16")
            a(f"s_and_b32 s{sT}, s{sI}, 1"); a(f"s_lshl_b32 s{sT}, s{sT}, 8")
            a(f"s_lshl_b32 s{sVo}, s{sCG}, 17"); a(f"s_add_u32 s{sVo}, s{sVo}, s{sT}"); a(f"s_add_u32 s{sVo}, s{sVo}, {WS_V}")
            a(f"s_mov_b32 s{sN}, {WS_F}")
        if part==4:
            a(f"v_and_b32 v{vT1}, 31, v{vL}"); a(f"s_and_b32 s{sT}, s{sI}, 2"); a(f"s_lshl_b32 s{sT}, s{sT}, 7"); a(f"s_add_u32 s{sT}, s{sT}, {L_G}")
            a(f"v_lshl_add_u32 v{vT1}, v{vT1}, 2, s{sT}")
            for u in range(2): a(f"ds_read_b32 v{vGt+u}, v{vT1} offset:{u*128}")
            a("s_waitcnt lgkmcnt(0)")
    def unpark():
        a(f"s_add_u32 s{sT}, s{s1K}, {PARK}"); a(f"v_add_u32 v{vT0}, s{sT}, v{vSt}")
        for i in range(6): a(f"ds_read_b128 {vr(PK+4*i,4)}, v{vT0} offset:{i*4096}")
    def qstore(i):
        emit(a,qaddr_ops(i))
        a(f"buffer_store_dwordx4 {vr(PK+4*i,4)}, v{vSt}, {sr(sWS,4)}, s{sT} offen sc1", "qst")
    def vswap(ns):
        for n in ns:
            a.wait(vm=[("v",n)])
            for r in range(4): a(f"v_permlane16_swap_b32 v{VF+8*n+r}, v{VF+8*n+4+r}")
    def a2flag():
        a(f"s_lshl_b32 s{sT3}, s{sI}, 2"); a(f"v_add_u32 v{vT0}, s{sT3}, v{vSy}")
        a("s_waitcnt vmcnt(0)"); a(f"ds_write_b32 v{vT0}, v{vOne} offset:{L_AF-L_SY}")
    def attn_slow():
        for u in range(2):
            Qr=vr(Q+4*u,4); nd=8+u; no=u
            K_=lambda n: vr(KF+4*n,4)
            a(f"s_add_u32 s{sN}, s{sQB}, {u}")
            if u==0: stamp(a,7)
            a(f"{MF} {vr(S0,16)}, {K_(nd)}, {Qr}, 0")
            a(f"{MF} {vr(S1,16)}, {K_(no)}, {Qr}, 0")
            bufs=[CM,O_,S0,S1]
            def smf(d, c="0", buf=None): a(f"{MF} {vr(buf,16)}, {K_(nd-d)}, {Qr}, {c}")
            smf(1,buf=bufs[0]); smf(2,buf=bufs[1])
            a(f"s_cmp_ge_u32 s{sN}, 8"); a(f"s_cbranch_scc1 AT_OLD{u}")
            for r in range(16): a(f"v_mov_b32 v{S1+r}, v{vBig}")
            a.label(f"AT_OLD{u}")
            for r in range(16): a(f"v_cndmask_b32 v{SM+r}, v{S1+r}, v{S0+r}, {sr(sM+2*r,2)}")
            a(f"v_max3_f32 v{vM}, v{SM}, v{SM+1}, v{SM+2}")
            a(f"v_max3_f32 v{vM2}, v{SM+3}, v{SM+4}, v{SM+5}")
            for r in range(6,16,4):
                a(f"v_max3_f32 v{vM}, v{vM}, v{SM+r}, v{SM+r+1}")
                if r+2<16: a(f"v_max3_f32 v{vM2}, v{vM2}, v{SM+r+2}, v{SM+r+3}")
            for d in range(1,8):
                a(f"s_cmp_lt_u32 s{sN}, {d}"); a(f"s_cbranch_scc1 AT_MX{u}")
                if d+2<8: smf(d+2,buf=bufs[(d+1)%4])
                b=bufs[(d-1)%4]
                for r in range(0,16,4):
                    a(f"v_max3_f32 v{vM}, v{vM}, v{b+r}, v{b+r+1}")
                    a(f"v_max3_f32 v{vM2}, v{vM2}, v{b+r+2}, v{b+r+3}")
            a.label(f"AT_MX{u}")
            a(f"v_max_f32 v{vM}, v{vM}, v{vM2}")
            a(f"v_mov_b32 v{vM2}, v{vM}")
            if u==0: a2flag()
            a(f"v_permlane32_swap_b32 v{vM}, v{vM2}")
            a(f"v_max_f32 v{vM}, v{vM}, v{vM2}")
            a(f"v_sub_f32 v{CM}, 0, v{vM}")
            a(f"v_mov_b32 v{CM+1}, v{CM}")
            for r in range(2,16,2): a(f"v_mov_b64 {vr(CM+r,2)}, {vr(CM,2)}")
            sb=[S0,S1]
            a(f"v_sub_f32 v{SM}, v{SM}, v{vM}"); a(f"v_sub_f32 v{SM+1}, v{SM+1}, v{vM}")
            smf(1,vr(CM,16),sb[1])
            for r in range(2,16): a(f"v_sub_f32 v{SM+r}, v{SM+r}, v{vM}")
            for r in range(16): a(f"v_exp_f32 v{SM+r}, v{SM+r}")
            for r in range(8): a(f"v_cvt_pk_bf16_f32 v{P2+r}, v{SM+2*r}, v{SM+2*r+1}")
            for r in range(8): a(f"v_and_b32 v{P+r}, v{P2+r}, v{MK+r}")
            a(f"{MF} {vr(O_,16)}, {vr(VF+8*nd,4)}, {vr(P,4)}, 0")
            for r in range(4): a(f"v_xor_b32 v{P2+r}, v{P2+r}, v{P+r}")
            a(f"{MF} {vr(O_,16)}, {vr(VF+8*nd+4,4)}, {vr(P+4,4)}, {vr(O_,16)}")
            for r in range(4,8): a(f"v_xor_b32 v{P2+r}, v{P2+r}, v{P+r}")
            a(f"{MF} {vr(O_,16)}, {vr(VF+8*no,4)}, {vr(P2,4)}, {vr(O_,16)}"); a(f"{MF} {vr(O_,16)}, {vr(VF+8*no+4,4)}, {vr(P2+4,4)}, {vr(O_,16)}")
            for d in range(1,8):
                a(f"s_cmp_lt_u32 s{sN}, {d}"); a(f"s_cbranch_scc1 AT_FIN{u}")
                b=sb[d&1]; pb=P if d&1 else P2; n=nd-d
                for r in range(4): a(f"v_exp_f32 v{b+r}, v{b+r}")
                if d+1<8: smf(d+1,vr(CM,16),sb[(d+1)&1])
                for r in range(4,9): a(f"v_exp_f32 v{b+r}, v{b+r}")
                for r in range(4): a(f"v_cvt_pk_bf16_f32 v{pb+r}, v{b+2*r}, v{b+2*r+1}")
                for r in range(9,11): a(f"v_exp_f32 v{b+r}, v{b+r}")
                a(f"{MF} {vr(O_,16)}, {vr(VF+8*n,4)}, {vr(pb,4)}, {vr(O_,16)}")
                for r in range(11,16): a(f"v_exp_f32 v{b+r}, v{b+r}")
                for r in range(4,8): a(f"v_cvt_pk_bf16_f32 v{pb+r}, v{b+2*r}, v{b+2*r+1}")
                a(f"{MF} {vr(O_,16)}, {vr(VF+8*n+4,4)}, {vr(pb+4,4)}, {vr(O_,16)}")
            a.label(f"AT_FIN{u}")
            a(f"s_mul_i32 s{sT}, s{sN}, {A3_TB}"); a(f"s_lshl_b32 s{sT2}, s{sHead}, 10"); a(f"s_add_u32 s{sT}, s{sT}, s{sT2}")
            a(f"s_add_u32 s{sT}, s{sT}, {WS_A3+86*1024}")
            a(f"v_rcp_f32 v{vT0}, v{O_+8}")
            a(f"v_mul_f32 v{vT0}, v{vT0}, v{vGt+u}")
            for r in range(8): a(f"v_mul_f32 v{O_+r}, v{O_+r}, v{vT0}")
            for r in range(4): a(f"v_cvt_pk_bf16_f32 v{SM+r}, v{O_+2*r}, v{O_+2*r+1}")
            for r in range(4): a(f"v_min_u32 v{SM+r}, -2, v{SM+r}")
            a(f"buffer_store_dwordx4 {vr(SM,4)}, v{vSt}, {sr(sWS,4)}, s{sT} offen sc1", "ost")
            stamp(a,8+u)
    def attn_fast():
        K_=lambda n: vr(KF+4*n,4)
        sb=[S0,S1]; sOv=0
        def smf(u,d): a(f"{MF} {vr(sb[d&1],16)}, {K_(8+u-d)}, {vr(Q+4*u,4)}, {vr(CM,16)}")
        def head(u):
            for r in range(16): a(f"v_cndmask_b32 v{SM+r}, v{SM+r}, v{S0+r}, {sr(sM+2*r,2)}")
            a(f"v_max3_f32 v{vM}, v{SM}, v{SM+1}, v{SM+2}")
            a(f"v_max3_f32 v{vM2}, v{SM+3}, v{SM+4}, v{SM+5}")
            a(f"v_max3_f32 v{vM}, v{vM}, v{SM+6}, v{SM+7}"); a(f"v_max3_f32 v{vM2}, v{vM2}, v{SM+8}, v{SM+9}")
            a(f"v_max3_f32 v{vM}, v{vM}, v{SM+10}, v{SM+11}"); a(f"v_max3_f32 v{vM2}, v{vM2}, v{SM+12}, v{SM+13}")
            a(f"v_max3_f32 v{vM}, v{vM}, v{SM+14}, v{SM+15}")
            a(f"v_max_f32 v{vM}, v{vM}, v{vM2}")
            a(f"v_mov_b32 v{vM2}, v{vM}")
            a(f"s_mul_i32 s{sT}, s{sQB}, {A3_TB}"); a(f"s_lshl_b32 s{sT2}, s{sHead}, 10")
            a(f"v_permlane32_swap_b32 v{vM}, v{vM2}")
            a(f"v_max_f32 v{vM}, v{vM}, v{vM2}")
            a(f"v_sub_f32 v{CM}, 0, v{vM}")
            a(f"v_sub_f32 v{CM+1}, 0, v{vM}")
            for r in range(2,16,2): a(f"v_mov_b64 {vr(CM+r,2)}, {vr(CM,2)}")
            a(f"v_sub_f32 v{SM}, v{SM}, v{vM}"); a(f"v_sub_f32 v{SM+1}, v{SM+1}, v{vM}")
            smf(u,1)
        def fin(u):
            a(f"s_add_u32 s{sT}, s{sT}, s{sT2}"); a(f"s_add_u32 s{sT}, s{sT}, {WS_A3+86*1024+u*A3_TB}")
            a(f"v_rcp_f32 v{vT0}, v{O_+8}")
            a(f"v_cmp_ngt_f32 vcc, v{vBig2}, v{O_+8}")
            a(f"v_mul_f32 v{vT0}, v{vT0}, v{vGt+u}")
            a("s_branch AT_SLOW" if O.forceslow==u+1 else "s_cbranch_vccnz AT_SLOW")
            for r in range(8): a(f"v_mul_f32 v{O_+r}, v{O_+r}, v{vT0}")
            for r in range(4): a(f"v_cvt_pk_bf16_f32 v{P+r}, v{O_+2*r}, v{O_+2*r+1}")
            for r in range(4): a(f"v_min_u32 v{P+r}, -2, v{P+r}")
            a(f"buffer_store_dwordx4 {vr(P,4)}, v{vSt}, {sr(sWS,4)}, s{sT} offen sc1", "ost")
            stamp(a,8+u)
        def body(u):
            nd=8+u; no=u
            for r in range(2,16): a(f"v_sub_f32 v{SM+r}, v{SM+r}, v{vM}")
            for r in range(16): a(f"v_exp_f32 v{SM+r}, v{SM+r}")
            if u==0: a2flag()
            for r in range(8): a(f"v_cvt_pk_bf16_f32 v{P2+r}, v{SM+2*r}, v{SM+2*r+1}")
            for r in range(6): a(f"v_and_b32 v{P+r}, v{P2+r}, v{MK+r}")
            a(f"{MF} {vr(O_,16)}, {vr(VF+8*nd,4)}, {vr(P,4)}, 0")
            for r in range(6,8): a(f"v_and_b32 v{P+r}, v{P2+r}, v{MK+r}")
            for r in range(4): a(f"v_xor_b32 v{P2+r}, v{P2+r}, v{P+r}")
            a(f"{MF} {vr(O_,16)}, {vr(VF+8*nd+4,4)}, {vr(P+4,4)}, {vr(O_,16)}")
            for r in range(4,8): a(f"v_xor_b32 v{P2+r}, v{P2+r}, v{P+r}")
            pend=[f"{MF} {vr(O_,16)}, {vr(VF+8*no,4)}, {vr(P2,4)}, {vr(O_,16)}", f"{MF} {vr(O_,16)}, {vr(VF+8*no+4,4)}, {vr(P2+4,4)}, {vr(O_,16)}"]
            for d in range(1,8):
                b=sb[d&1]; pb=P if d&1 else P2; n=nd-d
                a(f"v_exp_f32 v{b}, v{b}")
                if len(pend)>1: a(pend.pop(0))
                for r in range(1,4): a(f"v_exp_f32 v{b+r}, v{b+r}")
                a(pend.pop(0))
                for r in range(4,8): a(f"v_exp_f32 v{b+r}, v{b+r}")
                if d<7: smf(u,d+1)
                elif u==0: a(f"{MF} {vr(S0,16)}, {K_(9)}, {vr(Q+4,4)}, 0")
                a(f"v_exp_f32 v{b+8}, v{b+8}")
                for r in range(4): a(f"v_cvt_pk_bf16_f32 v{pb+r}, v{b+2*r}, v{b+2*r+1}")
                for r in range(9,11): a(f"v_exp_f32 v{b+r}, v{b+r}")
                a(f"{MF} {vr(O_,16)}, {vr(VF+8*n,4)}, {vr(pb,4)}, {vr(O_,16)}")
                for r in range(11,14): a(f"v_exp_f32 v{b+r}, v{b+r}")
                if d==7 and u==0: a(f"{MF} {vr(SM,16)}, {K_(1)}, {vr(Q+4,4)}, 0")
                for r in range(14,16): a(f"v_exp_f32 v{b+r}, v{b+r}")
                for r in range(4,8): a(f"v_cvt_pk_bf16_f32 v{pb+r}, v{b+2*r}, v{b+2*r+1}")
                pend=[f"{MF} {vr(O_,16)}, {vr(VF+8*n+4,4)}, {vr(pb+4,4)}, {vr(O_,16)}"]
            a(pend.pop(0))
        stamp(a,7)
        a(f"{MF} {vr(S0,16)}, {K_(8)}, {vr(Q,4)}, 0")
        a(f"{MF} {vr(SM,16)}, {K_(0)}, {vr(Q,4)}, 0")
        head(0); body(0); head(1); fin(0)
        a(f"s_mul_i32 s{sT}, s{sQB}, {A3_TB}")
        body(1); fin(1)
    stages={k:([k+2] if k<O.dbl else [k+2,k+3] if k==O.dbl else [k+3]) for k in range(6,13)}
    t0sched=[{7:[0],10:[1],11:[2,3],12:[4,5,6]},{7:[0],8:[1],10:[2],11:[3,4],12:[5,6]},{10:[0,1],11:[2,3],12:[4,5,6]},{11:[0,1,2],12:[3,4,5,6]},{12:[0,1,2,3,4,5,6]},{7:[0],8:[1],10:[2,3],12:[4,5,6]}][O.t0s]
    a(f"v_and_b32 v{vBig}, 15, v{vL}"); a(f"v_lshlrev_b32 v{vBig}, 2, v{vBig}")
    for k in range(6,13):
        if k==6: a(f"buffer_load_dword v{vP}, v{vBig}, {sr(sDBG,4)}, 0 offen sc1", "init")
        if k==9 and O.park: unpark()
        if k==10 and O.park:
            for i in range(O.qs,6): qstore(i)
        for st in stages[k]: dmas(st)
        if k==6: setup_attn(0)
        if k==9 and O.park:
            a("s_waitcnt lgkmcnt(0)")
            for i in range(O.qs): qstore(i)
        for p in t0sched.get(k,[]): w3_dma(a,p,vD,("t0",p))
        if O.p0<=k<O.p0+4: stamp(a,3+3*(k-O.p0),1)
        if k in (8,9,10,11): setup_attn(k-7)
        if k==O.sigk and O.park: signal(a,0,vT0,"qst")
        a.wait(vm=[("d",k+1)])
        if k==7: poll(a,vP,vBig,sDBG,"0",first_tag="init")
        if O.p0<=k+1<O.p0+4: stamp(a,1+3*(k+1-O.p0),1)
        a("s_barrier")
        if O.p0<=k+1<O.p0+4: stamp(a,2+3*(k+1-O.p0),1)
        if k+1 in (8,13): stamp(a,{8:3,13:4}[k+1])
    a(f"buffer_load_dword v{vP}, v{vM2}, {sr(sWS,4)}, s{sN} offen sc1", "qf")
    a("s_waitcnt vmcnt(1)")
    lds_inc(a,vSy,vOne,L_C14-L_SY)
    poll(a,vP,vM2,sWS,f"s{sN}",first_tag="qf")
    stamp(a,5)
    a(f"s_lshl_b32 s{sT}, s{sQB}, 10"); a(f"s_add_u32 s{sT}, s{sT}, s{sKo}")
    for u in range(2): a(f"buffer_load_dwordx4 {vr(Q+4*u,4)}, v{vSt}, {sr(sWS,4)}, s{sT} offen offset:{u*1024} sc1", ("q",u))
    a(f"s_add_u32 s{sKo}, s{sKo}, {WS_K}")
    for n in korder:
        a(f"s_add_i32 s{sT}, s{sQB}, {n-8}"); a(f"s_max_i32 s{sT}, s{sT}, 0"); a(f"s_lshl_b32 s{sT}, s{sT}, 11"); a(f"s_add_u32 s{sT}, s{sT}, s{sVo}")
        a(f"buffer_load_dwordx4 {vr(VF+8*n,4)}, v{vVo}, {sr(sWS,4)}, s{sT} offen sc1", ("v",n))
        if O.thr: a(f"s_waitcnt vmcnt({O.thr})")
    for n in korder:
        a(f"s_add_i32 s{sT}, s{sQB}, {n-8}"); a(f"s_max_i32 s{sT}, s{sT}, 0"); a(f"s_lshl_b32 s{sT}, s{sT}, 10"); a(f"s_add_u32 s{sT}, s{sT}, s{sKo}")
        a(f"buffer_load_dwordx4 {vr(KF+4*n,4)}, v{vSt}, {sr(sWS,4)}, s{sT} offen sc1", ("k",n))
        if O.thr: a(f"s_waitcnt vmcnt({O.thr})")
    stamp(a,6)
    lds_poll(a,vSy,vT1,4,L_C13-L_SY)
    if O.ap: a("s_setprio 3")
    prep=[]
    def qscale(h):
        a.wait(vm=[("q",1)])
        for r in range(4*h,4*h+4):
            a(f"v_lshlrev_b32 v{S0+2*r}, 16, v{Q+r}"); a(f"v_and_b32 v{S0+2*r+1}, 0xffff0000, v{Q+r}")
        for r in range(8*h,8*h+8): a(f"v_mul_f32 v{S0+r}, {f2u(0.25*LOG2E):#x}, v{S0+r}")
        for r in range(4*h,4*h+4): a(f"v_cvt_pk_bf16_f32 v{Q+r}, v{S0+2*r}, v{S0+2*r+1}")
    prep=[lambda:qscale(0),lambda:qscale(1)]+[(lambda i=i: vswap(korder[2*i:2*i+2])) for i in range(5)]
    for i,p in enumerate(A2LIST[:O.nA2]):
        if O.thrA: a(f"s_waitcnt vmcnt({O.thrA})")
        w3_dma(a,p,vD,("a2",p))
        if prep and not O.ap: prep.pop(0)()
    if O.afl: a2flag()
    if O.ap: a("s_setprio 0")
    stamp(a,10)
    for f in prep: f()
    a.wait(vm=[("k",n) for n in range(10)])
    if O.prio2: a("s_setprio 1")
    a(f"s_cmp_lt_u32 s{sQB}, 8"); a("s_cbranch_scc1 AT_SLOW")
    vm0=list(a.vm)
    attn_fast()
    a.label("AT_DONE")
    yield
    a.label("AT_SLOW"); a.vm=list(vm0); a.lg=[]
    attn_slow(); a("s_branch AT_DONE")
    yield

def kernel():
    a=Asm()
    a("s_getpc_b64 s[66:67]")
    a(f"s_load_dwordx2 {sr(sX,2)}, s[0:1], 0"); a(f"s_load_dwordx2 {sr(sWQ,2)}, s[0:1], 8")
    a("s_cmp_ge_u32 s2, 256"); a("s_cbranch_scc1 END")
    a("v_lshrrev_b32 v1, 6, v0")
    for d,off in ((sGW,56),(sWS,80),(sDBG,72),(sWG,32),(sWU,40),(sWD,48),(sWO,16),(sOUT,64)):
        a(f"s_load_dwordx2 {sr(d,2)}, s[0:1], {off}")
    if O.stamp:
        a(f"v_mov_b32 v{vSTAMP}, 0"); stamp(a,0)
    a(f"v_readfirstlane_b32 s{sW}, v1")
    srd_tail(a,sX,2*MB); srd_tail(a,sWQ,512*3072)
    a(f"s_bfe_u32 s{sRB}, s2, 0x10002"); a(f"s_lshl_b32 s{sRB}, s{sRB}, 3")
    a(f"s_bfe_u32 s{sT}, s2, 0x30003"); a(f"s_add_u32 s{sRB}, s{sRB}, s{sT}")
    a(f"s_and_b32 s{sCG}, s2, 3"); a(f"s_lshl_b32 s{sCG}, s{sCG}, 2")
    a(f"s_lshr_b32 s{sT}, s2, 6"); a(f"s_add_u32 s{sCG}, s{sCG}, s{sT}")
    if O.rot==1:
        a(f"s_lshl_b32 s{sPH}, s{sT}, 1"); a(f"s_add_u32 s{sPH}, s{sPH}, s{sRB}"); a(f"s_and_b32 s{sT}, s2, 1"); a(f"s_add_u32 s{sPH}, s{sPH}, s{sT}")
    elif O.rot==4:
        a(f"s_and_b32 s{sPH}, s2, 7")
    elif O.rot==5:
        a(f"s_add_u32 s{sPH}, s{sT}, s{sRB}"); a(f"s_lshl_b32 s{sPH}, s{sPH}, 2"); a(f"s_and_b32 s{sT}, s2, 3"); a(f"s_add_u32 s{sPH}, s{sPH}, s{sT}")
    else: a(f"s_mov_b32 s{sPH}, 0")
    a(f"s_and_b32 s{sI}, s{sW}, 3")
    a(f"s_cmp_lt_u32 s{sW}, 4"); a("s_cbranch_scc1 G_WAVE")
    lg=list(a.lg)
    A=a_wave(a); G=g_wave(a)
    next(A)
    a.label("G_WAVE"); a.vm=[]; a.lg=list(lg)
    next(G)
    next(A)
    a.label("FINAL")
    final_reduce(a)
    a.label("END")
    a("s_endpgm")
    next(A)
    next(G)
    return a

PROMO=("v_exp_f32","v_rcp_f32","v_mul_f32","v_add_f32","v_sub_f32","v_and_b32","v_xor_b32","v_or_b32","v_mov_b32","v_max_f32","v_lshlrev_b32","v_mov_b64","v_add_u32","v_lshrrev_b32","v_min_f32")
def align_pass(a):
    import subprocess, re, tempfile
    d=tempfile.mkdtemp()
    open(d+"/a.s","w").write('.amdgcn_target "amdgcn-amd-amdhsa--gfx950"\n.text\nK:\n'+a.text())
    subprocess.run(["clang","-x","assembler","-target","amdgcn-amd-amdhsa","-mcpu=gfx950","-c",d+"/a.s","-o",d+"/a.o"],check=True)
    dis=subprocess.run(["llvm-objdump","-d","--mcpu=gfx950",d+"/a.o"],capture_output=True,text=True).stdout
    sizes=[4*len(m.group(1).split()) for m in re.finditer(r"// [0-9A-F]{12}: ((?:[0-9A-F]{8} ?)+)",dis)]
    idx=[i for i,l in enumerate(a.out) if l.startswith("  ") and not l.startswith("  ;")]
    assert len(idx)==len(sizes),(len(idx),len(sizes))
    off=0; cand=None; n=0; bad=0
    for i,sz in zip(idx,sizes):
        mn=a.out[i].split()[0]
        if sz>=8:
            if off%8==4:
                if cand is not None:
                    m2=a.out[cand].split()[0]; a.out[cand]=a.out[cand].replace(m2,m2+"_e64",1); off+=4; n+=1
                else: bad+=1
            cand=None
        elif mn in PROMO:
            if off%8==0 or cand is None: cand=i
        off+=sz
    print("align: promoted",n,"left misaligned",bad,"bytes",off,file=sys.stderr)

def build():
    a=kernel()
    if O.align: align_pass(a)
    print("instrs",len(a.seq),"nops",a.nops,file=sys.stderr)
    K=NAME+"_kernel"
    s=f"; @launch grid=(256,1,1) block=(512,1,1) lds={LDS_SIZE}\n"
    s+='.amdgcn_target "amdgcn-amd-amdhsa--gfx950"\n'
    s+=f".text\n.p2align 12\n.globl {K}\n.p2align 8\n.type {K},@function\n{K}:\n"
    s+=a.text()
    s+="  s_endpgm\n.fill 8192, 4, 0xBF800000\n"
    s+=f""".section .rodata,"a"
.p2align 6
.amdhsa_kernel {K}
  .amdhsa_next_free_vgpr 256
  .amdhsa_next_free_sgpr 102
  .amdhsa_accum_offset 256
  .amdhsa_group_segment_fixed_size 0
  .amdhsa_kernarg_size 88
  .amdhsa_user_sgpr_count 2
  .amdhsa_user_sgpr_kernarg_segment_ptr 1
  .amdhsa_system_sgpr_workgroup_id_x 1
.end_amdhsa_kernel
"""
    return s

if __name__=="__main__":
    args=sys.argv[1:]
    out=f"cdna_kernels/{NAME}.s"
    for x in args:
        if x=="--stamp": O.stamp="s_memrealtime"
        elif x=="--cyc": O.stamp="s_memtime"
        elif x.startswith("--"):
            k,v=x[2:].split("="); assert hasattr(O,k); setattr(O,k,int(v))
        else: out=x
    open(out,"w").write(build())
```

```python
import sys, math, struct
sys.path.insert(0, "work")
from asmlib import *

NAME = "gated_mix__sliding_block__swiglu_ffn__prompt"
MB = 1<<20
WS_Q, WS_K, WS_V, WS_A3, WS_F, WS_ST = 0, 2*MB, 4*MB, 6*MB, 14*MB, 15*MB
WS_SIZE = 16*MB
A3_TB = 118*1024
LOG2E = math.log2(math.e)
def f2u(f): return struct.unpack("<I", struct.pack("<f", f))[0]
MF = "v_mfma_f32_32x32x16_bf16"
MF16 = "v_mfma_f32_16x16x32_bf16"
SLOT=28672
L_GW, L_Z, L_G, L_SY, LDS_SIZE = 159744, 160768, 161792, 162304, 162560
L_CNT, L_C14, L_C13, L_OF, L_AF = L_SY, L_SY+4, L_SY+8, L_SY+12, L_SY+16
PARK=33*4096
SPIN_MAX = 200000
OOB = 0x40000000

class Opt:
    stamp=None; probe=0; p0=9
    rot=5; codepf=1; warm=1; wst=0; outaux=2; sleep=2; align=1; forceslow=0
    NA=4; dl=1; thr=0; thrA=6; thr3=6; nA2=0; early=2; hpos=3; qs=4; w2=1; prio2=2; t0s=5; osl=4; dbl=11; park=0; qsig=24; sigk=10; rsl=1; pst=-1; wmode=1; wn=8; wsp=6; ap=0; afl=0; pa=-1; ord=1
O=Opt()

sWS,sX,sWQ,sWG,sWU,sWD,sWO,sOUT,sGW,sDBG = 4,8,12,16,20,24,28,32,36,40
sW,sI,sRB,sCG,sSB,sPH,sT,sT2,sT3,sTR,sTC = 44,45,46,47,48,49,50,51,52,53,54
sA,sB,sC,sD,sE,sF,sG_,sH,sLT = 55,56,57,58,59,60,61,62,63
sM=64
s1K,sDo,sHead,sRo = 98,99,100,101
vSTAMP=11

def stamp(a, idx, probe=0):
    if O.stamp and (probe==O.probe or idx in (0,15)):
        a(f"{O.stamp} s[96:97]"); a("s_waitcnt lgkmcnt(0)")
        a(f"v_writelane_b32 v{vSTAMP}, s96, {idx}")
def stamp_flush(a, vtmp):
    if O.stamp:
        a("s_waitcnt vmcnt(0)"); stamp(a,15)
        a(f"s_lshl_b32 s{sT}, s2, 3"); a(f"s_add_u32 s{sT}, s{sT}, s{sW}"); a(f"s_lshl_b32 s{sT}, s{sT}, 6")
        a(f"s_add_u32 s{sT}, s{sT}, {WS_ST}")
        a(f"v_mbcnt_lo_u32_b32 v{vtmp}, -1, 0"); a(f"v_lshlrev_b32 v{vtmp}, 2, v{vtmp}")
        a("s_mov_b64 exec, 0xffff")
        a(f"buffer_store_dword v{vSTAMP}, v{vtmp}, {sr(sWS,4)}, s{sT} offen")

def srd_tail(a, d, size):
    a(f"s_mov_b32 s{d+2}, {size:#x}"); a(f"s_mov_b32 s{d+3}, 0x20000")
def late_srds(a):
    for d,size in ((sWS,WS_SIZE),(sDBG,256),(sWG,512*2752),(sWU,512*2752),(sWD,1376*1024),(sWO,512*1024),(sOUT,2*MB)):
        srd_tail(a,d,size)
def late_scalars(a):
    a(f"s_mul_i32 s{sT}, s{sCG}, 43"); a(f"s_lshr_b32 s{sT}, s{sT}, 7")
    a(f"s_mul_i32 s{sSB}, s{sCG}, 3"); a(f"s_sub_u32 s{sSB}, s{sSB}, s{sT}")
    a(f"s_mul_i32 s{sT}, s{sT}, 3"); a(f"s_sub_u32 s{sT}, s{sCG}, s{sT}"); a(f"s_cmp_eq_u32 s{sT}, 2")
    a(f"s_cselect_b32 s{sLT}, {OOB:#x}, 0")
    a(f"s_and_b32 s{sTR}, s2, 7"); a(f"s_lshl_b32 s{sTR}, s{sTR}, 2"); a(f"s_bfe_u32 s{sT}, s2, 0x20003"); a(f"s_add_u32 s{sTR}, s{sTR}, s{sT}")
    a(f"s_lshr_b32 s{sTC}, s2, 5")
    a(f"s_lshl_b32 s{s1K}, s{sI}, 10")
    a(f"s_lshl_b32 s{sDo}, s{sI}, 14"); a(f"s_lshl_b32 s{sT}, s{sTC}, 7"); a(f"s_add_u32 s{sDo}, s{sDo}, s{sT}")
    a(f"s_lshl_b32 s{sRo}, s{sTR}, 1"); a(f"s_add_u32 s{sRo}, s{sRo}, s{sTC}"); a(f"s_and_b32 s{sRo}, s{sRo}, 7")
    a(f"s_mul_i32 s{sH}, s{sRo}, 21"); a(f"s_lshr_b32 s{sH}, s{sH}, 3")
    a(f"s_lshl_b32 s{sH}, s{sH}, 16"); a(f"s_lshl_b32 s{sRo}, s{sRo}, 16")

_uid=[0]
def uid(p): _uid[0]+=1; return f"{p}{_uid[0]}"
def poll(a, vdst, vaddr, srd, soff, first_tag=None, expect=1, sleep=None):
    L=uid("PL")
    if first_tag is not None:
        a.wait(vm=[first_tag])
        a(f"v_cmp_ne_u32 vcc, {expect}, v{vdst}")
        a(f"s_cbranch_vccz {L}_D")
    a(f"s_mov_b32 s{sT3}, {SPIN_MAX}")
    keep=list(a.vm)
    a.label(L)
    a(f"buffer_load_dword v{vdst}, v{vaddr}, {sr(srd,4)}, {soff} offen sc1")
    a("s_waitcnt vmcnt(0)")
    a(f"v_cmp_ne_u32 vcc, {expect}, v{vdst}")
    a(f"s_cbranch_vccz {L}_D")
    a(f"s_sleep {sleep or O.sleep}")
    a(f"s_sub_u32 s{sT3}, s{sT3}, 1")
    a(f"s_cmp_lg_u32 s{sT3}, 0")
    a(f"s_cbranch_scc1 {L}")
    a.label(L+"_D")
    if first_tag is not None: a.vm=keep
def lds_poll(a, vaddr, vdst, expect, off=0):
    L=uid("LP")
    a(f"s_mov_b32 s{sT3}, {SPIN_MAX}")
    a.label(L); a(f"ds_read_b32 v{vdst}, v{vaddr} offset:{off}"); a("s_waitcnt lgkmcnt(0)")
    a(f"v_cmp_ne_u32 vcc, {expect}, v{vdst}"); a(f"s_cbranch_vccz {L}_D"); a("s_sleep 1")
    a(f"s_sub_u32 s{sT3}, s{sT3}, 1"); a(f"s_cmp_lg_u32 s{sT3}, 0"); a(f"s_cbranch_scc1 {L}")
    a.label(L+"_D")
def lds_inc(a, vaddr, vone, off):
    a("s_mov_b64 exec, 1"); a(f"ds_add_u32 v{vaddr}, v{vone} offset:{off}"); a("s_mov_b64 exec, -1")
def emit(a, ops, tag=None):
    for op in ops:
        for o in (op if isinstance(op,tuple) else (op,)): a(o,tag)

def signal(a, kind, vtmp, tag=None):
    a(f"s_lshl_b32 s{sT}, s{sRB}, 4"); a(f"s_add_u32 s{sT}, s{sT}, s{sCG}"); a(f"s_lshl_b32 s{sT}, s{sT}, 5")
    a(f"s_add_u32 s{sT}, s{sT}, s{sI}"); a(f"s_lshl_b32 s{sT}, s{sT}, 2"); a(f"s_add_u32 s{sT}, s{sT}, {WS_F+kind*32768}")
    a(f"v_mov_b32 v{vtmp}, 1")
    a("s_mov_b64 exec, 1")
    if tag: a.wait(vm=[tag])
    else: a("s_waitcnt vmcnt(0)")
    a(f"buffer_store_dword v{vtmp}, off, {sr(sWS,4)}, s{sT} sc1", "flag")
    a("s_mov_b64 exec, -1")

def flag_lane_ops(vF, vL, t0, t1, sdst, kind):
    return [f"v_and_b32 v{t0}, 15, v{vL}", f"v_bfe_u32 v{t1}, v{vL}, 4, 1", f"v_lshlrev_b32 v{t1}, 2, v{t1}", f"v_lshl_add_u32 v{vF}, v{t0}, 7, v{t1}",
            f"s_lshr_b32 s{sdst}, s{sTR}, 1", f"s_lshl_b32 s{sdst}, s{sdst}, 11", f"s_and_b32 s{sT}, s{sTR}, 1", f"s_lshl_b32 s{sT}, s{sT}, 3",
            f"s_add_u32 s{sdst}, s{sdst}, s{sT}", f"s_add_u32 s{sdst}, s{sdst}, {WS_F+kind*32768}"]
def qaddr_ops(i):
    t,e=i>>1,i&1
    o=[f"s_mul_i32 s{sT}, s{sCG}, 3", f"s_add_u32 s{sT}, s{sT}, {t}", f"s_lshl_b32 s{sT2}, s{sRB}, 2", f"s_add_u32 s{sT2}, s{sT2}, s{sI}",
       (f"s_cmp_ge_u32 s{sT}, 32", f"s_cselect_b32 s{sT3}, 11, 10"), f"s_lshl_b32 s{sT2}, s{sT2}, s{sT3}"]
    if e: o+=[(f"s_cmp_ge_u32 s{sT}, 32", f"s_cselect_b32 s{sT3}, 1, 64"), f"s_lshl_b32 s{sT3}, s{sT3}, 10", f"s_add_u32 s{sT2}, s{sT2}, s{sT3}"]
    return o+[f"s_lshl_b32 s{sT}, s{sT}, 17", f"s_add_u32 s{sT}, s{sT}, s{sT2}"]
def w3_lane_ops(vD, vL, t0, t1):
    return [f"v_bfe_u32 v{t0}, v{vL}, 4, 1", f"v_lshlrev_b32 v{t0}, 2, v{t0}", f"v_and_b32 v{t1}, 7, v{vL}", f"v_xor_b32 v{t0}, v{t0}, v{t1}",
            f"v_lshlrev_b32 v{t0}, 4, v{t0}", f"v_lshrrev_b32 v{t1}, 3, v{vL}", f"v_lshl_add_u32 v{vD}, v{t1}, 10, v{t0}",
            f"v_add_u32 v{vD}, s{sDo}, v{vD}", f"v_add_u32 v{vD+1}, 8192, v{vD}"]

ROWS = list(range(28,39))+[6,13,20] + [0,1,2,3,4,5,7,8,9,10,11,12] + [14,15,16,17,18,19,21,22,23,24,25,26]
NRES=19; NT0=7; NREG=11; NS3=30
LOAD=[0,1,2,3,4,22,23, 5,6,7,8,9,10, 11,12,13,14,15,16, 17,18,19,20,21,24,25,26,27,28,29]
POS={n:p for p,n in enumerate(LOAD)}
A2LIST=list(range(7,13))+list(range(19,26))
def row_of(p,e): return ROWS[2*(p%NRES)+e]
def rot_off(n):
    if n<21: return [f"s_add_u32 s{sT2}, s{sH}, {n<<16}", f"s_add_u32 s{sT3}, s{sH}, {((n-21)<<16)&0xffffffff:#x}", f"s_min_u32 s{sT2}, s{sT2}, s{sT3}"]
    if n==21: return [f"s_and_b32 s{sT2}, s{sI}, 2", f"s_lshl_b32 s{sT2}, s{sT2}, 14", f"s_sub_u32 s{sT2}, {21<<16}, s{sT2}"]
    return [f"s_add_u32 s{sT2}, s{sRo}, {(n-22)<<16}", f"s_and_b32 s{sT2}, s{sT2}, {7<<16}"]
def w3_dma(a, p, vD, tag):
    n=LOAD[p]; R=sWD if n<22 else sWO
    a(f"s_add_u32 m0, s{s1K}, {row_of(p,0)*4096}")
    emit(a,rot_off(n))
    a(f"buffer_load_dwordx4 v{vD}, {sr(R,4)}, s{sT2} offen lds", tag)
    a(f"s_add_u32 m0, s{s1K}, {row_of(p,1)*4096}")
    a(f"buffer_load_dwordx4 v{vD+1}, {sr(R,4)}, s{sT2} offen lds", tag)

def final_reduce(a):
    vL,vA,vO,B = 1,2,6,16
    a(f"v_mbcnt_lo_u32_b32 v{vL}, -1, 0"); a(f"v_mbcnt_hi_u32_b32 v{vL}, -1, v{vL}")
    a(f"v_lshrrev_b32 v3, 3, v{vL}")
    a(f"v_bfe_u32 v4, v{vL}, 4, 1"); a(f"v_bfe_u32 v5, v{vL}, 3, 1"); a(f"v_lshl_or_b32 v4, v5, 1, v4")
    a(f"v_and_b32 v5, 4, v3"); a(f"v_or_b32 v4, v4, v5")
    a(f"v_and_b32 v5, 3, v{vL}"); a(f"v_lshlrev_b32 v5, 1, v5"); a(f"v_xor_b32 v4, v4, v5"); a(f"v_lshlrev_b32 v4, 4, v4")
    a(f"v_lshl_add_u32 v{vA}, v3, 7, v4")
    a(f"v_bfe_u32 v5, v{vL}, 2, 1"); a(f"v_lshl_add_u32 v{vA}, v5, 14, v{vA}")
    a(f"s_lshr_b32 s{sT}, s{sW}, 2"); a(f"s_lshl_b32 s{sT}, s{sT}, 15"); a(f"s_lshl_b32 s{sT2}, s{sI}, 12"); a(f"s_add_u32 s{sT}, s{sT}, s{sT2}")
    a(f"v_add_u32 v{vA}, s{sT}, v{vA}")
    a(f"v_and_b32 v5, 7, v{vL}"); a(f"v_lshlrev_b32 v5, 4, v5"); a(f"v_lshl_add_u32 v{vO}, v3, 10, v5")
    a(f"v_xor_b32 v{vA+1}, 16, v{vA}")
    a(f"s_lshl_b32 s{sT}, s{sTR}, 16"); a(f"s_lshl_b32 s{sT2}, s{sTC}, 7"); a(f"s_add_u32 s{sT}, s{sT}, s{sT2}")
    a(f"s_lshl_b32 s{sT2}, s{sW}, 13"); a(f"s_add_u32 s{sT}, s{sT}, s{sT2}")
    a("s_waitcnt lgkmcnt(0)"); a("s_barrier")
    stamp(a,13)
    for w in range(4):
        for hf in range(2):
            a(f"ds_read_b128 {vr(B+8*w+4*hf,4)}, v{vA+hf} offset:{w*1024}", ("rr",w))
    a.wait(lg=[("rr",1)])
    for r in range(0,8,2): a(f"v_pk_add_f32 {vr(B+r,2)}, {vr(B+r,2)}, {vr(B+8+r,2)}")
    a.wait(lg=[("rr",3)])
    for r in range(0,8,2): a(f"v_pk_add_f32 {vr(B+16+r,2)}, {vr(B+16+r,2)}, {vr(B+24+r,2)}")
    for r in range(0,8,2): a(f"v_pk_add_f32 {vr(B+r,2)}, {vr(B+r,2)}, {vr(B+16+r,2)}")
    for r in range(4): a(f"v_cvt_pk_bf16_f32 v{B+8+r}, v{B+2*r}, v{B+2*r+1}")
    aux=[""," sc1"," nt"," sc0 sc1"][O.outaux]
    a(f"buffer_store_dwordx4 {vr(B+8,4)}, v{vO}, {sr(sOUT,4)}, s{sT} offen{aux}", "out")
    stamp(a,14)
    stamp_flush(a,3)

def g_wave(a):
    vSt,vXa,vTm,vTq,vT2 = 0,1,3,5,7
    WB,NW,ACC,XR = 12,5,32,128
    GF,GA,vGb,vGa = 80,88,92,93
    vC,vS2,vPk,vSy = 4,3,5,6
    sSt,sK = sB,sC
    t0,t1,vL = 12,13,14
    a(f"v_and_b32 v{vL}, 63, v0")
    if O.codepf:
        a(f"s_lshr_b32 s{sT}, s2, 3"); a(f"s_lshl_b32 s{sT}, s{sT}, 7"); a(f"s_lshl_b32 s{sT2}, s{sI}, 14"); a(f"s_add_u32 s{sT}, s{sT}, s{sT2}")
        a(f"v_lshl_add_u32 v{t0}, v{vL}, 12, s{sT}")
        a("s_mov_b64 exec, 15")
        a(f"global_load_dword v97, v{t0}, s[66:67]", "cpf")
        a("s_mov_b64 exec, -1")
    late_srds(a); late_scalars(a)
    a(f"v_lshlrev_b32 v{vSt}, 4, v{vL}")
    a(f"v_and_b32 v{t0}, 31, v{vL}"); a(f"v_lshrrev_b32 v{t1}, 5, v{vL}")
    a(f"v_bfe_u32 v{vXa}, v{vL}, 1, 3"); a(f"v_xor_b32 v{vXa}, v{vXa}, v{t1}"); a(f"v_lshlrev_b32 v{vXa}, 4, v{vXa}")
    a(f"v_lshl_add_u32 v{vXa}, v{t0}, 7, v{vXa}")
    a(f"s_lshl_b32 s{sT}, s{sI}, 12"); a(f"v_add_u32 v{vXa}, s{sT}, v{vXa}"); a(f"v_add_u32 v{vXa+1}, {2*SLOT}, v{vXa}")
    a(f"v_lshrrev_b32 v{vGb}, 4, v{vL}"); a(f"v_xor_b32 v{vGb}, v{vGb}, v{vL}"); a(f"v_and_b32 v{vGb}, 1, v{vGb}")
    a(f"v_lshlrev_b32 v{vGb}, 10, v{vGb}"); a(f"v_lshl_add_u32 v{vGb}, v{t1}, 4, v{vGb}"); a(f"v_add_u32 v{vGb}, {L_GW}, v{vGb}")
    a(f"v_bfe_u32 v{t0}, v{vL}, 2, 2"); a(f"v_lshl_add_u32 v{t0}, v{t1}, 3, v{t0}"); a(f"v_lshlrev_b32 v{t0}, 6, v{t0}")
    a(f"v_and_b32 v{t1}, 3, v{vL}"); a(f"v_lshl_add_u32 v{t0}, v{t1}, 3, v{t0}")
    a(f"v_bfe_u32 v{t1}, v{vL}, 4, 1")
    a(f"v_lshl_add_u32 v{t0}, v{t1}, 5, v{t0}")
    a(f"v_add_u32 v{vTq}, 16384, v{t0}"); a(f"v_add_u32 v{vTq+1}, {16384+2*SLOT}, v{t0}")
    a(f"v_mul_u32_u24 v{t1}, 3072, v{t1}"); a(f"v_add_u32 v{vT2}, v{t0}, v{t1}")
    a(f"v_xor_b32 v{vT2+1}, 32, v{vT2}")
    a(f"v_add_u32 v{vT2+2}, {2*SLOT}, v{vT2}"); a(f"v_add_u32 v{vT2+3}, {2*SLOT}, v{vT2+1}")
    a(f"v_cmp_ne_u32 s[64:65], 0, v{t1}")
    for r in (16,17,18,19): a(f"v_mov_b32 v{r}, 0")
    a(f"v_add_u32 v{t0}, {L_Z}, v{vSt}"); a(f"ds_write_b128 v{t0}, v[16:19]")
    a(f"v_mov_b32 v{t0}, {L_SY}"); a(f"ds_write_b128 v{t0}, v[16:19]"); a(f"ds_write_b128 v{t0}, v[16:19] offset:16")
    a("s_waitcnt lgkmcnt(0)")
    a(f"s_lshl_b32 s{sT}, s{sCG}, 2"); a(f"s_add_u32 s72, s{sT}, s{sI}"); a(f"s_cmp_lg_u32 s72, 3"); a("s_cbranch_scc1 G_NOINIT")
    a(f"v_and_b32 v{t0}, 15, v{vL}"); a(f"v_lshrrev_b32 v{t1}, 4, v{vL}"); a(f"v_lshlrev_b32 v{t0}, 7, v{t0}"); a(f"v_lshl_add_u32 v{t0}, v{t1}, 15, v{t0}")
    a(f"s_lshl_b32 s{sT}, s{sRB}, 11"); a(f"s_add_u32 s{sT}, s{sT}, {WS_F}")
    a("s_mov_b32 exec_hi, 0xffff")
    a(f"buffer_store_dwordx4 v[16:19], v{t0}, {sr(sWS,4)}, s{sT} offen sc1")
    a("s_mov_b32 exec_hi, -1")
    a.label("G_NOINIT")
    for r in (104,105,106,107): a(f"v_mov_b32 v{r}, -1")
    a(f"s_and_b32 s{sT2}, s{sI}, 2"); a(f"s_lshl_b32 s{sT}, s{sRB}, 2"); a(f"s_add_u32 s{sT}, s{sT}, s{sT2}"); a(f"s_mul_i32 s{sT}, s{sT}, {A3_TB}")
    a(f"s_and_b32 s{sT2}, s{sI}, 1"); a(f"s_lshl_b32 s{sT3}, s{sCG}, 1"); a(f"s_add_u32 s{sT2}, s{sT2}, s{sT3}"); a(f"s_lshl_b32 s{sT2}, s{sT2}, 10")
    a(f"s_add_u32 s{sT}, s{sT}, s{sT2}"); a(f"s_add_u32 s82, s{sT}, {WS_A3+86*1024}"); a(f"s_add_u32 s83, s82, {A3_TB}")
    def poison():
        for i in range(2): a(f"buffer_store_dwordx4 v[104:107], v{vSt}, {sr(sWS,4)}, s{82+i} offen sc1")
    if O.warm:
        a(f"s_cmp_eq_u32 s{sI}, 1"); a(f"s_cselect_b32 s68, s{sWU}, s{sWG}"); a(f"s_cselect_b32 s69, s{sWU+1}, s{sWG+1}")
        a(f"s_cmp_eq_u32 s{sI}, 2"); a(f"s_cselect_b32 s68, s{sWD}, s68"); a(f"s_cselect_b32 s69, s{sWD+1}, s69")
        a(f"s_mov_b32 s70, {1376*1024}")
        a(f"s_cmp_eq_u32 s{sI}, 3"); a(f"s_cselect_b32 s68, s{sWO}, s68"); a(f"s_cselect_b32 s69, s{sWO+1}, s69")
        a(f"s_cselect_b32 s70, {512*1024}, s70"); a("s_mov_b32 s71, 0x20000")
        a(f"s_mul_i32 s{sT}, s2, {43*128}")
        a(f"v_lshl_add_u32 v98, v{vL}, 7, s{sT}")
    def warm2():
        if O.warm:
            a(f"s_mov_b32 exec_hi, 0x7ff"); a(f"buffer_load_dword v99, v98, s[68:71], 0 offen"); a(f"s_mov_b32 exec_hi, -1")
    if O.wmode==1: a(f"s_lshr_b32 s84, s2, 3"); a(f"s_and_b32 s84, s84, {O.wn-1}")
    if O.wmode==2: a(f"s_mov_b32 s84, s{sI}")
    if O.wmode==3: a(f"s_and_b32 s84, s2, {O.wn-1}")
    def warm_slot(k):
        L=uid("GW"); a(f"s_cmp_lg_u32 s84, {k}"); a(f"s_cbranch_scc1 {L}"); warm2()
        if O.pst==-1: poison()
        a.label(L)
    def g_publish():
        a(f"s_cmp_lg_u32 s72, 3"); a("s_cbranch_scc1 G_NOPUB")
        a(f"s_lshl_b32 s{sT}, s{sRB}, 2"); a("v_mov_b32 v100, 1"); a("s_mov_b64 exec, 1"); a("s_waitcnt vmcnt(0)")
        a(f"buffer_store_dword v100, off, {sr(sDBG,4)}, s{sT} sc1"); a("s_mov_b64 exec, -1")
        a.label("G_NOPUB")
    if O.wst<0 and not O.wmode: warm2()
    if O.wst<0 and O.wmode: warm_slot(0)
    if not O.park:
        for i in range(6): emit(a,qaddr_ops(i)); a(f"s_mov_b32 s{76+i}, s{sT}")
    a("s_setprio 2")
    a(f"s_cmp_eq_u32 s{sCG}, 10"); a("s_cbranch_scc1 G_V1")
    a(f"s_cmp_gt_u32 s{sCG}, 10"); a("s_cbranch_scc1 G_V2")
    a("s_branch G_V0")
    yield

    seq=[]
    for st in range(8):
        for j in range(4):
            for t in range(3): seq.append((st,j,t))
    for j in range(4):
        for u in (3,4,5): seq.append((8,j,u))
    for u in (0,1,2):
        for j in range(4): seq.append((8,j,u))
    for st in range(9,14):
        for j in range(4):
            for u in range(6): seq.append((st,j,u))
    MT=len(seq)
    for u in range(6):
        for st in (14,15):
            for j in range(4): seq.append((st,j,u))
    N=len(seq); AH=NW-1; M8=96
    first={}
    for m,(st,j,t) in enumerate(seq): first.setdefault(st,m)
    ool=[]
    def reads(m):
        st,j,t=seq[m]; q=st&3; wb=WB+4*(m%NW); tg=("r",m)
        if first[st]==m and st<14:
            if O.dbl<=st<13: a("s_waitcnt lgkmcnt(0)")
            if O.p0<=st<O.p0+4: stamp(a,1+3*(st-O.p0),1)
            a("s_barrier")
            if O.p0<=st<O.p0+4: stamp(a,2+3*(st-O.p0),1)
            if st in (0,1,8,9): stamp(a,{0:1,1:2,8:3,9:4}[st])
            if st<9: stamp(a,2+st,3)
        if m==MT:
            a.wait(lg=["c14"])
            a(f"v_cmp_ne_u32 vcc, 4, v2"); a("s_cbranch_vccnz G_W14"); a.label("G_R14")
            def w14():
                a.label("G_W14"); a.lg=[]; lds_poll(a,vSy,2,4,L_C14-L_SY); a("s_branch G_R14")
            ool.append(w14)
            stamp(a,5); stamp(a,1,4)
        if st<8:
            if t==0:
                k=st*4+j; tm=vTm+(k&1)
                if j: a(f"v_xor_b32 v{tm}, {32*j}, v{vXa+(q>>1)}")
                else:
                    a(f"s_add_u32 s{sK}, s{sPH}, {st}"); a(f"s_and_b32 s{sK}, s{sK}, 7"); a(f"s_lshl_b32 s{sK}, s{sK}, 7")
                    a(f"v_add_u32 v{vGa}, s{sK}, v{vGb}")
                a(f"ds_read_b128 {vr(XR+4*k,4)}, v{tm if j else vXa+(q>>1)} offset:{(q&1)*SLOT}", tg)
                a(f"ds_read_b128 {vr(GF+4*(k&1),4)}, v{vGa} offset:{j*32}", tg)
            for e in range(2):
                a(f"ds_read_b64_tr_b16 {vr(wb+2*e,2)}, v{vTq+(q>>1)} offset:{(q&1)*SLOT+(j*3+t)*1024+e*256}", tg)
        else:
            for e in range(2):
                a(f"ds_read_b64_tr_b16 {vr(wb+2*e,2)}, v{vT2+2*(q>>1)+(t&1)} offset:{(q&1)*SLOT+j*6144+(t>>1)*1024+e*256}", tg)
    rp=[0]
    def pump(m):
        while rp[0]<N and rp[0]<=m+AH:
            r=rp[0]; st=seq[r][0]
            if first[st]==r and O.dbl<=st<13 and m<r-AH+O.dl: break
            reads(r); rp[0]+=1
    def mfma(m, vmask):
        st,j,t=seq[m]; k=(st&7)*4+j; A=vr(ACC+16*t,16)
        W,X=vr(WB+4*(m%NW),4),vr(XR+4*k,4)
        a.wait(lg=[("r",m),("r",m+1)] if (O.w2 and m>=MT+8 and m%2==0) else [("r",m)])
        if st<8 and t==0:
            a(f"{MF16} {vr(GA,4)}, {vr(GF+4*(k&1),4)}, {X}, {'0' if k==0 else vr(GA,4)}")
        p,q_=(X,W) if (st<8 and (vmask>>t)&1) else (W,X)
        a(f"{MF} {A}, {p}, {q_}, {'0' if k==0 else A}")
    for vi,vmask in ((1,4),(2,7),(0,0)):
        a.label(f"G_V{vi}")
        a.vm=[]; a.lg=[]; rp[0]=0
        pump(-1)
        for m in range(M8):
            if m==M8-6: a("s_waitcnt vmcnt(0)")
            if m==12 and vi==0: g_publish()
            if not O.wmode and m==12*O.wst+1: warm2()
            if O.wmode:
                for k in range(O.wn):
                    if m==12*O.wst+1+k*O.wsp: warm_slot(k)
            if m==O.pst: poison()
            mfma(m,vmask); pump(m)
        if vi: a("s_branch G_P2")
    a.label("G_P2")
    fill={}
    def spread(ops, m0, m1):
        for i,o in enumerate(ops): fill.setdefault(m0+(i*(m1-m0))//len(ops),[]).append(o)
    SS=[0,4,8,11,15,17,20] if not O.park else [0,3,6,8,11,13,15]
    for i in range(6):
        A=ACC+8*i
        ops=[f"s_add_u32 s{sT}, s{s1K}, {PARK}", f"v_add_u32 v{vPk}, s{sT}, v{vSt}"] if (i==0 and O.park) else []
        for r in range(4): ops.append(f"v_cvt_pk_bf16_f32 v{A+r}, v{A+2*r}, v{A+2*r+1}")
        ops.append(f"ds_write_b128 v{vPk}, {vr(A,4)} offset:{i*4096}" if O.park else f"buffer_store_dwordx4 {vr(A,4)}, v{vSt}, {sr(sWS,4)}, s{76+i} offen sc1")
        spread(ops,M8+SS[i],M8+SS[i+1])
    spread([f"v_mul_f32 v{vC}, {f2u(LOG2E):#x}, v{vC}", f"v_exp_f32 v1, -v{vC}", f"v_exp_f32 v{vC}, v{vC}",
            f"v_add_f32 v1, 1.0, v1", f"v_add_f32 v{vC}, 1.0, v{vC}", f"v_rcp_f32 v1, v1", f"v_min_f32 v{vC}, {f2u(1e38):#x}, v{vC}",
            f"v_bfe_u32 v2, v{vSt}, 4, 5", f"s_lshl_b32 s{sT}, s{sI}, 7", f"s_add_u32 s{sT}, s{sT}, {L_G}",
            f"v_lshl_add_u32 v2, v2, 2, s{sT}", f"ds_write_b32 v2, v1", f"v_add_u32 v{vS2}, s{sLT}, v{vSt}",
            f"v_mov_b32 v{vSy}, {L_SY}"], M8+20, M8+27)
    vL,vD,vR,vA,vW,t0,t1,vF,vP = 147,148,150,156,158,162,163,146,145
    WB3,ACC3,AF,WR = 12,32,96,164; NA=O.NA; NF=22-NA; NR=NA+1; assert AF+8*NR<=144
    ops=[f"v_lshrrev_b32 v{vL}, 4, v{vSt}"]+w3_lane_ops(vD,vL,t0,t1)
    ops+=[f"v_lshrrev_b32 v{t0}, 5, v{vL}", f"v_bfe_u32 v{t1}, v{vL}, 2, 2", f"v_lshl_add_u32 v{t0}, v{t0}, 2, v{t1}", f"v_lshlrev_b32 v{vR}, 7, v{t0}",
          f"v_bfe_u32 v{t0}, v{vL}, 3, 1", f"v_lshl_add_u32 v{vR}, v{t0}, 6, v{vR}", f"v_bfe_u32 v{t0}, v{vL}, 4, 1", f"v_lshl_add_u32 v{vR}, v{t0}, 5, v{vR}",
          f"v_and_b32 v{t0}, 3, v{vL}", f"v_lshl_add_u32 v{vR}, v{t0}, 3, v{vR}", f"v_add_u32 v{vR}, s{s1K}, v{vR}",
          f"v_add_u32 v{vR+2}, 65536, v{vR}", f"v_add_u32 v{vR+4}, 131072, v{vR}"]
    ops+=[f"v_xor_b32 v{vR+2*g+1}, 64, v{vR+2*g}" for g in range(3)]
    ops+=[f"s_mul_i32 s{sT}, s{sTR}, {2*A3_TB}", f"s_add_u32 s{sT}, s{sT}, s{s1K}", f"s_add_u32 s{sT}, s{sT}, {WS_A3}",
          f"v_add_u32 v{vA}, s{sT}, v{vSt}", f"v_add_u32 v{vA+1}, {A3_TB}, v{vA}"]
    ops+=[f"v_bfe_u32 v{t0}, v{vL}, 1, 1", f"v_and_b32 v{t1}, 1, v{vL}", f"v_lshl_or_b32 v{t0}, v{t1}, 1, v{t0}", f"v_and_b32 v{t1}, 4, v{vL}",
          f"v_or_b32 v{t0}, v{t0}, v{t1}", f"v_lshrrev_b32 v{t1}, 5, v{vL}", f"v_xor_b32 v{t0}, v{t0}, v{t1}", f"v_lshlrev_b32 v{t0}, 4, v{t0}",
          f"v_and_b32 v{t1}, 7, v{vL}", f"v_lshl_add_u32 v{vW}, v{t1}, 7, v{t0}", f"v_bfe_u32 v{t1}, v{vL}, 3, 2",
          f"v_lshl_add_u32 v{vW}, v{t1}, 12, v{vW}", f"v_add_u32 v{vW}, s{s1K}, v{vW}"]
    ops+=[f"v_xor_b32 v{vW+q}, {32*q}, v{vW}" for q in range(1,4)]
    ops+=[f"s_lshl_b32 s{sT}, s{sRB}, 2", f"s_add_u32 s{sT}, s{sT}, s{sI}", f"s_mul_i32 s{sSt}, s{sT}, {A3_TB}", f"s_lshl_b32 s{sT}, s{sSB}, 11",
          f"s_add_u32 s{sSt}, s{sSt}, s{sT}", f"s_add_u32 s{sSt}, s{sSt}, {WS_A3}", f"s_add_u32 s{sD}, s{sSt}, 4096", f"s_mov_b32 s{sA}, {f2u(-LOG2E):#x}",
          f"v_mov_b32 v1, 1"]+flag_lane_ops(vF,vL,t0,t1,sG_,1)
    spread(ops,first[11]+2,first[13]+12)
    def rd3_ops(p, wb):
        return [(f"ds_read_b64_tr_b16 {vr(wb+4*cb+2*q,2)}, v{vR+2*(row_of(p,q)>>4)+cb} offset:{(row_of(p,q)&15)*4096}", ("r3",p)) for cb in range(2) for q in range(2)]
    def rd3(p,wb):
        for o,t in rd3_ops(p,wb): a(o,t)
    T=XR
    def ffn_epi(n):
        A=ACC+16*n; ops=[]; R=range(8)
        for r in R: ops.append(f"v_mul_f32 v{T+r}, s{sA}, v{A+r}")
        for r in R: ops.append(f"v_exp_f32 v{T+r}, v{T+r}"); ops.append(f"v_mul_f32 v{A+r}, v{A+r}, v{A+8+r}")
        for r in R: ops.append(f"v_fma_f32 v{T+r}, v{T+r}, v{vC}, v{vC}")
        for r in R: ops.append(f"v_rcp_f32 v{T+r}, v{T+r}")
        for r in R: ops.append(f"v_mul_f32 v{A+r}, v{A+r}, v{T+r}")
        for r in range(4): ops.append(f"v_cvt_pk_bf16_f32 v{A+8+r}, v{A+2*r}, v{A+2*r+1}")
        ops.append(f"buffer_store_dwordx4 {vr(A+8,4)}, v{vSt if n<4 else vS2}, {sr(sWS,4)}, s{sSt if n<4 else sD} offen offset:{(n&3)*1024} sc1")
        return ops
    for u in range(5): spread(ffn_epi(u), MT+8*(u+1)+1, MT+8*(u+2)+(1 if u<4 else 0))
    a(f"v_cndmask_b32 v{vC}, v{GA}, v{GA+1}, s[64:65]")
    for m in range(M8,N):
        if m>=MT+8 and (m-MT)%8==0: stamp(a,1+(m-MT)//8,4)
        mfma(m,0)
        if m==MT-AH-3: a(f"ds_read_b32 v2, v{vSy} offset:{L_C14-L_SY}", "c14")
        pump(m)
        if O.pst>=120 and m==O.pst-2: a("v_mov_b64 v[132:133], -1"); a("v_mov_b64 v[134:135], -1")
        if O.pst>=120 and m in (O.pst,O.pst+4): a(f"buffer_store_dwordx4 v[132:135], v{vSt}, {sr(sWS,4)}, s{82+(m!=O.pst)} offen sc1")
        if not O.park and m==first[9]+O.qsig: signal(a,0,vPk)
        if MT<=m<MT+NT0: rd3(m-MT, WR+8*(m-MT))
        if m==MT+NT0: lds_inc(a,vSy,1,L_C13-L_SY)
        if m==N-AH: lds_inc(a,vSy,1,L_CNT-L_SY)
        emit(a,fill.get(m,[]),"hst")
    stamp(a,6); stamp(a,7,4)
    emit(a,ffn_epi(5),"hst")
    stamp(a,7); stamp(a,8,4)
    glist=list(range(13,19))+[p for p in A2LIST[O.nA2:]]
    glist.sort(key=lambda p: (p>=13,p))
    lds_poll(a,vSy,t1,4,L_CNT-L_SY)
    for p in glist[:O.early]: w3_dma(a,p,vD,("w",p))
    signal(a,1,t0,"hst")
    if O.prio2==1: a("s_setprio 0")
    stamp(a,8)
    def preread():
        a(f"s_lshl_b32 s{sT}, s{sI}, 2"); a(f"v_add_u32 v{t0}, s{sT}, v{vSy}")
        lds_poll(a,t0,t1,1,L_AF-L_SY)
        a.wait(vm=[("w",p) for p in range(NT0,NREG)])
        for p in range(NT0,NREG): rd3(p, WR+8*p)
        a("s_waitcnt lgkmcnt(0)")
    rest=glist[O.early:]+list(range(26,30)); npre=len(rest)-4
    if O.nA2>=4: npre=min(npre,2)
    hp=max(len(rest)-O.hpos,npre)
    for i,p in enumerate(rest):
        if i==npre: preread()
        if i==hp: a(f"buffer_load_dword v{vP}, v{vF}, {sr(sWS,4)}, s{sG_} offen sc1", "hf")
        w3_dma(a,p,vD,("w",p))
        if O.thr3: a(f"s_waitcnt vmcnt({O.thr3})")
    stamp(a,9)
    poll(a,vP,vF,sWS,f"s{sG_}",first_tag="hf" if hp<len(rest) else None)
    stamp(a,10)
    def aload_ops(n):
        af=AF+8*(n%NR); ops=[(o,None) for o in rot_off(n)]
        ops.append((f"s_lshr_b32 s{sT2}, s{sT2}, 4",None))
        if n>=22: ops.append((f"s_add_u32 s{sT2}, s{sT2}, {86*1024}",None))
        for tb in range(2):
            ops.append((f"buffer_load_dwordx4 {vr(af+4*tb,4)}, v{vA+tb}, {sr(sWS,4)}, s{sT2} offen sc1", ("a",n)))
        return ops
    def aload(n):
        for o,t in aload_ops(n): a(o,t)
    def chk_ops(n):
        af=AF+8*(n%NR)
        return [f"v_max3_u32 v{t0}, v{af}, v{af+1}, v{af+2}", f"v_max3_u32 v{t1}, v{af+3}, v{af+4}, v{af+5}",
                f"v_max3_u32 v{t0}, v{t0}, v{af+6}, v{af+7}", f"v_max_u32 v{t0}, v{t0}, v{t1}", f"v_cmp_eq_u32 vcc, -1, v{t0}"]
    def check(n):
        emit(a,chk_ops(n)); a(f"s_cbranch_vccnz G_RT{n}"); a.label(f"G_OK{n}")
        def retry():
            a.label(f"G_RT{n}"); a.vm=[]; a.lg=[]
            a(f"s_mov_b32 s{sE}, {SPIN_MAX}")
            a.label(f"G_RL{n}")
            a(f"s_sleep {O.rsl}")
            aload(n); a("s_waitcnt vmcnt(0)")
            emit(a,chk_ops(n)); a(f"s_cbranch_vccz G_OK{n}")
            a(f"s_sub_u32 s{sE}, s{sE}, 1"); a(f"s_cmp_lg_u32 s{sE}, 0"); a(f"s_cbranch_scc1 G_RL{n}")
            a(f"s_branch G_OK{n}")
        ool.append(retry)
    def step3(n):
        af=AF+8*(n%NR); wb=WR+8*POS[n] if POS[n]<NREG else WB3+8*(n&1)
        if n%2==0 and n<28: stamp(a,1+n//2,2)
        nxt = n+1<NS3 and POS[n+1]>=NREG
        a.wait(vm=[("a",n)]+([("w",POS[n+1])] if nxt else []), lg=[("r3",POS[n])])
        al = aload_ops(n+NA) if n+NA<NS3 else []
        def mf(i):
            tb,cb=i>>1,i&1; A=ACC3+16*i
            a(f"{MF} {vr(A,16)}, {vr(wb+4*cb,4)}, {vr(af+4*tb,4)}, {'0' if n==0 else vr(A,16)}")
        if n==21:
            if nxt: rd3(POS[n+1], WB3+8*((n+1)&1))
            for o,t in al: a(o,t)
            a(f"s_cmp_ge_u32 s{sI}, 2"); a(f"s_cbranch_scc1 G_SK21")
            for i in range(4): mf(i)
            a.label(f"G_SK21")
        else:
            mf(0)
            if nxt: rd3(POS[n+1], WB3+8*((n+1)&1))
            mf(1)
            for o,t in al[:-1]: a(o,t)
            mf(2)
            for o,t in al[-1:]: a(o,t)
            mf(3)
        if 22<=n+1<NS3:
            a.wait(vm=[("a",n+1)]); check(n+1)
    for n in range(NA): aload(n)
    if O.prio2==2: a("s_setprio 0")
    for n in range(NS3):
        if n==21: stamp(a,11)
        step3(n)
    stamp(a,12)
    for p in range(4):
        for q in range(4):
            a(f"ds_write_b128 v{vW+q}, {vr(ACC3+16*p+4*q,4)} offset:{p*16384}", "red")
    a("s_branch FINAL")
    for f in ool: f()
    yield

def a_wave(a):
    vSt,vL,vVo,vT0,vT1,vM,vM2,vBig,vGt = 0,1,2,3,4,5,6,7,8
    vP=10
    MK=12; Q=20; KF=28; VF=68; SM=148; S0=164; S1=180; CM=196; O_=212; P=228; P2=236
    vX0,vX1,vWq,vWg,vWu,vWg2,vWu2,vD,vBig2,vSy,vOne = 228,229,230,231,232,233,234,244,246,247,248
    PK=SM
    sXo,sQo,sFo,sLx,sLq,sK,sIt,sSl = sA,sB,sC,sD,sE,sF,64,65
    a(f"v_and_b32 v{vL}, 63, v0")
    a(f"v_lshrrev_b32 v{vT0}, 3, v{vL}"); a(f"v_lshrrev_b32 v{vT1}, 4, v{vL}")
    a(f"v_and_b32 v{vX0}, 7, v{vL}"); a(f"v_xor_b32 v{vX0}, v{vX0}, v{vT1}"); a(f"v_lshlrev_b32 v{vX0}, 4, v{vX0}")
    a(f"v_lshl_add_u32 v{vX0}, v{vT0}, 10, v{vX0}")
    a(f"v_xor_b32 v{vX1}, 64, v{vX0}"); a(f"v_add_u32 v{vX1}, {8192-1024}, v{vX1}")
    a(f"v_lshrrev_b32 v{vT0}, 2, v{vL}"); a(f"v_and_b32 v{vT1}, 3, v{vL}")
    a(f"v_mul_u32_u24 v{vWq}, 3072, v{vT0}"); a(f"v_lshl_add_u32 v{vWq}, v{vT1}, 4, v{vWq}")
    a(f"s_lshl_b32 s{sXo}, s{sRB}, 2"); a(f"s_add_u32 s{sXo}, s{sXo}, s{sI}"); a(f"s_lshl_b32 s{sXo}, s{sXo}, 15")
    a(f"s_lshl_b32 s{sT}, s{sI}, 8"); a(f"s_add_u32 s{sT}, s{sT}, s{sCG}"); a(f"s_mul_i32 s{sQo}, s{sT}, 192")
    a(f"s_lshl_b32 s{sLx}, s{sI}, 12"); a(f"s_mul_i32 s{sLq}, s{sI}, 3072")
    a(f"s_mov_b32 s{sIt}, 0")
    a(f"v_lshlrev_b32 v{vSt}, 4, v{vL}")
    srd_tail(a,sGW,1024)
    a("s_waitcnt lgkmcnt(0)")
    def issue1():
        a(f"s_add_u32 s{sK}, s{sPH}, s{sIt}"); a(f"s_and_b32 s{sK}, s{sK}, 7")
        a(f"s_and_b32 s{sSl}, s{sIt}, 3"); a(f"s_mul_i32 s{sSl}, s{sSl}, {SLOT}")
        a(f"s_add_u32 m0, s{sLx}, s{sSl}")
        a(f"s_lshl_b32 s{sT}, s{sK}, 7"); a(f"s_add_u32 s{sT}, s{sT}, s{sXo}")
        a(f"buffer_load_dwordx4 v{vX0}, {sr(sX,4)}, s{sT} offen lds")
        a(f"buffer_load_dwordx4 v{vX1}, {sr(sX,4)}, s{sT} offen offset:1024 lds")
        a(f"s_add_u32 s{sT}, s{sT}, {16384-2048}")
        a(f"buffer_load_dwordx4 v{vX0}, {sr(sX,4)}, s{sT} offen offset:2048 lds")
        a(f"buffer_load_dwordx4 v{vX1}, {sr(sX,4)}, s{sT} offen offset:3072 lds")
        a(f"s_add_u32 s{sT}, s{sSl}, s{sLq}")
        a(f"s_mul_i32 s{sT2}, s{sK}, {64*3072}")
        for t in range(3):
            a(f"s_add_u32 m0, s{sT}, {16384+t*1024-t*64}")
            if t==0: a(f"s_add_u32 s{sT2}, s{sT2}, s{sQo}")
            a(f"buffer_load_dwordx4 v{vWq}, {sr(sWQ,4)}, s{sT2} offen offset:{t*64} lds")
    issue1()
    a(f"s_mov_b32 m0, {L_GW}"); a(f"s_mov_b32 s{sIt}, 1"); a(f"buffer_load_dwordx4 v{vSt}, {sr(sGW,4)}, 0 offen lds")
    if O.ord==1: issue1()
    stamp(a,1)
    late_srds(a); late_scalars(a)
    a(f"v_mul_u32_u24 v{vWg}, 2752, v{vT0}"); a(f"v_xor_b32 v{vWu}, 2, v{vT1}")
    a(f"v_lshl_add_u32 v{vWu}, v{vWu}, 4, v{vWg}"); a(f"v_lshl_add_u32 v{vWg}, v{vT1}, 4, v{vWg}")
    a(f"v_add_u32 v{vWg2}, s{sLT}, v{vWg}"); a(f"v_add_u32 v{vWu2}, s{sLT}, v{vWu}")
    a(f"s_mul_i32 s{sFo}, s{sI}, {16*2752}"); a(f"s_lshl_b32 s{sT}, s{sSB}, 6"); a(f"s_add_u32 s{sFo}, s{sFo}, s{sT}")
    if O.ord==2: issue1()
    a.label("A_L1")
    a("s_waitcnt vmcnt(7)"); a("s_barrier")
    a(f"s_add_u32 s{sIt}, s{sIt}, 1"); a(f"s_cmp_ge_u32 s{sIt}, 8"); a("s_cbranch_scc1 A_P2")
    issue1()
    a("s_branch A_L1")
    yield
    a.label("A_P2")
    a.lg=[]; a.vm=[(("d",7),set())]*7
    a(f"s_lshl_b32 s{sLq}, s{sLq}, 1")
    def dmas(st):
        q=st&3; tg=("d",st)
        a(f"s_add_u32 s{sK}, s{sPH}, {st&7}"); a(f"s_and_b32 s{sK}, s{sK}, 7")
        a(f"s_mul_i32 s{sT2}, s{sK}, {64*2752}"); a(f"s_add_u32 s{sT2}, s{sT2}, s{sFo}")
        for m in range(2):
            for t in range(3):
                v=(vWu2 if m else vWg2) if t==2 else (vWu if m else vWg)
                a(f"s_add_u32 m0, s{sLq}, {q*SLOT+(m*3+t)*1024-t*64}")
                a(f"buffer_load_dwordx4 v{v}, {sr(sWU if m else sWG,4)}, s{sT2} offen offset:{t*64} lds", tg)
    sQB,sKo,sVo,sN = sG_,sA,sB,sD
    korder=[8,0,7,6,5,4,3,2,1,9]
    def setup_attn(part):
        if part==0:
            emit(a,w3_lane_ops(vD,vL,vM,vM2))
            a(f"s_and_b32 s{sT}, s{sI}, 1"); a(f"s_lshl_b32 s{sHead}, s{sCG}, 1"); a(f"s_add_u32 s{sHead}, s{sHead}, s{sT}")
            a(f"s_and_b32 s{sT2}, s{sI}, 2"); a(f"s_lshl_b32 s{sQB}, s{sRB}, 2"); a(f"s_add_u32 s{sQB}, s{sQB}, s{sT2}")
            a(f"v_mov_b32 v{vSy}, {L_SY}"); a(f"v_mov_b32 v{vOne}, 1")
        if part==1:
            a(f"v_mov_b32 v{vGt}, 0x3f803f80"); a(f"v_mov_b32 v{vGt+1}, 0x3f803f80")
            for r in range(0,80,2):
                if r&4: a(f"v_mov_b64 {vr(VF+r,2)}, {vr(vGt,2)}")
        if part==2:
            a(f"v_and_b32 v{vT0}, 31, v{vL}")
            a(f"v_lshrrev_b32 v{vT1}, 5, v{vL}"); a(f"v_lshlrev_b32 v{vT1}, 2, v{vT1}"); a(f"v_sub_u32 v{vT0}, v{vT0}, v{vT1}")
            for r in range(16): a(f"v_cmp_le_i32 {sr(sM+2*r,2)}, {(r&3)+8*(r>>2)}, v{vT0}")
            a(f"v_mov_b32 v{vBig}, 0xffff"); a(f"v_mov_b32 v{vM}, 0xffff0000")
            for i in range(8):
                a(f"v_cndmask_b32 v{MK+i}, 0, v{vBig}, {sr(sM+4*i,2)}")
                a(f"v_cndmask_b32 v{vT1}, 0, v{vM}, {sr(sM+4*i+2,2)}")
                a(f"v_or_b32 v{MK+i}, v{MK+i}, v{vT1}")
            a(f"v_mov_b32 v{vBig}, {f2u(-1e30):#x}"); a(f"v_mov_b32 v{vBig2}, {f2u(2.0**60):#x}")
            a(f"v_and_b32 v{vVo}, 47, v{vL}"); a(f"v_lshlrev_b32 v{vVo}, 4, v{vVo}")
            a(f"v_and_b32 v{vT1}, 16, v{vL}"); a(f"v_lshl_add_u32 v{vVo}, v{vT1}, 6, v{vVo}")
        if part==3:
            a(f"v_and_b32 v{vT0}, 15, v{vL}"); a(f"v_min_u32 v{vT0}, 9, v{vT0}")
            a(f"v_and_b32 v{vT1}, 1, v{vL}"); a(f"v_or_b32 v{vT1}, 8, v{vT1}")
            a(f"v_cmp_le_u32 vcc, 32, v{vL}"); a(f"v_cndmask_b32 v{vT0}, v{vT0}, v{vT1}, vcc")
            a(f"s_sub_u32 s{sT}, s{sQB}, 8"); a(f"v_add_u32 v{vT0}, s{sT}, v{vT0}"); a(f"v_max_i32 v{vT0}, 0, v{vT0}")
            a(f"v_add_u32 v{vT1}, 16, v{vL}"); a(f"v_and_b32 v{vT1}, 48, v{vT1}"); a(f"v_cndmask_b32 v{vT1}, v{vT1}, 0, vcc")
            a(f"v_add_u32 v{vT1}, s{sCG}, v{vT1}"); a(f"v_mul_u32_u24 v{vT1}, 43, v{vT1}"); a(f"v_lshrrev_b32 v{vT1}, 7, v{vT1}")
            a(f"v_lshrrev_b32 v{vM}, 2, v{vT0}"); a(f"v_lshl_add_u32 v{vT1}, v{vM}, 4, v{vT1}"); a(f"v_lshlrev_b32 v{vT1}, 7, v{vT1}")
            a(f"v_and_b32 v{vT0}, 3, v{vT0}"); a(f"v_lshl_add_u32 v{vM2}, v{vT0}, 2, v{vT1}")
            a(f"s_lshl_b32 s{sKo}, s{sHead}, 16")
            a(f"s_and_b32 s{sT}, s{sI}, 1"); a(f"s_lshl_b32 s{sT}, s{sT}, 8")
            a(f"s_lshl_b32 s{sVo}, s{sCG}, 17"); a(f"s_add_u32 s{sVo}, s{sVo}, s{sT}"); a(f"s_add_u32 s{sVo}, s{sVo}, {WS_V}")
            a(f"s_mov_b32 s{sN}, {WS_F}")
        if part==4:
            a(f"v_and_b32 v{vT1}, 31, v{vL}"); a(f"s_and_b32 s{sT}, s{sI}, 2"); a(f"s_lshl_b32 s{sT}, s{sT}, 7"); a(f"s_add_u32 s{sT}, s{sT}, {L_G}")
            a(f"v_lshl_add_u32 v{vT1}, v{vT1}, 2, s{sT}")
            for u in range(2): a(f"ds_read_b32 v{vGt+u}, v{vT1} offset:{u*128}")
            a("s_waitcnt lgkmcnt(0)")
    def unpark():
        a(f"s_add_u32 s{sT}, s{s1K}, {PARK}"); a(f"v_add_u32 v{vT0}, s{sT}, v{vSt}")
        for i in range(6): a(f"ds_read_b128 {vr(PK+4*i,4)}, v{vT0} offset:{i*4096}")
    def qstore(i):
        emit(a,qaddr_ops(i))
        a(f"buffer_store_dwordx4 {vr(PK+4*i,4)}, v{vSt}, {sr(sWS,4)}, s{sT} offen sc1", "qst")
    def vswap(ns):
        for n in ns:
            a.wait(vm=[("v",n)])
            for r in range(4): a(f"v_permlane16_swap_b32 v{VF+8*n+r}, v{VF+8*n+4+r}")
    def a2flag():
        a(f"s_lshl_b32 s{sT3}, s{sI}, 2"); a(f"v_add_u32 v{vT0}, s{sT3}, v{vSy}")
        a("s_waitcnt vmcnt(0)"); a(f"ds_write_b32 v{vT0}, v{vOne} offset:{L_AF-L_SY}")
    def attn_slow():
        for u in range(2):
            Qr=vr(Q+4*u,4); nd=8+u; no=u
            K_=lambda n: vr(KF+4*n,4)
            a(f"s_add_u32 s{sN}, s{sQB}, {u}")
            if u==0: stamp(a,7)
            a(f"{MF} {vr(S0,16)}, {K_(nd)}, {Qr}, 0")
            a(f"{MF} {vr(S1,16)}, {K_(no)}, {Qr}, 0")
            bufs=[CM,O_,S0,S1]
            def smf(d, c="0", buf=None): a(f"{MF} {vr(buf,16)}, {K_(nd-d)}, {Qr}, {c}")
            smf(1,buf=bufs[0]); smf(2,buf=bufs[1])
            a(f"s_cmp_ge_u32 s{sN}, 8"); a(f"s_cbranch_scc1 AT_OLD{u}")
            for r in range(16): a(f"v_mov_b32 v{S1+r}, v{vBig}")
            a.label(f"AT_OLD{u}")
            for r in range(16): a(f"v_cndmask_b32 v{SM+r}, v{S1+r}, v{S0+r}, {sr(sM+2*r,2)}")
            a(f"v_max3_f32 v{vM}, v{SM}, v{SM+1}, v{SM+2}")
            a(f"v_max3_f32 v{vM2}, v{SM+3}, v{SM+4}, v{SM+5}")
            for r in range(6,16,4):
                a(f"v_max3_f32 v{vM}, v{vM}, v{SM+r}, v{SM+r+1}")
                if r+2<16: a(f"v_max3_f32 v{vM2}, v{vM2}, v{SM+r+2}, v{SM+r+3}")
            for d in range(1,8):
                a(f"s_cmp_lt_u32 s{sN}, {d}"); a(f"s_cbranch_scc1 AT_MX{u}")
                if d+2<8: smf(d+2,buf=bufs[(d+1)%4])
                b=bufs[(d-1)%4]
                for r in range(0,16,4):
                    a(f"v_max3_f32 v{vM}, v{vM}, v{b+r}, v{b+r+1}")
                    a(f"v_max3_f32 v{vM2}, v{vM2}, v{b+r+2}, v{b+r+3}")
            a.label(f"AT_MX{u}")
            a(f"v_max_f32 v{vM}, v{vM}, v{vM2}")
            a(f"v_mov_b32 v{vM2}, v{vM}")
            if u==0: a2flag()
            a(f"v_permlane32_swap_b32 v{vM}, v{vM2}")
            a(f"v_max_f32 v{vM}, v{vM}, v{vM2}")
            a(f"v_sub_f32 v{CM}, 0, v{vM}")
            a(f"v_mov_b32 v{CM+1}, v{CM}")
            for r in range(2,16,2): a(f"v_mov_b64 {vr(CM+r,2)}, {vr(CM,2)}")
            sb=[S0,S1]
            a(f"v_sub_f32 v{SM}, v{SM}, v{vM}"); a(f"v_sub_f32 v{SM+1}, v{SM+1}, v{vM}")
            smf(1,vr(CM,16),sb[1])
            for r in range(2,16): a(f"v_sub_f32 v{SM+r}, v{SM+r}, v{vM}")
            for r in range(16): a(f"v_exp_f32 v{SM+r}, v{SM+r}")
            for r in range(8): a(f"v_cvt_pk_bf16_f32 v{P2+r}, v{SM+2*r}, v{SM+2*r+1}")
            for r in range(8): a(f"v_and_b32 v{P+r}, v{P2+r}, v{MK+r}")
            a(f"{MF} {vr(O_,16)}, {vr(VF+8*nd,4)}, {vr(P,4)}, 0")
            for r in range(4): a(f"v_xor_b32 v{P2+r}, v{P2+r}, v{P+r}")
            a(f"{MF} {vr(O_,16)}, {vr(VF+8*nd+4,4)}, {vr(P+4,4)}, {vr(O_,16)}")
            for r in range(4,8): a(f"v_xor_b32 v{P2+r}, v{P2+r}, v{P+r}")
            a(f"{MF} {vr(O_,16)}, {vr(VF+8*no,4)}, {vr(P2,4)}, {vr(O_,16)}"); a(f"{MF} {vr(O_,16)}, {vr(VF+8*no+4,4)}, {vr(P2+4,4)}, {vr(O_,16)}")
            for d in range(1,8):
                a(f"s_cmp_lt_u32 s{sN}, {d}"); a(f"s_cbranch_scc1 AT_FIN{u}")
                b=sb[d&1]; pb=P if d&1 else P2; n=nd-d
                for r in range(4): a(f"v_exp_f32 v{b+r}, v{b+r}")
                if d+1<8: smf(d+1,vr(CM,16),sb[(d+1)&1])
                for r in range(4,9): a(f"v_exp_f32 v{b+r}, v{b+r}")
                for r in range(4): a(f"v_cvt_pk_bf16_f32 v{pb+r}, v{b+2*r}, v{b+2*r+1}")
                for r in range(9,11): a(f"v_exp_f32 v{b+r}, v{b+r}")
                a(f"{MF} {vr(O_,16)}, {vr(VF+8*n,4)}, {vr(pb,4)}, {vr(O_,16)}")
                for r in range(11,16): a(f"v_exp_f32 v{b+r}, v{b+r}")
                for r in range(4,8): a(f"v_cvt_pk_bf16_f32 v{pb+r}, v{b+2*r}, v{b+2*r+1}")
                a(f"{MF} {vr(O_,16)}, {vr(VF+8*n+4,4)}, {vr(pb+4,4)}, {vr(O_,16)}")
            a.label(f"AT_FIN{u}")
            a(f"s_mul_i32 s{sT}, s{sN}, {A3_TB}"); a(f"s_lshl_b32 s{sT2}, s{sHead}, 10"); a(f"s_add_u32 s{sT}, s{sT}, s{sT2}")
            a(f"s_add_u32 s{sT}, s{sT}, {WS_A3+86*1024}")
            a(f"v_rcp_f32 v{vT0}, v{O_+8}")
            a(f"v_mul_f32 v{vT0}, v{vT0}, v{vGt+u}")
            for r in range(8): a(f"v_mul_f32 v{O_+r}, v{O_+r}, v{vT0}")
            for r in range(4): a(f"v_cvt_pk_bf16_f32 v{SM+r}, v{O_+2*r}, v{O_+2*r+1}")
            for r in range(4): a(f"v_min_u32 v{SM+r}, -2, v{SM+r}")
            a(f"buffer_store_dwordx4 {vr(SM,4)}, v{vSt}, {sr(sWS,4)}, s{sT} offen sc1", "ost")
            stamp(a,8+u)
    def attn_fast():
        K_=lambda n: vr(KF+4*n,4)
        sb=[S0,S1]; sOv=0
        def smf(u,d): a(f"{MF} {vr(sb[d&1],16)}, {K_(8+u-d)}, {vr(Q+4*u,4)}, {vr(CM,16)}")
        def head(u):
            for r in range(16): a(f"v_cndmask_b32 v{SM+r}, v{SM+r}, v{S0+r}, {sr(sM+2*r,2)}")
            a(f"v_max3_f32 v{vM}, v{SM}, v{SM+1}, v{SM+2}")
            a(f"v_max3_f32 v{vM2}, v{SM+3}, v{SM+4}, v{SM+5}")
            a(f"v_max3_f32 v{vM}, v{vM}, v{SM+6}, v{SM+7}"); a(f"v_max3_f32 v{vM2}, v{vM2}, v{SM+8}, v{SM+9}")
            a(f"v_max3_f32 v{vM}, v{vM}, v{SM+10}, v{SM+11}"); a(f"v_max3_f32 v{vM2}, v{vM2}, v{SM+12}, v{SM+13}")
            a(f"v_max3_f32 v{vM}, v{vM}, v{SM+14}, v{SM+15}")
            a(f"v_max_f32 v{vM}, v{vM}, v{vM2}")
            a(f"v_mov_b32 v{vM2}, v{vM}")
            a(f"s_mul_i32 s{sT}, s{sQB}, {A3_TB}"); a(f"s_lshl_b32 s{sT2}, s{sHead}, 10")
            a(f"v_permlane32_swap_b32 v{vM}, v{vM2}")
            a(f"v_max_f32 v{vM}, v{vM}, v{vM2}")
            a(f"v_sub_f32 v{CM}, 0, v{vM}")
            a(f"v_sub_f32 v{CM+1}, 0, v{vM}")
            for r in range(2,16,2): a(f"v_mov_b64 {vr(CM+r,2)}, {vr(CM,2)}")
            a(f"v_sub_f32 v{SM}, v{SM}, v{vM}"); a(f"v_sub_f32 v{SM+1}, v{SM+1}, v{vM}")
            smf(u,1)
        def fin(u):
            a(f"s_add_u32 s{sT}, s{sT}, s{sT2}"); a(f"s_add_u32 s{sT}, s{sT}, {WS_A3+86*1024+u*A3_TB}")
            a(f"v_rcp_f32 v{vT0}, v{O_+8}")
            a(f"v_cmp_ngt_f32 vcc, v{vBig2}, v{O_+8}")
            a(f"v_mul_f32 v{vT0}, v{vT0}, v{vGt+u}")
            a("s_branch AT_SLOW" if O.forceslow==u+1 else "s_cbranch_vccnz AT_SLOW")
            for r in range(8): a(f"v_mul_f32 v{O_+r}, v{O_+r}, v{vT0}")
            for r in range(4): a(f"v_cvt_pk_bf16_f32 v{P+r}, v{O_+2*r}, v{O_+2*r+1}")
            for r in range(4): a(f"v_min_u32 v{P+r}, -2, v{P+r}")
            a(f"buffer_store_dwordx4 {vr(P,4)}, v{vSt}, {sr(sWS,4)}, s{sT} offen sc1", "ost")
            stamp(a,8+u)
        def body(u):
            nd=8+u; no=u
            for r in range(2,16): a(f"v_sub_f32 v{SM+r}, v{SM+r}, v{vM}")
            for r in range(16): a(f"v_exp_f32 v{SM+r}, v{SM+r}")
            if u==0: a2flag()
            for r in range(8): a(f"v_cvt_pk_bf16_f32 v{P2+r}, v{SM+2*r}, v{SM+2*r+1}")
            for r in range(6): a(f"v_and_b32 v{P+r}, v{P2+r}, v{MK+r}")
            a(f"{MF} {vr(O_,16)}, {vr(VF+8*nd,4)}, {vr(P,4)}, 0")
            for r in range(6,8): a(f"v_and_b32 v{P+r}, v{P2+r}, v{MK+r}")
            for r in range(4): a(f"v_xor_b32 v{P2+r}, v{P2+r}, v{P+r}")
            a(f"{MF} {vr(O_,16)}, {vr(VF+8*nd+4,4)}, {vr(P+4,4)}, {vr(O_,16)}")
            for r in range(4,8): a(f"v_xor_b32 v{P2+r}, v{P2+r}, v{P+r}")
            pend=[f"{MF} {vr(O_,16)}, {vr(VF+8*no,4)}, {vr(P2,4)}, {vr(O_,16)}", f"{MF} {vr(O_,16)}, {vr(VF+8*no+4,4)}, {vr(P2+4,4)}, {vr(O_,16)}"]
            for d in range(1,8):
                b=sb[d&1]; pb=P if d&1 else P2; n=nd-d
                a(f"v_exp_f32 v{b}, v{b}")
                if len(pend)>1: a(pend.pop(0))
                for r in range(1,4): a(f"v_exp_f32 v{b+r}, v{b+r}")
                a(pend.pop(0))
                for r in range(4,8): a(f"v_exp_f32 v{b+r}, v{b+r}")
                if d<7: smf(u,d+1)
                elif u==0: a(f"{MF} {vr(S0,16)}, {K_(9)}, {vr(Q+4,4)}, 0")
                a(f"v_exp_f32 v{b+8}, v{b+8}")
                for r in range(4): a(f"v_cvt_pk_bf16_f32 v{pb+r}, v{b+2*r}, v{b+2*r+1}")
                for r in range(9,11): a(f"v_exp_f32 v{b+r}, v{b+r}")
                a(f"{MF} {vr(O_,16)}, {vr(VF+8*n,4)}, {vr(pb,4)}, {vr(O_,16)}")
                for r in range(11,14): a(f"v_exp_f32 v{b+r}, v{b+r}")
                if d==7 and u==0: a(f"{MF} {vr(SM,16)}, {K_(1)}, {vr(Q+4,4)}, 0")
                for r in range(14,16): a(f"v_exp_f32 v{b+r}, v{b+r}")
                for r in range(4,8): a(f"v_cvt_pk_bf16_f32 v{pb+r}, v{b+2*r}, v{b+2*r+1}")
                pend=[f"{MF} {vr(O_,16)}, {vr(VF+8*n+4,4)}, {vr(pb+4,4)}, {vr(O_,16)}"]
            a(pend.pop(0))
        stamp(a,7)
        a(f"{MF} {vr(S0,16)}, {K_(8)}, {vr(Q,4)}, 0")
        a(f"{MF} {vr(SM,16)}, {K_(0)}, {vr(Q,4)}, 0")
        head(0); body(0); head(1); fin(0)
        a(f"s_mul_i32 s{sT}, s{sQB}, {A3_TB}")
        body(1); fin(1)
    stages={k:([k+2] if k<O.dbl else [k+2,k+3] if k==O.dbl else [k+3]) for k in range(6,13)}
    t0sched=[{7:[0],10:[1],11:[2,3],12:[4,5,6]},{7:[0],8:[1],10:[2],11:[3,4],12:[5,6]},{10:[0,1],11:[2,3],12:[4,5,6]},{11:[0,1,2],12:[3,4,5,6]},{12:[0,1,2,3,4,5,6]},{7:[0],8:[1],10:[2,3],12:[4,5,6]}][O.t0s]
    a(f"v_and_b32 v{vBig}, 15, v{vL}"); a(f"v_lshlrev_b32 v{vBig}, 2, v{vBig}")
    for k in range(6,13):
        if k==6: a(f"buffer_load_dword v{vP}, v{vBig}, {sr(sDBG,4)}, 0 offen sc1", "init")
        if k==9 and O.park: unpark()
        if k==10 and O.park:
            for i in range(O.qs,6): qstore(i)
        for st in stages[k]: dmas(st)
        if k==6: setup_attn(0)
        if k==9 and O.park:
            a("s_waitcnt lgkmcnt(0)")
            for i in range(O.qs): qstore(i)
        if k==O.pa:
            a(f"v_mov_b64 {vr(S1,2)}, -1"); a(f"v_mov_b64 {vr(S1+2,2)}, -1")
            a(f"s_mul_i32 s{sT}, s{sQB}, {A3_TB}"); a(f"s_lshl_b32 s{sT2}, s{sHead}, 10"); a(f"s_add_u32 s{sT}, s{sT}, s{sT2}"); a(f"s_add_u32 s{sT}, s{sT}, {WS_A3+86*1024}")
            a(f"buffer_store_dwordx4 {vr(S1,4)}, v{vSt}, {sr(sWS,4)}, s{sT} offen sc1"); a(f"s_add_u32 s{sT}, s{sT}, {A3_TB}")
            a(f"buffer_store_dwordx4 {vr(S1,4)}, v{vSt}, {sr(sWS,4)}, s{sT} offen sc1")
        for p in t0sched.get(k,[]): w3_dma(a,p,vD,("t0",p))
        if O.p0<=k<O.p0+4: stamp(a,3+3*(k-O.p0),1)
        if k in (8,9,10,11): setup_attn(k-7)
        if k==O.sigk and O.park: signal(a,0,vT0,"qst")
        a.wait(vm=[("d",k+1)])
        if k==7: poll(a,vP,vBig,sDBG,"0",first_tag="init")
        if O.p0<=k+1<O.p0+4: stamp(a,1+3*(k+1-O.p0),1)
        a("s_barrier")
        if O.p0<=k+1<O.p0+4: stamp(a,2+3*(k+1-O.p0),1)
        if k+1 in (8,13): stamp(a,{8:3,13:4}[k+1])
    a(f"buffer_load_dword v{vP}, v{vM2}, {sr(sWS,4)}, s{sN} offen sc1", "qf")
    a("s_waitcnt vmcnt(1)")
    lds_inc(a,vSy,vOne,L_C14-L_SY)
    poll(a,vP,vM2,sWS,f"s{sN}",first_tag="qf")
    stamp(a,5)
    a(f"s_lshl_b32 s{sT}, s{sQB}, 10"); a(f"s_add_u32 s{sT}, s{sT}, s{sKo}")
    for u in range(2): a(f"buffer_load_dwordx4 {vr(Q+4*u,4)}, v{vSt}, {sr(sWS,4)}, s{sT} offen offset:{u*1024} sc1", ("q",u))
    a(f"s_add_u32 s{sKo}, s{sKo}, {WS_K}")
    for n in korder:
        a(f"s_add_i32 s{sT}, s{sQB}, {n-8}"); a(f"s_max_i32 s{sT}, s{sT}, 0"); a(f"s_lshl_b32 s{sT}, s{sT}, 11"); a(f"s_add_u32 s{sT}, s{sT}, s{sVo}")
        a(f"buffer_load_dwordx4 {vr(VF+8*n,4)}, v{vVo}, {sr(sWS,4)}, s{sT} offen sc1", ("v",n))
        if O.thr: a(f"s_waitcnt vmcnt({O.thr})")
    for n in korder:
        a(f"s_add_i32 s{sT}, s{sQB}, {n-8}"); a(f"s_max_i32 s{sT}, s{sT}, 0"); a(f"s_lshl_b32 s{sT}, s{sT}, 10"); a(f"s_add_u32 s{sT}, s{sT}, s{sKo}")
        a(f"buffer_load_dwordx4 {vr(KF+4*n,4)}, v{vSt}, {sr(sWS,4)}, s{sT} offen sc1", ("k",n))
        if O.thr: a(f"s_waitcnt vmcnt({O.thr})")
    stamp(a,6)
    lds_poll(a,vSy,vT1,4,L_C13-L_SY)
    if O.ap: a("s_setprio 3")
    prep=[]
    def qscale(h):
        a.wait(vm=[("q",1)])
        for r in range(4*h,4*h+4):
            a(f"v_lshlrev_b32 v{S0+2*r}, 16, v{Q+r}"); a(f"v_and_b32 v{S0+2*r+1}, 0xffff0000, v{Q+r}")
        for r in range(8*h,8*h+8): a(f"v_mul_f32 v{S0+r}, {f2u(0.25*LOG2E):#x}, v{S0+r}")
        for r in range(4*h,4*h+4): a(f"v_cvt_pk_bf16_f32 v{Q+r}, v{S0+2*r}, v{S0+2*r+1}")
    prep=[lambda:qscale(0),lambda:qscale(1)]+[(lambda i=i: vswap(korder[2*i:2*i+2])) for i in range(5)]
    for i,p in enumerate(A2LIST[:O.nA2]):
        if O.thrA: a(f"s_waitcnt vmcnt({O.thrA})")
        w3_dma(a,p,vD,("a2",p))
        if prep and not O.ap: prep.pop(0)()
    if O.afl: a2flag()
    if O.ap: a("s_setprio 0")
    stamp(a,10)
    for f in prep: f()
    a.wait(vm=[("k",n) for n in range(10)])
    if O.prio2: a("s_setprio 1")
    a(f"s_cmp_lt_u32 s{sQB}, 8"); a("s_cbranch_scc1 AT_SLOW")
    vm0=list(a.vm)
    attn_fast()
    a.label("AT_DONE")
    yield
    a.label("AT_SLOW"); a.vm=list(vm0); a.lg=[]
    attn_slow(); a("s_branch AT_DONE")
    yield

def kernel():
    a=Asm()
    a("s_getpc_b64 s[66:67]")
    a(f"s_load_dwordx2 {sr(sX,2)}, s[0:1], 0"); a(f"s_load_dwordx2 {sr(sWQ,2)}, s[0:1], 8")
    a("s_cmp_ge_u32 s2, 256"); a("s_cbranch_scc1 END")
    a("v_lshrrev_b32 v1, 6, v0")
    for d,off in ((sGW,56),(sWS,80),(sDBG,72),(sWG,32),(sWU,40),(sWD,48),(sWO,16),(sOUT,64)):
        a(f"s_load_dwordx2 {sr(d,2)}, s[0:1], {off}")
    if O.stamp:
        a(f"v_mov_b32 v{vSTAMP}, 0"); stamp(a,0)
    a(f"v_readfirstlane_b32 s{sW}, v1")
    srd_tail(a,sX,2*MB); srd_tail(a,sWQ,512*3072)
    a(f"s_bfe_u32 s{sRB}, s2, 0x10002"); a(f"s_lshl_b32 s{sRB}, s{sRB}, 3")
    a(f"s_bfe_u32 s{sT}, s2, 0x30003"); a(f"s_add_u32 s{sRB}, s{sRB}, s{sT}")
    a(f"s_and_b32 s{sCG}, s2, 3"); a(f"s_lshl_b32 s{sCG}, s{sCG}, 2")
    a(f"s_lshr_b32 s{sT}, s2, 6"); a(f"s_add_u32 s{sCG}, s{sCG}, s{sT}")
    if O.rot==1:
        a(f"s_lshl_b32 s{sPH}, s{sT}, 1"); a(f"s_add_u32 s{sPH}, s{sPH}, s{sRB}"); a(f"s_and_b32 s{sT}, s2, 1"); a(f"s_add_u32 s{sPH}, s{sPH}, s{sT}")
    elif O.rot==4:
        a(f"s_and_b32 s{sPH}, s2, 7")
    elif O.rot==5:
        a(f"s_add_u32 s{sPH}, s{sT}, s{sRB}"); a(f"s_lshl_b32 s{sPH}, s{sPH}, 2"); a(f"s_and_b32 s{sT}, s2, 3"); a(f"s_add_u32 s{sPH}, s{sPH}, s{sT}")
    else: a(f"s_mov_b32 s{sPH}, 0")
    a(f"s_and_b32 s{sI}, s{sW}, 3")
    a(f"s_cmp_lt_u32 s{sW}, 4"); a("s_cbranch_scc1 G_WAVE")
    lg=list(a.lg)
    A=a_wave(a); G=g_wave(a)
    next(A)
    a.label("G_WAVE"); a.vm=[]; a.lg=list(lg)
    next(G)
    next(A)
    a.label("FINAL")
    final_reduce(a)
    a.label("END")
    a("s_endpgm")
    next(A)
    next(G)
    return a

PROMO=("v_exp_f32","v_rcp_f32","v_mul_f32","v_add_f32","v_sub_f32","v_and_b32","v_xor_b32","v_or_b32","v_mov_b32","v_max_f32","v_lshlrev_b32","v_mov_b64","v_add_u32","v_lshrrev_b32","v_min_f32")
def align_pass(a):
    import subprocess, re, tempfile
    d=tempfile.mkdtemp()
    open(d+"/a.s","w").write('.amdgcn_target "amdgcn-amd-amdhsa--gfx950"\n.text\nK:\n'+a.text())
    subprocess.run(["clang","-x","assembler","-target","amdgcn-amd-amdhsa","-mcpu=gfx950","-c",d+"/a.s","-o",d+"/a.o"],check=True)
    dis=subprocess.run(["llvm-objdump","-d","--mcpu=gfx950",d+"/a.o"],capture_output=True,text=True).stdout
    sizes=[4*len(m.group(1).split()) for m in re.finditer(r"// [0-9A-F]{12}: ((?:[0-9A-F]{8} ?)+)",dis)]
    idx=[i for i,l in enumerate(a.out) if l.startswith("  ") and not l.startswith("  ;")]
    assert len(idx)==len(sizes),(len(idx),len(sizes))
    off=0; cand=None; n=0; bad=0
    for i,sz in zip(idx,sizes):
        mn=a.out[i].split()[0]
        if sz>=8:
            if off%8==4:
                if cand is not None:
                    m2=a.out[cand].split()[0]; a.out[cand]=a.out[cand].replace(m2,m2+"_e64",1); off+=4; n+=1
                else: bad+=1
            cand=None
        elif mn in PROMO:
            if off%8==0 or cand is None: cand=i
        off+=sz
    print("align: promoted",n,"left misaligned",bad,"bytes",off,file=sys.stderr)

def build():
    a=kernel()
    if O.align: align_pass(a)
    print("instrs",len(a.seq),"nops",a.nops,file=sys.stderr)
    K=NAME+"_kernel"
    s=f"; @launch grid=(256,1,1) block=(512,1,1) lds={LDS_SIZE}\n"
    s+='.amdgcn_target "amdgcn-amd-amdhsa--gfx950"\n'
    s+=f".text\n.p2align 12\n.globl {K}\n.p2align 8\n.type {K},@function\n{K}:\n"
    s+=a.text()
    s+="  s_endpgm\n.fill 8192, 4, 0xBF800000\n"
    s+=f""".section .rodata,"a"
.p2align 6
.amdhsa_kernel {K}
  .amdhsa_next_free_vgpr 256
  .amdhsa_next_free_sgpr 102
  .amdhsa_accum_offset 256
  .amdhsa_group_segment_fixed_size 0
  .amdhsa_kernarg_size 88
  .amdhsa_user_sgpr_count 2
  .amdhsa_user_sgpr_kernarg_segment_ptr 1
  .amdhsa_system_sgpr_workgroup_id_x 1
.end_amdhsa_kernel
"""
    return s

if __name__=="__main__":
    args=sys.argv[1:]
    out=f"cdna_kernels/{NAME}.s"
    for x in args:
        if x=="--stamp": O.stamp="s_memrealtime"
        elif x=="--cyc": O.stamp="s_memtime"
        elif x.startswith("--"):
            k,v=x[2:].split("="); assert hasattr(O,k); setattr(O,k,int(v))
        else: out=x
    open(out,"w").write(build())
```

```python
import sys, math, struct
sys.path.insert(0, "work")
from asmlib import *

NAME = "gated_mix__sliding_block__swiglu_ffn__prompt"
MB = 1<<20
WS_Q, WS_K, WS_V, WS_A3, WS_F, WS_ST = 0, 2*MB, 4*MB, 6*MB, 14*MB, 15*MB
WS_SIZE = 16*MB
A3_TB = 118*1024
LOG2E = math.log2(math.e)
def f2u(f): return struct.unpack("<I", struct.pack("<f", f))[0]
MF = "v_mfma_f32_32x32x16_bf16"
MF16 = "v_mfma_f32_16x16x32_bf16"
SLOT=28672
L_GW, L_Z, L_G, L_SY, LDS_SIZE = 159744, 160768, 161792, 162304, 162560
L_CNT, L_C14, L_C13, L_OF, L_AF = L_SY, L_SY+4, L_SY+8, L_SY+12, L_SY+16
PARK=33*4096
SPIN_MAX = 200000
OOB = 0x40000000

class Opt:
    stamp=None; probe=0; p0=9
    rot=5; codepf=1; warm=1; wst=0; outaux=2; sleep=2; align=1; forceslow=0
    NA=4; dl=1; thr=0; thrA=6; thr3=6; nA2=0; early=2; hpos=3; qs=4; w2=1; prio2=2; t0s=5; osl=4; dbl=11; park=0; qsig=24; sigk=10; rsl=1; pst=-2; wmode=1; wn=8; wsp=6; ap=0; afl=0; pa=12; ord=1; tm=0; nfull=0
O=Opt()

sWS,sX,sWQ,sWG,sWU,sWD,sWO,sOUT,sGW,sDBG = 4,8,12,16,20,24,28,32,36,40
sW,sI,sRB,sCG,sSB,sPH,sT,sT2,sT3,sTR,sTC = 44,45,46,47,48,49,50,51,52,53,54
sA,sB,sC,sD,sE,sF,sG_,sH,sLT = 55,56,57,58,59,60,61,62,63
sM=64
s1K,sDo,sHead,sRo = 98,99,100,101
vSTAMP=11

def stamp(a, idx, probe=0):
    if O.stamp and (probe==O.probe or idx in (0,15)):
        a(f"{O.stamp} s[96:97]"); a("s_waitcnt lgkmcnt(0)")
        a(f"v_writelane_b32 v{vSTAMP}, s96, {idx}")
def stamp_flush(a, vtmp):
    if O.stamp:
        a("s_waitcnt vmcnt(0)"); stamp(a,15)
        a(f"s_lshl_b32 s{sT}, s2, 3"); a(f"s_add_u32 s{sT}, s{sT}, s{sW}"); a(f"s_lshl_b32 s{sT}, s{sT}, 6")
        a(f"s_add_u32 s{sT}, s{sT}, {WS_ST}")
        a(f"v_mbcnt_lo_u32_b32 v{vtmp}, -1, 0"); a(f"v_lshlrev_b32 v{vtmp}, 2, v{vtmp}")
        a("s_mov_b64 exec, 0xffff")
        a(f"buffer_store_dword v{vSTAMP}, v{vtmp}, {sr(sWS,4)}, s{sT} offen")

def srd_tail(a, d, size):
    a(f"s_mov_b32 s{d+2}, {size:#x}"); a(f"s_mov_b32 s{d+3}, 0x20000")
def late_srds(a):
    for d,size in ((sWS,WS_SIZE),(sDBG,256),(sWG,512*2752),(sWU,512*2752),(sWD,1376*1024),(sWO,512*1024),(sOUT,2*MB)):
        srd_tail(a,d,size)
def late_scalars(a):
    a(f"s_mul_i32 s{sT}, s{sCG}, 43"); a(f"s_lshr_b32 s{sT}, s{sT}, 7")
    a(f"s_mul_i32 s{sSB}, s{sCG}, 3"); a(f"s_sub_u32 s{sSB}, s{sSB}, s{sT}")
    a(f"s_mul_i32 s{sT}, s{sT}, 3"); a(f"s_sub_u32 s{sT}, s{sCG}, s{sT}"); a(f"s_cmp_eq_u32 s{sT}, 2")
    a(f"s_cselect_b32 s{sLT}, {OOB:#x}, 0")
    a(f"s_and_b32 s{sTR}, s2, 7"); a(f"s_lshl_b32 s{sTR}, s{sTR}, 2"); a(f"s_bfe_u32 s{sT}, s2, 0x20003"); a(f"s_add_u32 s{sTR}, s{sTR}, s{sT}")
    a(f"s_lshr_b32 s{sTC}, s2, 5")
    a(f"s_lshl_b32 s{s1K}, s{sI}, 10")
    a(f"s_lshl_b32 s{sDo}, s{sI}, 14"); a(f"s_lshl_b32 s{sT}, s{sTC}, 7"); a(f"s_add_u32 s{sDo}, s{sDo}, s{sT}")
    a(f"s_lshl_b32 s{sRo}, s{sTR}, 1"); a(f"s_add_u32 s{sRo}, s{sRo}, s{sTC}"); a(f"s_and_b32 s{sRo}, s{sRo}, 7")
    a(f"s_mul_i32 s{sH}, s{sRo}, 21"); a(f"s_lshr_b32 s{sH}, s{sH}, 3")
    a(f"s_lshl_b32 s{sH}, s{sH}, 16"); a(f"s_lshl_b32 s{sRo}, s{sRo}, 16")

_uid=[0]
def uid(p): _uid[0]+=1; return f"{p}{_uid[0]}"
def poll(a, vdst, vaddr, srd, soff, first_tag=None, expect=1, sleep=None):
    L=uid("PL")
    if first_tag is not None:
        a.wait(vm=[first_tag])
        a(f"v_cmp_ne_u32 vcc, {expect}, v{vdst}")
        a(f"s_cbranch_vccz {L}_D")
    a(f"s_mov_b32 s{sT3}, {SPIN_MAX}")
    keep=list(a.vm)
    a.label(L)
    a(f"buffer_load_dword v{vdst}, v{vaddr}, {sr(srd,4)}, {soff} offen sc1")
    a("s_waitcnt vmcnt(0)")
    a(f"v_cmp_ne_u32 vcc, {expect}, v{vdst}")
    a(f"s_cbranch_vccz {L}_D")
    a(f"s_sleep {sleep or O.sleep}")
    a(f"s_sub_u32 s{sT3}, s{sT3}, 1")
    a(f"s_cmp_lg_u32 s{sT3}, 0")
    a(f"s_cbranch_scc1 {L}")
    a.label(L+"_D")
    if first_tag is not None: a.vm=keep
def lds_poll(a, vaddr, vdst, expect, off=0):
    L=uid("LP")
    a(f"s_mov_b32 s{sT3}, {SPIN_MAX}")
    a.label(L); a(f"ds_read_b32 v{vdst}, v{vaddr} offset:{off}"); a("s_waitcnt lgkmcnt(0)")
    a(f"v_cmp_ne_u32 vcc, {expect}, v{vdst}"); a(f"s_cbranch_vccz {L}_D"); a("s_sleep 1")
    a(f"s_sub_u32 s{sT3}, s{sT3}, 1"); a(f"s_cmp_lg_u32 s{sT3}, 0"); a(f"s_cbranch_scc1 {L}")
    a.label(L+"_D")
def lds_inc(a, vaddr, vone, off):
    a("s_mov_b64 exec, 1"); a(f"ds_add_u32 v{vaddr}, v{vone} offset:{off}"); a("s_mov_b64 exec, -1")
def emit(a, ops, tag=None):
    for op in ops:
        for o in (op if isinstance(op,tuple) else (op,)): a(o,tag)

def signal(a, kind, vtmp, tag=None):
    a(f"s_lshl_b32 s{sT}, s{sRB}, 4"); a(f"s_add_u32 s{sT}, s{sT}, s{sCG}"); a(f"s_lshl_b32 s{sT}, s{sT}, 5")
    a(f"s_add_u32 s{sT}, s{sT}, s{sI}"); a(f"s_lshl_b32 s{sT}, s{sT}, 2"); a(f"s_add_u32 s{sT}, s{sT}, {WS_F+kind*32768}")
    a(f"v_mov_b32 v{vtmp}, 1")
    a("s_mov_b64 exec, 1")
    if tag: a.wait(vm=[tag])
    else: a("s_waitcnt vmcnt(0)")
    a(f"buffer_store_dword v{vtmp}, off, {sr(sWS,4)}, s{sT} sc1", "flag")
    a("s_mov_b64 exec, -1")

def flag_lane_ops(vF, vL, t0, t1, sdst, kind):
    return [f"v_and_b32 v{t0}, 15, v{vL}", f"v_bfe_u32 v{t1}, v{vL}, 4, 1", f"v_lshlrev_b32 v{t1}, 2, v{t1}", f"v_lshl_add_u32 v{vF}, v{t0}, 7, v{t1}",
            f"s_lshr_b32 s{sdst}, s{sTR}, 1", f"s_lshl_b32 s{sdst}, s{sdst}, 11", f"s_and_b32 s{sT}, s{sTR}, 1", f"s_lshl_b32 s{sT}, s{sT}, 3",
            f"s_add_u32 s{sdst}, s{sdst}, s{sT}", f"s_add_u32 s{sdst}, s{sdst}, {WS_F+kind*32768}"]
def qaddr_ops(i):
    t,e=i>>1,i&1
    o=[f"s_mul_i32 s{sT}, s{sCG}, 3", f"s_add_u32 s{sT}, s{sT}, {t}", f"s_lshl_b32 s{sT2}, s{sRB}, 2", f"s_add_u32 s{sT2}, s{sT2}, s{sI}",
       (f"s_cmp_ge_u32 s{sT}, 32", f"s_cselect_b32 s{sT3}, 11, 10"), f"s_lshl_b32 s{sT2}, s{sT2}, s{sT3}"]
    if e: o+=[(f"s_cmp_ge_u32 s{sT}, 32", f"s_cselect_b32 s{sT3}, 1, 64"), f"s_lshl_b32 s{sT3}, s{sT3}, 10", f"s_add_u32 s{sT2}, s{sT2}, s{sT3}"]
    return o+[f"s_lshl_b32 s{sT}, s{sT}, 17", f"s_add_u32 s{sT}, s{sT}, s{sT2}"]
def w3_lane_ops(vD, vL, t0, t1):
    return [f"v_bfe_u32 v{t0}, v{vL}, 4, 1", f"v_lshlrev_b32 v{t0}, 2, v{t0}", f"v_and_b32 v{t1}, 7, v{vL}", f"v_xor_b32 v{t0}, v{t0}, v{t1}",
            f"v_lshlrev_b32 v{t0}, 4, v{t0}", f"v_lshrrev_b32 v{t1}, 3, v{vL}", f"v_lshl_add_u32 v{vD}, v{t1}, 10, v{t0}",
            f"v_add_u32 v{vD}, s{sDo}, v{vD}", f"v_add_u32 v{vD+1}, 8192, v{vD}"]

ROWS = list(range(28,39))+[6,13,20] + [0,1,2,3,4,5,7,8,9,10,11,12] + [14,15,16,17,18,19,21,22,23,24,25,26]
NRES=19; NT0=7; NREG=11; NS3=30
LOAD=[0,1,2,3,4,22,23, 5,6,7,8,9,10, 11,12,13,14,15,16, 17,18,19,20,21,24,25,26,27,28,29]
POS={n:p for p,n in enumerate(LOAD)}
A2LIST=list(range(7,13))+list(range(19,26))
def row_of(p,e): return ROWS[2*(p%NRES)+e]
def rot_off(n):
    if n<21: return [f"s_add_u32 s{sT2}, s{sH}, {n<<16}", f"s_add_u32 s{sT3}, s{sH}, {((n-21)<<16)&0xffffffff:#x}", f"s_min_u32 s{sT2}, s{sT2}, s{sT3}"]
    if n==21: return [f"s_and_b32 s{sT2}, s{sI}, 2", f"s_lshl_b32 s{sT2}, s{sT2}, 14", f"s_sub_u32 s{sT2}, {21<<16}, s{sT2}"]
    return [f"s_add_u32 s{sT2}, s{sRo}, {(n-22)<<16}", f"s_and_b32 s{sT2}, s{sT2}, {7<<16}"]
def w3_dma(a, p, vD, tag):
    n=LOAD[p]; R=sWD if n<22 else sWO
    a(f"s_add_u32 m0, s{s1K}, {row_of(p,0)*4096}")
    emit(a,rot_off(n))
    a(f"buffer_load_dwordx4 v{vD}, {sr(R,4)}, s{sT2} offen lds", tag)
    a(f"s_add_u32 m0, s{s1K}, {row_of(p,1)*4096}")
    a(f"buffer_load_dwordx4 v{vD+1}, {sr(R,4)}, s{sT2} offen lds", tag)

def final_reduce(a):
    vL,vA,vO,B = 1,2,6,16
    a(f"v_mbcnt_lo_u32_b32 v{vL}, -1, 0"); a(f"v_mbcnt_hi_u32_b32 v{vL}, -1, v{vL}")
    a(f"v_lshrrev_b32 v3, 3, v{vL}")
    a(f"v_bfe_u32 v4, v{vL}, 4, 1"); a(f"v_bfe_u32 v5, v{vL}, 3, 1"); a(f"v_lshl_or_b32 v4, v5, 1, v4")
    a(f"v_and_b32 v5, 4, v3"); a(f"v_or_b32 v4, v4, v5")
    a(f"v_and_b32 v5, 3, v{vL}"); a(f"v_lshlrev_b32 v5, 1, v5"); a(f"v_xor_b32 v4, v4, v5"); a(f"v_lshlrev_b32 v4, 4, v4")
    a(f"v_lshl_add_u32 v{vA}, v3, 7, v4")
    a(f"v_bfe_u32 v5, v{vL}, 2, 1"); a(f"v_lshl_add_u32 v{vA}, v5, 14, v{vA}")
    a(f"s_lshr_b32 s{sT}, s{sW}, 2"); a(f"s_lshl_b32 s{sT}, s{sT}, 15"); a(f"s_lshl_b32 s{sT2}, s{sI}, 12"); a(f"s_add_u32 s{sT}, s{sT}, s{sT2}")
    a(f"v_add_u32 v{vA}, s{sT}, v{vA}")
    a(f"v_and_b32 v5, 7, v{vL}"); a(f"v_lshlrev_b32 v5, 4, v5"); a(f"v_lshl_add_u32 v{vO}, v3, 10, v5")
    a(f"v_xor_b32 v{vA+1}, 16, v{vA}")
    a(f"s_lshl_b32 s{sT}, s{sTR}, 16"); a(f"s_lshl_b32 s{sT2}, s{sTC}, 7"); a(f"s_add_u32 s{sT}, s{sT}, s{sT2}")
    a(f"s_lshl_b32 s{sT2}, s{sW}, 13"); a(f"s_add_u32 s{sT}, s{sT}, s{sT2}")
    a("s_waitcnt lgkmcnt(0)"); a("s_barrier")
    stamp(a,13)
    for w in range(4):
        for hf in range(2):
            a(f"ds_read_b128 {vr(B+8*w+4*hf,4)}, v{vA+hf} offset:{w*1024}", ("rr",w))
    a.wait(lg=[("rr",1)])
    for r in range(0,8,2): a(f"v_pk_add_f32 {vr(B+r,2)}, {vr(B+r,2)}, {vr(B+8+r,2)}")
    a.wait(lg=[("rr",3)])
    for r in range(0,8,2): a(f"v_pk_add_f32 {vr(B+16+r,2)}, {vr(B+16+r,2)}, {vr(B+24+r,2)}")
    for r in range(0,8,2): a(f"v_pk_add_f32 {vr(B+r,2)}, {vr(B+r,2)}, {vr(B+16+r,2)}")
    for r in range(4): a(f"v_cvt_pk_bf16_f32 v{B+8+r}, v{B+2*r}, v{B+2*r+1}")
    aux=[""," sc1"," nt"," sc0 sc1"][O.outaux]
    a(f"buffer_store_dwordx4 {vr(B+8,4)}, v{vO}, {sr(sOUT,4)}, s{sT} offen{aux}", "out")
    stamp(a,14)
    stamp_flush(a,3)

def g_wave(a):
    vSt,vXa,vTm,vTq,vT2 = 0,1,3,5,7
    WB,NW,ACC,XR = 12,5,32,128
    GF,GA,vGb,vGa = 80,88,92,93
    vC,vS2,vPk,vSy = 4,3,5,6
    sSt,sK = sB,sC
    t0,t1,vL = 12,13,14
    a(f"v_and_b32 v{vL}, 63, v0")
    if O.codepf:
        a(f"s_lshr_b32 s{sT}, s2, 3"); a(f"s_lshl_b32 s{sT}, s{sT}, 7"); a(f"s_lshl_b32 s{sT2}, s{sI}, 14"); a(f"s_add_u32 s{sT}, s{sT}, s{sT2}")
        a(f"v_lshl_add_u32 v{t0}, v{vL}, 12, s{sT}")
        a("s_mov_b64 exec, 15")
        a(f"global_load_dword v97, v{t0}, s[66:67]", "cpf")
        a("s_mov_b64 exec, -1")
    late_srds(a); late_scalars(a)
    a(f"v_lshlrev_b32 v{vSt}, 4, v{vL}")
    a(f"v_and_b32 v{t0}, 31, v{vL}"); a(f"v_lshrrev_b32 v{t1}, 5, v{vL}")
    a(f"v_bfe_u32 v{vXa}, v{vL}, 1, 3"); a(f"v_xor_b32 v{vXa}, v{vXa}, v{t1}"); a(f"v_lshlrev_b32 v{vXa}, 4, v{vXa}")
    a(f"v_lshl_add_u32 v{vXa}, v{t0}, 7, v{vXa}")
    a(f"s_lshl_b32 s{sT}, s{sI}, 12"); a(f"v_add_u32 v{vXa}, s{sT}, v{vXa}"); a(f"v_add_u32 v{vXa+1}, {2*SLOT}, v{vXa}")
    a(f"v_lshrrev_b32 v{vGb}, 4, v{vL}"); a(f"v_xor_b32 v{vGb}, v{vGb}, v{vL}"); a(f"v_and_b32 v{vGb}, 1, v{vGb}")
    a(f"v_lshlrev_b32 v{vGb}, 10, v{vGb}"); a(f"v_lshl_add_u32 v{vGb}, v{t1}, 4, v{vGb}"); a(f"v_add_u32 v{vGb}, {L_GW}, v{vGb}")
    a(f"v_bfe_u32 v{t0}, v{vL}, 2, 2"); a(f"v_lshl_add_u32 v{t0}, v{t1}, 3, v{t0}"); a(f"v_lshlrev_b32 v{t0}, 6, v{t0}")
    a(f"v_and_b32 v{t1}, 3, v{vL}"); a(f"v_lshl_add_u32 v{t0}, v{t1}, 3, v{t0}")
    a(f"v_bfe_u32 v{t1}, v{vL}, 4, 1")
    a(f"v_lshl_add_u32 v{t0}, v{t1}, 5, v{t0}")
    a(f"v_add_u32 v{vTq}, 16384, v{t0}"); a(f"v_add_u32 v{vTq+1}, {16384+2*SLOT}, v{t0}")
    a(f"v_mul_u32_u24 v{t1}, 3072, v{t1}"); a(f"v_add_u32 v{vT2}, v{t0}, v{t1}")
    a(f"v_xor_b32 v{vT2+1}, 32, v{vT2}")
    a(f"v_add_u32 v{vT2+2}, {2*SLOT}, v{vT2}"); a(f"v_add_u32 v{vT2+3}, {2*SLOT}, v{vT2+1}")
    a(f"v_cmp_ne_u32 s[64:65], 0, v{t1}")
    for r in (16,17,18,19): a(f"v_mov_b32 v{r}, 0")
    a(f"v_add_u32 v{t0}, {L_Z}, v{vSt}"); a(f"ds_write_b128 v{t0}, v[16:19]")
    a(f"v_mov_b32 v{t0}, {L_SY}"); a(f"ds_write_b128 v{t0}, v[16:19]"); a(f"ds_write_b128 v{t0}, v[16:19] offset:16")
    a("s_waitcnt lgkmcnt(0)")
    a(f"s_lshl_b32 s{sT}, s{sCG}, 2"); a(f"s_add_u32 s72, s{sT}, s{sI}"); a(f"s_cmp_lg_u32 s72, 3"); a("s_cbranch_scc1 G_NOINIT")
    a(f"v_and_b32 v{t0}, 15, v{vL}"); a(f"v_lshrrev_b32 v{t1}, 4, v{vL}"); a(f"v_lshlrev_b32 v{t0}, 7, v{t0}"); a(f"v_lshl_add_u32 v{t0}, v{t1}, 15, v{t0}")
    a(f"s_lshl_b32 s{sT}, s{sRB}, 11"); a(f"s_add_u32 s{sT}, s{sT}, {WS_F}")
    a("s_mov_b32 exec_hi, 0xffff")
    a(f"buffer_store_dwordx4 v[16:19], v{t0}, {sr(sWS,4)}, s{sT} offen sc1")
    a("s_mov_b32 exec_hi, -1")
    a.label("G_NOINIT")
    if O.pst!=-2:
        for r in (104,105,106,107): a(f"v_mov_b32 v{r}, -1")
        a(f"s_and_b32 s{sT2}, s{sI}, 2"); a(f"s_lshl_b32 s{sT}, s{sRB}, 2"); a(f"s_add_u32 s{sT}, s{sT}, s{sT2}"); a(f"s_mul_i32 s{sT}, s{sT}, {A3_TB}")
        a(f"s_and_b32 s{sT2}, s{sI}, 1"); a(f"s_lshl_b32 s{sT3}, s{sCG}, 1"); a(f"s_add_u32 s{sT2}, s{sT2}, s{sT3}"); a(f"s_lshl_b32 s{sT2}, s{sT2}, 10")
        a(f"s_add_u32 s{sT}, s{sT}, s{sT2}"); a(f"s_add_u32 s82, s{sT}, {WS_A3+86*1024}"); a(f"s_add_u32 s83, s82, {A3_TB}")
    def poison():
        for i in range(2): a(f"buffer_store_dwordx4 v[104:107], v{vSt}, {sr(sWS,4)}, s{82+i} offen sc1")
    if O.warm:
        a(f"s_cmp_eq_u32 s{sI}, 1"); a(f"s_cselect_b32 s68, s{sWU}, s{sWG}"); a(f"s_cselect_b32 s69, s{sWU+1}, s{sWG+1}")
        a(f"s_cmp_eq_u32 s{sI}, 2"); a(f"s_cselect_b32 s68, s{sWD}, s68"); a(f"s_cselect_b32 s69, s{sWD+1}, s69")
        a(f"s_mov_b32 s70, {1376*1024}")
        a(f"s_cmp_eq_u32 s{sI}, 3"); a(f"s_cselect_b32 s68, s{sWO}, s68"); a(f"s_cselect_b32 s69, s{sWO+1}, s69")
        a(f"s_cselect_b32 s70, {512*1024}, s70"); a("s_mov_b32 s71, 0x20000")
        a(f"s_mul_i32 s{sT}, s2, {43*128}")
        a(f"v_lshl_add_u32 v98, v{vL}, 7, s{sT}")
    def warm2():
        if O.warm:
            a(f"s_mov_b32 exec_hi, 0x7ff"); a(f"buffer_load_dword v99, v98, s[68:71], 0 offen"); a(f"s_mov_b32 exec_hi, -1")
    if O.wmode==1: a(f"s_lshr_b32 s84, s2, 3"); a(f"s_and_b32 s84, s84, {O.wn-1}")
    if O.wmode==2: a(f"s_mov_b32 s84, s{sI}")
    if O.wmode==3: a(f"s_and_b32 s84, s2, {O.wn-1}")
    def warm_slot(k):
        L=uid("GW"); a(f"s_cmp_lg_u32 s84, {k}"); a(f"s_cbranch_scc1 {L}"); warm2()
        if O.pst==-1: poison()
        a.label(L)
    def g_publish():
        a(f"s_cmp_lg_u32 s72, 3"); a("s_cbranch_scc1 G_NOPUB")
        a(f"s_lshl_b32 s{sT}, s{sRB}, 2"); a("v_mov_b32 v100, 1"); a("s_mov_b64 exec, 1"); a("s_waitcnt vmcnt(0)")
        a(f"buffer_store_dword v100, off, {sr(sDBG,4)}, s{sT} sc1"); a("s_mov_b64 exec, -1")
        a.label("G_NOPUB")
    if O.wst<0 and not O.wmode: warm2()
    if O.wst<0 and O.wmode: warm_slot(0)
    if not O.park:
        for i in range(6): emit(a,qaddr_ops(i)); a(f"s_mov_b32 s{76+i}, s{sT}")
    a("s_setprio 2")
    a(f"s_cmp_eq_u32 s{sCG}, 10"); a("s_cbranch_scc1 G_V1")
    a(f"s_cmp_gt_u32 s{sCG}, 10"); a("s_cbranch_scc1 G_V2")
    a("s_branch G_V0")
    yield

    seq=[]
    for st in range(8):
        for j in range(4):
            for t in range(3): seq.append((st,j,t))
    for j in range(4):
        for u in (3,4,5): seq.append((8,j,u))
    for u in (0,1,2):
        for j in range(4): seq.append((8,j,u))
    for st in range(9,14):
        for j in range(4):
            for u in range(6): seq.append((st,j,u))
    MT=len(seq)
    for u in range(6):
        for st in (14,15):
            for j in range(4): seq.append((st,j,u))
    N=len(seq); AH=NW-1; M8=96
    first={}
    for m,(st,j,t) in enumerate(seq): first.setdefault(st,m)
    ool=[]
    def reads(m):
        st,j,t=seq[m]; q=st&3; wb=WB+4*(m%NW); tg=("r",m)
        if first[st]==m and st<14:
            if O.dbl<=st<13: a("s_waitcnt lgkmcnt(0)")
            if O.p0<=st<O.p0+4: stamp(a,1+3*(st-O.p0),1)
            a("s_barrier")
            if O.p0<=st<O.p0+4: stamp(a,2+3*(st-O.p0),1)
            if st in (0,1,8,9): stamp(a,{0:1,1:2,8:3,9:4}[st])
            if st<9: stamp(a,2+st,3)
        if m==MT:
            a.wait(lg=["c14"])
            a(f"v_cmp_ne_u32 vcc, 4, v2"); a("s_cbranch_vccnz G_W14"); a.label("G_R14")
            def w14():
                a.label("G_W14"); a.lg=[]; lds_poll(a,vSy,2,4,L_C14-L_SY); a("s_branch G_R14")
            ool.append(w14)
            stamp(a,5); stamp(a,1,4)
        if st<8:
            if t==0:
                k=st*4+j; tm=vTm+(k&1)
                if j: a(f"v_xor_b32 v{tm}, {32*j}, v{vXa+(q>>1)}")
                else:
                    a(f"s_add_u32 s{sK}, s{sPH}, {st}"); a(f"s_and_b32 s{sK}, s{sK}, 7"); a(f"s_lshl_b32 s{sK}, s{sK}, 7")
                    a(f"v_add_u32 v{vGa}, s{sK}, v{vGb}")
                a(f"ds_read_b128 {vr(XR+4*k,4)}, v{tm if j else vXa+(q>>1)} offset:{(q&1)*SLOT}", tg)
                a(f"ds_read_b128 {vr(GF+4*(k&1),4)}, v{vGa} offset:{j*32}", tg)
            for e in range(2):
                a(f"ds_read_b64_tr_b16 {vr(wb+2*e,2)}, v{vTq+(q>>1)} offset:{(q&1)*SLOT+(j*3+t)*1024+e*256}", tg)
        else:
            for e in range(2):
                a(f"ds_read_b64_tr_b16 {vr(wb+2*e,2)}, v{vT2+2*(q>>1)+(t&1)} offset:{(q&1)*SLOT+j*6144+(t>>1)*1024+e*256}", tg)
    rp=[0]
    def pump(m):
        while rp[0]<N and rp[0]<=m+AH:
            r=rp[0]; st=seq[r][0]
            if first[st]==r and O.dbl<=st<13 and m<r-AH+O.dl: break
            reads(r); rp[0]+=1
    def mfma(m, vmask):
        st,j,t=seq[m]; k=(st&7)*4+j; A=vr(ACC+16*t,16)
        W,X=vr(WB+4*(m%NW),4),vr(XR+4*k,4)
        a.wait(lg=[("r",m),("r",m+1)] if (O.w2 and m>=MT+8 and m%2==0) else [("r",m)])
        if st<8 and t==0:
            a(f"{MF16} {vr(GA,4)}, {vr(GF+4*(k&1),4)}, {X}, {'0' if k==0 else vr(GA,4)}")
        p,q_=(X,W) if (st<8 and (vmask>>t)&1) else (W,X)
        a(f"{MF} {A}, {p}, {q_}, {'0' if k==0 else A}")
    for vi,vmask in ((1,4),(2,7),(0,0)):
        a.label(f"G_V{vi}")
        a.vm=[]; a.lg=[]; rp[0]=0
        pump(-1)
        for m in range(M8):
            if m==M8-6: a("s_waitcnt vmcnt(0)")
            if m==12 and vi==0: g_publish()
            if not O.wmode and m==12*O.wst+1: warm2()
            if O.wmode:
                for k in range(O.wn):
                    if m==12*O.wst+1+k*O.wsp: warm_slot(k)
            if m==O.pst: poison()
            mfma(m,vmask); pump(m)
        if vi: a("s_branch G_P2")
    a.label("G_P2")
    fill={}
    def spread(ops, m0, m1):
        for i,o in enumerate(ops): fill.setdefault(m0+(i*(m1-m0))//len(ops),[]).append(o)
    SS=[0,4,8,11,15,17,20] if not O.park else [0,3,6,8,11,13,15]
    for i in range(6):
        A=ACC+8*i
        ops=[f"s_add_u32 s{sT}, s{s1K}, {PARK}", f"v_add_u32 v{vPk}, s{sT}, v{vSt}"] if (i==0 and O.park) else []
        for r in range(4): ops.append(f"v_cvt_pk_bf16_f32 v{A+r}, v{A+2*r}, v{A+2*r+1}")
        ops.append(f"ds_write_b128 v{vPk}, {vr(A,4)} offset:{i*4096}" if O.park else f"buffer_store_dwordx4 {vr(A,4)}, v{vSt}, {sr(sWS,4)}, s{76+i} offen sc1")
        spread(ops,M8+SS[i],M8+SS[i+1])
    spread([f"v_mul_f32 v{vC}, {f2u(LOG2E):#x}, v{vC}", f"v_exp_f32 v1, -v{vC}", f"v_exp_f32 v{vC}, v{vC}",
            f"v_add_f32 v1, 1.0, v1", f"v_add_f32 v{vC}, 1.0, v{vC}", f"v_rcp_f32 v1, v1", f"v_min_f32 v{vC}, {f2u(1e38):#x}, v{vC}",
            f"v_bfe_u32 v2, v{vSt}, 4, 5", f"s_lshl_b32 s{sT}, s{sI}, 7", f"s_add_u32 s{sT}, s{sT}, {L_G}",
            f"v_lshl_add_u32 v2, v2, 2, s{sT}", f"ds_write_b32 v2, v1", f"v_add_u32 v{vS2}, s{sLT}, v{vSt}",
            f"v_mov_b32 v{vSy}, {L_SY}"], M8+20, M8+27)
    vL,vD,vR,vA,vW,t0,t1,vF,vP = 147,148,150,156,158,162,163,146,145
    WB3,ACC3,AF,WR = 12,32,96,164; NA=O.NA; NF=22-NA; NR=NA+1; assert AF+8*NR<=144
    ops=[f"v_lshrrev_b32 v{vL}, 4, v{vSt}"]+w3_lane_ops(vD,vL,t0,t1)
    ops+=[f"v_lshrrev_b32 v{t0}, 5, v{vL}", f"v_bfe_u32 v{t1}, v{vL}, 2, 2", f"v_lshl_add_u32 v{t0}, v{t0}, 2, v{t1}", f"v_lshlrev_b32 v{vR}, 7, v{t0}",
          f"v_bfe_u32 v{t0}, v{vL}, 3, 1", f"v_lshl_add_u32 v{vR}, v{t0}, 6, v{vR}", f"v_bfe_u32 v{t0}, v{vL}, 4, 1", f"v_lshl_add_u32 v{vR}, v{t0}, 5, v{vR}",
          f"v_and_b32 v{t0}, 3, v{vL}", f"v_lshl_add_u32 v{vR}, v{t0}, 3, v{vR}", f"v_add_u32 v{vR}, s{s1K}, v{vR}",
          f"v_add_u32 v{vR+2}, 65536, v{vR}", f"v_add_u32 v{vR+4}, 131072, v{vR}"]
    ops+=[f"v_xor_b32 v{vR+2*g+1}, 64, v{vR+2*g}" for g in range(3)]
    ops+=[f"s_mul_i32 s{sT}, s{sTR}, {2*A3_TB}", f"s_add_u32 s{sT}, s{sT}, s{s1K}", f"s_add_u32 s{sT}, s{sT}, {WS_A3}",
          f"v_add_u32 v{vA}, s{sT}, v{vSt}", f"v_add_u32 v{vA+1}, {A3_TB}, v{vA}"]
    ops+=[f"v_bfe_u32 v{t0}, v{vL}, 1, 1", f"v_and_b32 v{t1}, 1, v{vL}", f"v_lshl_or_b32 v{t0}, v{t1}, 1, v{t0}", f"v_and_b32 v{t1}, 4, v{vL}",
          f"v_or_b32 v{t0}, v{t0}, v{t1}", f"v_lshrrev_b32 v{t1}, 5, v{vL}", f"v_xor_b32 v{t0}, v{t0}, v{t1}", f"v_lshlrev_b32 v{t0}, 4, v{t0}",
          f"v_and_b32 v{t1}, 7, v{vL}", f"v_lshl_add_u32 v{vW}, v{t1}, 7, v{t0}", f"v_bfe_u32 v{t1}, v{vL}, 3, 2",
          f"v_lshl_add_u32 v{vW}, v{t1}, 12, v{vW}", f"v_add_u32 v{vW}, s{s1K}, v{vW}"]
    ops+=[f"v_xor_b32 v{vW+q}, {32*q}, v{vW}" for q in range(1,4)]
    ops+=[f"s_lshl_b32 s{sT}, s{sRB}, 2", f"s_add_u32 s{sT}, s{sT}, s{sI}", f"s_mul_i32 s{sSt}, s{sT}, {A3_TB}", f"s_lshl_b32 s{sT}, s{sSB}, 11",
          f"s_add_u32 s{sSt}, s{sSt}, s{sT}", f"s_add_u32 s{sSt}, s{sSt}, {WS_A3}", f"s_add_u32 s{sD}, s{sSt}, 4096", f"s_mov_b32 s{sA}, {f2u(-LOG2E):#x}",
          f"v_mov_b32 v1, 1"]+flag_lane_ops(vF,vL,t0,t1,sG_,1)
    spread(ops,first[11]+2,first[13]+12)
    def rd3_ops(p, wb):
        return [(f"ds_read_b64_tr_b16 {vr(wb+4*cb+2*q,2)}, v{vR+2*(row_of(p,q)>>4)+cb} offset:{(row_of(p,q)&15)*4096}", ("r3",p)) for cb in range(2) for q in range(2)]
    def rd3(p,wb):
        for o,t in rd3_ops(p,wb): a(o,t)
    T=XR
    def ffn_epi(n):
        A=ACC+16*n; ops=[]; R=range(8)
        for r in R: ops.append(f"v_mul_f32 v{T+r}, s{sA}, v{A+r}")
        for r in R: ops.append(f"v_exp_f32 v{T+r}, v{T+r}"); ops.append(f"v_mul_f32 v{A+r}, v{A+r}, v{A+8+r}")
        for r in R: ops.append(f"v_fma_f32 v{T+r}, v{T+r}, v{vC}, v{vC}")
        for r in R: ops.append(f"v_rcp_f32 v{T+r}, v{T+r}")
        for r in R: ops.append(f"v_mul_f32 v{A+r}, v{A+r}, v{T+r}")
        for r in range(4): ops.append(f"v_cvt_pk_bf16_f32 v{A+8+r}, v{A+2*r}, v{A+2*r+1}")
        ops.append(f"buffer_store_dwordx4 {vr(A+8,4)}, v{vSt if n<4 else vS2}, {sr(sWS,4)}, s{sSt if n<4 else sD} offen offset:{(n&3)*1024} sc1")
        return ops
    def epi_a(n):
        A=ACC+16*n; ops=[]
        for r in range(8): ops.append(f"v_mul_f32 v{A+8+r}, v{A+r}, v{A+8+r}"); ops.append(f"v_mul_f32 v{A+r}, s{sA}, v{A+r}")
        for r in range(8): ops.append(f"v_exp_f32 v{A+r}, v{A+r}")
        return ops
    def epi_a_pk(n):
        A=ACC+16*n; ops=[]
        for r in range(0,8,2): ops.append(f"v_pk_mul_f32 {vr(A+8+r,2)}, {vr(A+r,2)}, {vr(A+8+r,2)}")
        for r in range(0,8,2): ops.append(f"v_pk_mul_f32 {vr(A+r,2)}, {vr(A+r,2)}, {vr(T+2,2)}")
        for r in range(8): ops.append(f"v_exp_f32 v{A+r}, v{A+r}")
        return ops
    def epi_b1(n):
        A=ACC+16*n
        return [f"v_pk_fma_f32 {vr(A+r,2)}, {vr(A+r,2)}, {vr(T,2)}, {vr(T,2)}" for r in range(0,8,2)]+[f"v_rcp_f32 v{A+r}, v{A+r}" for r in range(8)]
    def epi_b2(n):
        A=ACC+16*n
        ops=[f"v_pk_mul_f32 {vr(A+r,2)}, {vr(A+r,2)}, {vr(A+8+r,2)}" for r in range(0,8,2)]
        ops+=[f"v_cvt_pk_bf16_f32 v{A+8+r}, v{A+2*r}, v{A+2*r+1}" for r in range(4)]
        ops.append(ffn_epi(n)[-1])
        return ops
    for u in range(5): spread(ffn_epi(u) if (not O.tm or u<O.nfull) else epi_a(u), MT+8*(u+1)+(1 if (not O.tm or u<O.nfull) else 2), MT+8*(u+2)+(1 if u<4 else 0))
    a(f"v_cndmask_b32 v{vC}, v{GA}, v{GA+1}, s[64:65]")
    for m in range(M8,N):
        if m>=MT+8 and (m-MT)%8==0: stamp(a,1+(m-MT)//8,4)
        mfma(m,0)
        if m==MT-AH-3: a(f"ds_read_b32 v2, v{vSy} offset:{L_C14-L_SY}", "c14")
        pump(m)
        if O.pst>=120 and m==O.pst-2: a("v_mov_b64 v[132:133], -1"); a("v_mov_b64 v[134:135], -1")
        if O.pst>=120 and m in (O.pst,O.pst+4): a(f"buffer_store_dwordx4 v[132:135], v{vSt}, {sr(sWS,4)}, s{82+(m!=O.pst)} offen sc1")
        if not O.park and m==first[9]+O.qsig: signal(a,0,vPk)
        if MT<=m<MT+NT0: rd3(m-MT, WR+8*(m-MT))
        if m==MT+NT0: lds_inc(a,vSy,1,L_C13-L_SY)
        if m==N-AH: lds_inc(a,vSy,1,L_CNT-L_SY)
        emit(a,fill.get(m,[]),"hst")
    stamp(a,6); stamp(a,7,4)
    if not O.tm: emit(a,ffn_epi(5),"hst")
    else:
        emit(a,[f"v_mov_b32 v{T}, v{vC}", f"v_mov_b32 v{T+1}, v{vC}", f"v_mov_b32 v{T+2}, s{sA}", f"v_mov_b32 v{T+3}, s{sA}"])
        us=list(range(O.nfull,6))
        for i,u in enumerate(us):
            if u==5: emit(a,epi_a_pk(5))
            if u==5 and i: emit(a,epi_b2(us[i-1]),"hst")
            emit(a,epi_b1(u))
            if i and u!=5: emit(a,epi_b2(us[i-1]),"hst")
        emit(a,epi_b2(5),"hst")
    stamp(a,7); stamp(a,8,4)
    glist=list(range(13,19))+[p for p in A2LIST[O.nA2:]]
    glist.sort(key=lambda p: (p>=13,p))
    lds_poll(a,vSy,t1,4,L_CNT-L_SY)
    for p in glist[:O.early]: w3_dma(a,p,vD,("w",p))
    signal(a,1,t0,"hst")
    if O.prio2==1: a("s_setprio 0")
    stamp(a,8)
    def preread():
        a(f"s_lshl_b32 s{sT}, s{sI}, 2"); a(f"v_add_u32 v{t0}, s{sT}, v{vSy}")
        lds_poll(a,t0,t1,1,L_AF-L_SY)
        a.wait(vm=[("w",p) for p in range(NT0,NREG)])
        for p in range(NT0,NREG): rd3(p, WR+8*p)
        a("s_waitcnt lgkmcnt(0)")
    rest=glist[O.early:]+list(range(26,30)); npre=len(rest)-4
    if O.nA2>=4: npre=min(npre,2)
    hp=max(len(rest)-O.hpos,npre)
    for i,p in enumerate(rest):
        if i==npre: preread()
        if i==hp: a(f"buffer_load_dword v{vP}, v{vF}, {sr(sWS,4)}, s{sG_} offen sc1", "hf")
        w3_dma(a,p,vD,("w",p))
        if O.thr3: a(f"s_waitcnt vmcnt({O.thr3})")
    stamp(a,9)
    poll(a,vP,vF,sWS,f"s{sG_}",first_tag="hf" if hp<len(rest) else None)
    stamp(a,10)
    def aload_ops(n):
        af=AF+8*(n%NR); ops=[(o,None) for o in rot_off(n)]
        ops.append((f"s_lshr_b32 s{sT2}, s{sT2}, 4",None))
        if n>=22: ops.append((f"s_add_u32 s{sT2}, s{sT2}, {86*1024}",None))
        for tb in range(2):
            ops.append((f"buffer_load_dwordx4 {vr(af+4*tb,4)}, v{vA+tb}, {sr(sWS,4)}, s{sT2} offen sc1", ("a",n)))
        return ops
    def aload(n):
        for o,t in aload_ops(n): a(o,t)
    def chk_ops(n):
        af=AF+8*(n%NR)
        return [f"v_max3_u32 v{t0}, v{af}, v{af+1}, v{af+2}", f"v_max3_u32 v{t1}, v{af+3}, v{af+4}, v{af+5}",
                f"v_max3_u32 v{t0}, v{t0}, v{af+6}, v{af+7}", f"v_max_u32 v{t0}, v{t0}, v{t1}", f"v_cmp_eq_u32 vcc, -1, v{t0}"]
    def check(n):
        emit(a,chk_ops(n)); a(f"s_cbranch_vccnz G_RT{n}"); a.label(f"G_OK{n}")
        def retry():
            a.label(f"G_RT{n}"); a.vm=[]; a.lg=[]
            a(f"s_mov_b32 s{sE}, {SPIN_MAX}")
            a.label(f"G_RL{n}")
            a(f"s_sleep {O.rsl}")
            aload(n); a("s_waitcnt vmcnt(0)")
            emit(a,chk_ops(n)); a(f"s_cbranch_vccz G_OK{n}")
            a(f"s_sub_u32 s{sE}, s{sE}, 1"); a(f"s_cmp_lg_u32 s{sE}, 0"); a(f"s_cbranch_scc1 G_RL{n}")
            a(f"s_branch G_OK{n}")
        ool.append(retry)
    def step3(n):
        af=AF+8*(n%NR); wb=WR+8*POS[n] if POS[n]<NREG else WB3+8*(n&1)
        if n%2==0 and n<28: stamp(a,1+n//2,2)
        nxt = n+1<NS3 and POS[n+1]>=NREG
        a.wait(vm=[("a",n)]+([("w",POS[n+1])] if nxt else []), lg=[("r3",POS[n])])
        al = aload_ops(n+NA) if n+NA<NS3 else []
        def mf(i):
            tb,cb=i>>1,i&1; A=ACC3+16*i
            a(f"{MF} {vr(A,16)}, {vr(wb+4*cb,4)}, {vr(af+4*tb,4)}, {'0' if n==0 else vr(A,16)}")
        if n==21:
            if nxt: rd3(POS[n+1], WB3+8*((n+1)&1))
            for o,t in al: a(o,t)
            a(f"s_cmp_ge_u32 s{sI}, 2"); a(f"s_cbranch_scc1 G_SK21")
            for i in range(4): mf(i)
            a.label(f"G_SK21")
        else:
            mf(0)
            if nxt: rd3(POS[n+1], WB3+8*((n+1)&1))
            mf(1)
            for o,t in al[:-1]: a(o,t)
            mf(2)
            for o,t in al[-1:]: a(o,t)
            mf(3)
        if 22<=n+1<NS3:
            a.wait(vm=[("a",n+1)]); check(n+1)
    for n in range(NA): aload(n)
    if O.prio2==2: a("s_setprio 0")
    for n in range(NS3):
        if n==21: stamp(a,11)
        step3(n)
    stamp(a,12)
    for p in range(4):
        for q in range(4):
            a(f"ds_write_b128 v{vW+q}, {vr(ACC3+16*p+4*q,4)} offset:{p*16384}", "red")
    a("s_branch FINAL")
    for f in ool: f()
    yield

def a_wave(a):
    vSt,vL,vVo,vT0,vT1,vM,vM2,vBig,vGt = 0,1,2,3,4,5,6,7,8
    vP=10
    MK=12; Q=20; KF=28; VF=68; SM=148; S0=164; S1=180; CM=196; O_=212; P=228; P2=236
    vX0,vX1,vWq,vWg,vWu,vWg2,vWu2,vD,vBig2,vSy,vOne = 228,229,230,231,232,233,234,244,246,247,248
    PK=SM
    sXo,sQo,sFo,sLx,sLq,sK,sIt,sSl = sA,sB,sC,sD,sE,sF,64,65
    a(f"v_and_b32 v{vL}, 63, v0")
    a(f"v_lshrrev_b32 v{vT0}, 3, v{vL}"); a(f"v_lshrrev_b32 v{vT1}, 4, v{vL}")
    a(f"v_and_b32 v{vX0}, 7, v{vL}"); a(f"v_xor_b32 v{vX0}, v{vX0}, v{vT1}"); a(f"v_lshlrev_b32 v{vX0}, 4, v{vX0}")
    a(f"v_lshl_add_u32 v{vX0}, v{vT0}, 10, v{vX0}")
    a(f"v_xor_b32 v{vX1}, 64, v{vX0}"); a(f"v_add_u32 v{vX1}, {8192-1024}, v{vX1}")
    a(f"v_lshrrev_b32 v{vT0}, 2, v{vL}"); a(f"v_and_b32 v{vT1}, 3, v{vL}")
    a(f"v_mul_u32_u24 v{vWq}, 3072, v{vT0}"); a(f"v_lshl_add_u32 v{vWq}, v{vT1}, 4, v{vWq}")
    a(f"s_lshl_b32 s{sXo}, s{sRB}, 2"); a(f"s_add_u32 s{sXo}, s{sXo}, s{sI}"); a(f"s_lshl_b32 s{sXo}, s{sXo}, 15")
    a(f"s_lshl_b32 s{sT}, s{sI}, 8"); a(f"s_add_u32 s{sT}, s{sT}, s{sCG}"); a(f"s_mul_i32 s{sQo}, s{sT}, 192")
    a(f"s_lshl_b32 s{sLx}, s{sI}, 12"); a(f"s_mul_i32 s{sLq}, s{sI}, 3072")
    a(f"s_mov_b32 s{sIt}, 0")
    a(f"v_lshlrev_b32 v{vSt}, 4, v{vL}")
    srd_tail(a,sGW,1024)
    a("s_waitcnt lgkmcnt(0)")
    def issue1():
        a(f"s_add_u32 s{sK}, s{sPH}, s{sIt}"); a(f"s_and_b32 s{sK}, s{sK}, 7")
        a(f"s_and_b32 s{sSl}, s{sIt}, 3"); a(f"s_mul_i32 s{sSl}, s{sSl}, {SLOT}")
        a(f"s_add_u32 m0, s{sLx}, s{sSl}")
        a(f"s_lshl_b32 s{sT}, s{sK}, 7"); a(f"s_add_u32 s{sT}, s{sT}, s{sXo}")
        a(f"buffer_load_dwordx4 v{vX0}, {sr(sX,4)}, s{sT} offen lds")
        a(f"buffer_load_dwordx4 v{vX1}, {sr(sX,4)}, s{sT} offen offset:1024 lds")
        a(f"s_add_u32 s{sT}, s{sT}, {16384-2048}")
        a(f"buffer_load_dwordx4 v{vX0}, {sr(sX,4)}, s{sT} offen offset:2048 lds")
        a(f"buffer_load_dwordx4 v{vX1}, {sr(sX,4)}, s{sT} offen offset:3072 lds")
        a(f"s_add_u32 s{sT}, s{sSl}, s{sLq}")
        a(f"s_mul_i32 s{sT2}, s{sK}, {64*3072}")
        for t in range(3):
            a(f"s_add_u32 m0, s{sT}, {16384+t*1024-t*64}")
            if t==0: a(f"s_add_u32 s{sT2}, s{sT2}, s{sQo}")
            a(f"buffer_load_dwordx4 v{vWq}, {sr(sWQ,4)}, s{sT2} offen offset:{t*64} lds")
    issue1()
    a(f"s_mov_b32 m0, {L_GW}"); a(f"s_mov_b32 s{sIt}, 1"); a(f"buffer_load_dwordx4 v{vSt}, {sr(sGW,4)}, 0 offen lds")
    if O.ord==1: issue1()
    stamp(a,1)
    late_srds(a); late_scalars(a)
    a(f"v_mul_u32_u24 v{vWg}, 2752, v{vT0}"); a(f"v_xor_b32 v{vWu}, 2, v{vT1}")
    a(f"v_lshl_add_u32 v{vWu}, v{vWu}, 4, v{vWg}"); a(f"v_lshl_add_u32 v{vWg}, v{vT1}, 4, v{vWg}")
    a(f"v_add_u32 v{vWg2}, s{sLT}, v{vWg}"); a(f"v_add_u32 v{vWu2}, s{sLT}, v{vWu}")
    a(f"s_mul_i32 s{sFo}, s{sI}, {16*2752}"); a(f"s_lshl_b32 s{sT}, s{sSB}, 6"); a(f"s_add_u32 s{sFo}, s{sFo}, s{sT}")
    if O.ord==2: issue1()
    a.label("A_L1")
    a("s_waitcnt vmcnt(7)"); a("s_barrier")
    a(f"s_add_u32 s{sIt}, s{sIt}, 1"); a(f"s_cmp_ge_u32 s{sIt}, 8"); a("s_cbranch_scc1 A_P2")
    issue1()
    a("s_branch A_L1")
    yield
    a.label("A_P2")
    a.lg=[]; a.vm=[(("d",7),set())]*7
    a(f"s_lshl_b32 s{sLq}, s{sLq}, 1")
    def dmas(st):
        q=st&3; tg=("d",st)
        a(f"s_add_u32 s{sK}, s{sPH}, {st&7}"); a(f"s_and_b32 s{sK}, s{sK}, 7")
        a(f"s_mul_i32 s{sT2}, s{sK}, {64*2752}"); a(f"s_add_u32 s{sT2}, s{sT2}, s{sFo}")
        for m in range(2):
            for t in range(3):
                v=(vWu2 if m else vWg2) if t==2 else (vWu if m else vWg)
                a(f"s_add_u32 m0, s{sLq}, {q*SLOT+(m*3+t)*1024-t*64}")
                a(f"buffer_load_dwordx4 v{v}, {sr(sWU if m else sWG,4)}, s{sT2} offen offset:{t*64} lds", tg)
    sQB,sKo,sVo,sN = sG_,sA,sB,sD
    korder=[8,0,7,6,5,4,3,2,1,9]
    def setup_attn(part):
        if part==0:
            emit(a,w3_lane_ops(vD,vL,vM,vM2))
            a(f"s_and_b32 s{sT}, s{sI}, 1"); a(f"s_lshl_b32 s{sHead}, s{sCG}, 1"); a(f"s_add_u32 s{sHead}, s{sHead}, s{sT}")
            a(f"s_and_b32 s{sT2}, s{sI}, 2"); a(f"s_lshl_b32 s{sQB}, s{sRB}, 2"); a(f"s_add_u32 s{sQB}, s{sQB}, s{sT2}")
            a(f"v_mov_b32 v{vSy}, {L_SY}"); a(f"v_mov_b32 v{vOne}, 1")
        if part==1:
            a(f"v_mov_b32 v{vGt}, 0x3f803f80"); a(f"v_mov_b32 v{vGt+1}, 0x3f803f80")
            for r in range(0,80,2):
                if r&4: a(f"v_mov_b64 {vr(VF+r,2)}, {vr(vGt,2)}")
        if part==2:
            a(f"v_and_b32 v{vT0}, 31, v{vL}")
            a(f"v_lshrrev_b32 v{vT1}, 5, v{vL}"); a(f"v_lshlrev_b32 v{vT1}, 2, v{vT1}"); a(f"v_sub_u32 v{vT0}, v{vT0}, v{vT1}")
            for r in range(16): a(f"v_cmp_le_i32 {sr(sM+2*r,2)}, {(r&3)+8*(r>>2)}, v{vT0}")
            a(f"v_mov_b32 v{vBig}, 0xffff"); a(f"v_mov_b32 v{vM}, 0xffff0000")
            for i in range(8):
                a(f"v_cndmask_b32 v{MK+i}, 0, v{vBig}, {sr(sM+4*i,2)}")
                a(f"v_cndmask_b32 v{vT1}, 0, v{vM}, {sr(sM+4*i+2,2)}")
                a(f"v_or_b32 v{MK+i}, v{MK+i}, v{vT1}")
            a(f"v_mov_b32 v{vBig}, {f2u(-1e30):#x}"); a(f"v_mov_b32 v{vBig2}, {f2u(2.0**60):#x}")
            a(f"v_and_b32 v{vVo}, 47, v{vL}"); a(f"v_lshlrev_b32 v{vVo}, 4, v{vVo}")
            a(f"v_and_b32 v{vT1}, 16, v{vL}"); a(f"v_lshl_add_u32 v{vVo}, v{vT1}, 6, v{vVo}")
        if part==3:
            a(f"v_and_b32 v{vT0}, 15, v{vL}"); a(f"v_min_u32 v{vT0}, 9, v{vT0}")
            a(f"v_and_b32 v{vT1}, 1, v{vL}"); a(f"v_or_b32 v{vT1}, 8, v{vT1}")
            a(f"v_cmp_le_u32 vcc, 32, v{vL}"); a(f"v_cndmask_b32 v{vT0}, v{vT0}, v{vT1}, vcc")
            a(f"s_sub_u32 s{sT}, s{sQB}, 8"); a(f"v_add_u32 v{vT0}, s{sT}, v{vT0}"); a(f"v_max_i32 v{vT0}, 0, v{vT0}")
            a(f"v_add_u32 v{vT1}, 16, v{vL}"); a(f"v_and_b32 v{vT1}, 48, v{vT1}"); a(f"v_cndmask_b32 v{vT1}, v{vT1}, 0, vcc")
            a(f"v_add_u32 v{vT1}, s{sCG}, v{vT1}"); a(f"v_mul_u32_u24 v{vT1}, 43, v{vT1}"); a(f"v_lshrrev_b32 v{vT1}, 7, v{vT1}")
            a(f"v_lshrrev_b32 v{vM}, 2, v{vT0}"); a(f"v_lshl_add_u32 v{vT1}, v{vM}, 4, v{vT1}"); a(f"v_lshlrev_b32 v{vT1}, 7, v{vT1}")
            a(f"v_and_b32 v{vT0}, 3, v{vT0}"); a(f"v_lshl_add_u32 v{vM2}, v{vT0}, 2, v{vT1}")
            a(f"s_lshl_b32 s{sKo}, s{sHead}, 16")
            a(f"s_and_b32 s{sT}, s{sI}, 1"); a(f"s_lshl_b32 s{sT}, s{sT}, 8")
            a(f"s_lshl_b32 s{sVo}, s{sCG}, 17"); a(f"s_add_u32 s{sVo}, s{sVo}, s{sT}"); a(f"s_add_u32 s{sVo}, s{sVo}, {WS_V}")
            a(f"s_mov_b32 s{sN}, {WS_F}")
        if part==4:
            a(f"v_and_b32 v{vT1}, 31, v{vL}"); a(f"s_and_b32 s{sT}, s{sI}, 2"); a(f"s_lshl_b32 s{sT}, s{sT}, 7"); a(f"s_add_u32 s{sT}, s{sT}, {L_G}")
            a(f"v_lshl_add_u32 v{vT1}, v{vT1}, 2, s{sT}")
            for u in range(2): a(f"ds_read_b32 v{vGt+u}, v{vT1} offset:{u*128}")
            a("s_waitcnt lgkmcnt(0)")
    def unpark():
        a(f"s_add_u32 s{sT}, s{s1K}, {PARK}"); a(f"v_add_u32 v{vT0}, s{sT}, v{vSt}")
        for i in range(6): a(f"ds_read_b128 {vr(PK+4*i,4)}, v{vT0} offset:{i*4096}")
    def qstore(i):
        emit(a,qaddr_ops(i))
        a(f"buffer_store_dwordx4 {vr(PK+4*i,4)}, v{vSt}, {sr(sWS,4)}, s{sT} offen sc1", "qst")
    def vswap(ns):
        for n in ns:
            a.wait(vm=[("v",n)])
            for r in range(4): a(f"v_permlane16_swap_b32 v{VF+8*n+r}, v{VF+8*n+4+r}")
    def a2flag():
        a(f"s_lshl_b32 s{sT3}, s{sI}, 2"); a(f"v_add_u32 v{vT0}, s{sT3}, v{vSy}")
        a("s_waitcnt vmcnt(0)"); a(f"ds_write_b32 v{vT0}, v{vOne} offset:{L_AF-L_SY}")
    def attn_slow():
        for u in range(2):
            Qr=vr(Q+4*u,4); nd=8+u; no=u
            K_=lambda n: vr(KF+4*n,4)
            a(f"s_add_u32 s{sN}, s{sQB}, {u}")
            if u==0: stamp(a,7)
            a(f"{MF} {vr(S0,16)}, {K_(nd)}, {Qr}, 0")
            a(f"{MF} {vr(S1,16)}, {K_(no)}, {Qr}, 0")
            bufs=[CM,O_,S0,S1]
            def smf(d, c="0", buf=None): a(f"{MF} {vr(buf,16)}, {K_(nd-d)}, {Qr}, {c}")
            smf(1,buf=bufs[0]); smf(2,buf=bufs[1])
            a(f"s_cmp_ge_u32 s{sN}, 8"); a(f"s_cbranch_scc1 AT_OLD{u}")
            for r in range(16): a(f"v_mov_b32 v{S1+r}, v{vBig}")
            a.label(f"AT_OLD{u}")
            for r in range(16): a(f"v_cndmask_b32 v{SM+r}, v{S1+r}, v{S0+r}, {sr(sM+2*r,2)}")
            a(f"v_max3_f32 v{vM}, v{SM}, v{SM+1}, v{SM+2}")
            a(f"v_max3_f32 v{vM2}, v{SM+3}, v{SM+4}, v{SM+5}")
            for r in range(6,16,4):
                a(f"v_max3_f32 v{vM}, v{vM}, v{SM+r}, v{SM+r+1}")
                if r+2<16: a(f"v_max3_f32 v{vM2}, v{vM2}, v{SM+r+2}, v{SM+r+3}")
            for d in range(1,8):
                a(f"s_cmp_lt_u32 s{sN}, {d}"); a(f"s_cbranch_scc1 AT_MX{u}")
                if d+2<8: smf(d+2,buf=bufs[(d+1)%4])
                b=bufs[(d-1)%4]
                for r in range(0,16,4):
                    a(f"v_max3_f32 v{vM}, v{vM}, v{b+r}, v{b+r+1}")
                    a(f"v_max3_f32 v{vM2}, v{vM2}, v{b+r+2}, v{b+r+3}")
            a.label(f"AT_MX{u}")
            a(f"v_max_f32 v{vM}, v{vM}, v{vM2}")
            a(f"v_mov_b32 v{vM2}, v{vM}")
            if u==0: a2flag()
            a(f"v_permlane32_swap_b32 v{vM}, v{vM2}")
            a(f"v_max_f32 v{vM}, v{vM}, v{vM2}")
            a(f"v_sub_f32 v{CM}, 0, v{vM}")
            a(f"v_mov_b32 v{CM+1}, v{CM}")
            for r in range(2,16,2): a(f"v_mov_b64 {vr(CM+r,2)}, {vr(CM,2)}")
            sb=[S0,S1]
            a(f"v_sub_f32 v{SM}, v{SM}, v{vM}"); a(f"v_sub_f32 v{SM+1}, v{SM+1}, v{vM}")
            smf(1,vr(CM,16),sb[1])
            for r in range(2,16): a(f"v_sub_f32 v{SM+r}, v{SM+r}, v{vM}")
            for r in range(16): a(f"v_exp_f32 v{SM+r}, v{SM+r}")
            for r in range(8): a(f"v_cvt_pk_bf16_f32 v{P2+r}, v{SM+2*r}, v{SM+2*r+1}")
            for r in range(8): a(f"v_and_b32 v{P+r}, v{P2+r}, v{MK+r}")
            a(f"{MF} {vr(O_,16)}, {vr(VF+8*nd,4)}, {vr(P,4)}, 0")
            for r in range(4): a(f"v_xor_b32 v{P2+r}, v{P2+r}, v{P+r}")
            a(f"{MF} {vr(O_,16)}, {vr(VF+8*nd+4,4)}, {vr(P+4,4)}, {vr(O_,16)}")
            for r in range(4,8): a(f"v_xor_b32 v{P2+r}, v{P2+r}, v{P+r}")
            a(f"{MF} {vr(O_,16)}, {vr(VF+8*no,4)}, {vr(P2,4)}, {vr(O_,16)}"); a(f"{MF} {vr(O_,16)}, {vr(VF+8*no+4,4)}, {vr(P2+4,4)}, {vr(O_,16)}")
            for d in range(1,8):
                a(f"s_cmp_lt_u32 s{sN}, {d}"); a(f"s_cbranch_scc1 AT_FIN{u}")
                b=sb[d&1]; pb=P if d&1 else P2; n=nd-d
                for r in range(4): a(f"v_exp_f32 v{b+r}, v{b+r}")
                if d+1<8: smf(d+1,vr(CM,16),sb[(d+1)&1])
                for r in range(4,9): a(f"v_exp_f32 v{b+r}, v{b+r}")
                for r in range(4): a(f"v_cvt_pk_bf16_f32 v{pb+r}, v{b+2*r}, v{b+2*r+1}")
                for r in range(9,11): a(f"v_exp_f32 v{b+r}, v{b+r}")
                a(f"{MF} {vr(O_,16)}, {vr(VF+8*n,4)}, {vr(pb,4)}, {vr(O_,16)}")
                for r in range(11,16): a(f"v_exp_f32 v{b+r}, v{b+r}")
                for r in range(4,8): a(f"v_cvt_pk_bf16_f32 v{pb+r}, v{b+2*r}, v{b+2*r+1}")
                a(f"{MF} {vr(O_,16)}, {vr(VF+8*n+4,4)}, {vr(pb+4,4)}, {vr(O_,16)}")
            a.label(f"AT_FIN{u}")
            a(f"s_mul_i32 s{sT}, s{sN}, {A3_TB}"); a(f"s_lshl_b32 s{sT2}, s{sHead}, 10"); a(f"s_add_u32 s{sT}, s{sT}, s{sT2}")
            a(f"s_add_u32 s{sT}, s{sT}, {WS_A3+86*1024}")
            a(f"v_rcp_f32 v{vT0}, v{O_+8}")
            a(f"v_mul_f32 v{vT0}, v{vT0}, v{vGt+u}")
            for r in range(8): a(f"v_mul_f32 v{O_+r}, v{O_+r}, v{vT0}")
            for r in range(4): a(f"v_cvt_pk_bf16_f32 v{SM+r}, v{O_+2*r}, v{O_+2*r+1}")
            for r in range(4): a(f"v_min_u32 v{SM+r}, -2, v{SM+r}")
            a(f"buffer_store_dwordx4 {vr(SM,4)}, v{vSt}, {sr(sWS,4)}, s{sT} offen sc1", "ost")
            stamp(a,8+u)
    def attn_fast():
        K_=lambda n: vr(KF+4*n,4)
        sb=[S0,S1]; sOv=0
        def smf(u,d): a(f"{MF} {vr(sb[d&1],16)}, {K_(8+u-d)}, {vr(Q+4*u,4)}, {vr(CM,16)}")
        def head(u):
            for r in range(16): a(f"v_cndmask_b32 v{SM+r}, v{SM+r}, v{S0+r}, {sr(sM+2*r,2)}")
            a(f"v_max3_f32 v{vM}, v{SM}, v{SM+1}, v{SM+2}")
            a(f"v_max3_f32 v{vM2}, v{SM+3}, v{SM+4}, v{SM+5}")
            a(f"v_max3_f32 v{vM}, v{vM}, v{SM+6}, v{SM+7}"); a(f"v_max3_f32 v{vM2}, v{vM2}, v{SM+8}, v{SM+9}")
            a(f"v_max3_f32 v{vM}, v{vM}, v{SM+10}, v{SM+11}"); a(f"v_max3_f32 v{vM2}, v{vM2}, v{SM+12}, v{SM+13}")
            a(f"v_max3_f32 v{vM}, v{vM}, v{SM+14}, v{SM+15}")
            a(f"v_max_f32 v{vM}, v{vM}, v{vM2}")
            a(f"v_mov_b32 v{vM2}, v{vM}")
            a(f"s_mul_i32 s{sT}, s{sQB}, {A3_TB}"); a(f"s_lshl_b32 s{sT2}, s{sHead}, 10")
            a(f"v_permlane32_swap_b32 v{vM}, v{vM2}")
            a(f"v_max_f32 v{vM}, v{vM}, v{vM2}")
            a(f"v_sub_f32 v{CM}, 0, v{vM}")
            a(f"v_sub_f32 v{CM+1}, 0, v{vM}")
            for r in range(2,16,2): a(f"v_mov_b64 {vr(CM+r,2)}, {vr(CM,2)}")
            a(f"v_sub_f32 v{SM}, v{SM}, v{vM}"); a(f"v_sub_f32 v{SM+1}, v{SM+1}, v{vM}")
            smf(u,1)
        def fin(u):
            a(f"s_add_u32 s{sT}, s{sT}, s{sT2}"); a(f"s_add_u32 s{sT}, s{sT}, {WS_A3+86*1024+u*A3_TB}")
            a(f"v_rcp_f32 v{vT0}, v{O_+8}")
            a(f"v_cmp_ngt_f32 vcc, v{vBig2}, v{O_+8}")
            a(f"v_mul_f32 v{vT0}, v{vT0}, v{vGt+u}")
            a("s_branch AT_SLOW" if O.forceslow==u+1 else "s_cbranch_vccnz AT_SLOW")
            for r in range(8): a(f"v_mul_f32 v{O_+r}, v{O_+r}, v{vT0}")
            for r in range(4): a(f"v_cvt_pk_bf16_f32 v{P+r}, v{O_+2*r}, v{O_+2*r+1}")
            for r in range(4): a(f"v_min_u32 v{P+r}, -2, v{P+r}")
            a(f"buffer_store_dwordx4 {vr(P,4)}, v{vSt}, {sr(sWS,4)}, s{sT} offen sc1", "ost")
            stamp(a,8+u)
        def body(u):
            nd=8+u; no=u
            for r in range(2,16): a(f"v_sub_f32 v{SM+r}, v{SM+r}, v{vM}")
            for r in range(16): a(f"v_exp_f32 v{SM+r}, v{SM+r}")
            if u==0: a2flag()
            for r in range(8): a(f"v_cvt_pk_bf16_f32 v{P2+r}, v{SM+2*r}, v{SM+2*r+1}")
            for r in range(6): a(f"v_and_b32 v{P+r}, v{P2+r}, v{MK+r}")
            a(f"{MF} {vr(O_,16)}, {vr(VF+8*nd,4)}, {vr(P,4)}, 0")
            for r in range(6,8): a(f"v_and_b32 v{P+r}, v{P2+r}, v{MK+r}")
            for r in range(4): a(f"v_xor_b32 v{P2+r}, v{P2+r}, v{P+r}")
            a(f"{MF} {vr(O_,16)}, {vr(VF+8*nd+4,4)}, {vr(P+4,4)}, {vr(O_,16)}")
            for r in range(4,8): a(f"v_xor_b32 v{P2+r}, v{P2+r}, v{P+r}")
            pend=[f"{MF} {vr(O_,16)}, {vr(VF+8*no,4)}, {vr(P2,4)}, {vr(O_,16)}", f"{MF} {vr(O_,16)}, {vr(VF+8*no+4,4)}, {vr(P2+4,4)}, {vr(O_,16)}"]
            for d in range(1,8):
                b=sb[d&1]; pb=P if d&1 else P2; n=nd-d
                a(f"v_exp_f32 v{b}, v{b}")
                if len(pend)>1: a(pend.pop(0))
                for r in range(1,4): a(f"v_exp_f32 v{b+r}, v{b+r}")
                a(pend.pop(0))
                for r in range(4,8): a(f"v_exp_f32 v{b+r}, v{b+r}")
                if d<7: smf(u,d+1)
                elif u==0: a(f"{MF} {vr(S0,16)}, {K_(9)}, {vr(Q+4,4)}, 0")
                a(f"v_exp_f32 v{b+8}, v{b+8}")
                for r in range(4): a(f"v_cvt_pk_bf16_f32 v{pb+r}, v{b+2*r}, v{b+2*r+1}")
                for r in range(9,11): a(f"v_exp_f32 v{b+r}, v{b+r}")
                a(f"{MF} {vr(O_,16)}, {vr(VF+8*n,4)}, {vr(pb,4)}, {vr(O_,16)}")
                for r in range(11,14): a(f"v_exp_f32 v{b+r}, v{b+r}")
                if d==7 and u==0: a(f"{MF} {vr(SM,16)}, {K_(1)}, {vr(Q+4,4)}, 0")
                for r in range(14,16): a(f"v_exp_f32 v{b+r}, v{b+r}")
                for r in range(4,8): a(f"v_cvt_pk_bf16_f32 v{pb+r}, v{b+2*r}, v{b+2*r+1}")
                pend=[f"{MF} {vr(O_,16)}, {vr(VF+8*n+4,4)}, {vr(pb+4,4)}, {vr(O_,16)}"]
            a(pend.pop(0))
        stamp(a,7)
        a(f"{MF} {vr(S0,16)}, {K_(8)}, {vr(Q,4)}, 0")
        a(f"{MF} {vr(SM,16)}, {K_(0)}, {vr(Q,4)}, 0")
        head(0); body(0); head(1); fin(0)
        a(f"s_mul_i32 s{sT}, s{sQB}, {A3_TB}")
        body(1); fin(1)
    stages={k:([k+2] if k<O.dbl else [k+2,k+3] if k==O.dbl else [k+3]) for k in range(6,13)}
    t0sched=[{7:[0],10:[1],11:[2,3],12:[4,5,6]},{7:[0],8:[1],10:[2],11:[3,4],12:[5,6]},{10:[0,1],11:[2,3],12:[4,5,6]},{11:[0,1,2],12:[3,4,5,6]},{12:[0,1,2,3,4,5,6]},{7:[0],8:[1],10:[2,3],12:[4,5,6]}][O.t0s]
    a(f"v_and_b32 v{vBig}, 15, v{vL}"); a(f"v_lshlrev_b32 v{vBig}, 2, v{vBig}")
    for k in range(6,13):
        if k==6: a(f"buffer_load_dword v{vP}, v{vBig}, {sr(sDBG,4)}, 0 offen sc1", "init")
        if k==9 and O.park: unpark()
        if k==10 and O.park:
            for i in range(O.qs,6): qstore(i)
        for st in stages[k]: dmas(st)
        if k==6: setup_attn(0)
        if k==9 and O.park:
            a("s_waitcnt lgkmcnt(0)")
            for i in range(O.qs): qstore(i)
        if k==O.pa:
            a(f"v_mov_b64 {vr(S1,2)}, -1"); a(f"v_mov_b64 {vr(S1+2,2)}, -1")
            a(f"s_mul_i32 s{sT}, s{sQB}, {A3_TB}"); a(f"s_lshl_b32 s{sT2}, s{sHead}, 10"); a(f"s_add_u32 s{sT}, s{sT}, s{sT2}"); a(f"s_add_u32 s{sT}, s{sT}, {WS_A3+86*1024}")
            a(f"buffer_store_dwordx4 {vr(S1,4)}, v{vSt}, {sr(sWS,4)}, s{sT} offen sc1"); a(f"s_add_u32 s{sT}, s{sT}, {A3_TB}")
            a(f"buffer_store_dwordx4 {vr(S1,4)}, v{vSt}, {sr(sWS,4)}, s{sT} offen sc1")
        for p in t0sched.get(k,[]): w3_dma(a,p,vD,("t0",p))
        if O.p0<=k<O.p0+4: stamp(a,3+3*(k-O.p0),1)
        if k in (8,9,10,11): setup_attn(k-7)
        if k==O.sigk and O.park: signal(a,0,vT0,"qst")
        a.wait(vm=[("d",k+1)])
        if k==7: poll(a,vP,vBig,sDBG,"0",first_tag="init")
        if O.p0<=k+1<O.p0+4: stamp(a,1+3*(k+1-O.p0),1)
        a("s_barrier")
        if O.p0<=k+1<O.p0+4: stamp(a,2+3*(k+1-O.p0),1)
        if k+1 in (8,13): stamp(a,{8:3,13:4}[k+1])
    a(f"buffer_load_dword v{vP}, v{vM2}, {sr(sWS,4)}, s{sN} offen sc1", "qf")
    a("s_waitcnt vmcnt(1)")
    lds_inc(a,vSy,vOne,L_C14-L_SY)
    poll(a,vP,vM2,sWS,f"s{sN}",first_tag="qf")
    stamp(a,5)
    a(f"s_lshl_b32 s{sT}, s{sQB}, 10"); a(f"s_add_u32 s{sT}, s{sT}, s{sKo}")
    for u in range(2): a(f"buffer_load_dwordx4 {vr(Q+4*u,4)}, v{vSt}, {sr(sWS,4)}, s{sT} offen offset:{u*1024} sc1", ("q",u))
    a(f"s_add_u32 s{sKo}, s{sKo}, {WS_K}")
    for n in korder:
        a(f"s_add_i32 s{sT}, s{sQB}, {n-8}"); a(f"s_max_i32 s{sT}, s{sT}, 0"); a(f"s_lshl_b32 s{sT}, s{sT}, 11"); a(f"s_add_u32 s{sT}, s{sT}, s{sVo}")
        a(f"buffer_load_dwordx4 {vr(VF+8*n,4)}, v{vVo}, {sr(sWS,4)}, s{sT} offen sc1", ("v",n))
        if O.thr: a(f"s_waitcnt vmcnt({O.thr})")
    for n in korder:
        a(f"s_add_i32 s{sT}, s{sQB}, {n-8}"); a(f"s_max_i32 s{sT}, s{sT}, 0"); a(f"s_lshl_b32 s{sT}, s{sT}, 10"); a(f"s_add_u32 s{sT}, s{sT}, s{sKo}")
        a(f"buffer_load_dwordx4 {vr(KF+4*n,4)}, v{vSt}, {sr(sWS,4)}, s{sT} offen sc1", ("k",n))
        if O.thr: a(f"s_waitcnt vmcnt({O.thr})")
    stamp(a,6)
    lds_poll(a,vSy,vT1,4,L_C13-L_SY)
    if O.ap: a("s_setprio 3")
    prep=[]
    def qscale(h):
        a.wait(vm=[("q",1)])
        for r in range(4*h,4*h+4):
            a(f"v_lshlrev_b32 v{S0+2*r}, 16, v{Q+r}"); a(f"v_and_b32 v{S0+2*r+1}, 0xffff0000, v{Q+r}")
        for r in range(8*h,8*h+8): a(f"v_mul_f32 v{S0+r}, {f2u(0.25*LOG2E):#x}, v{S0+r}")
        for r in range(4*h,4*h+4): a(f"v_cvt_pk_bf16_f32 v{Q+r}, v{S0+2*r}, v{S0+2*r+1}")
    prep=[lambda:qscale(0),lambda:qscale(1)]+[(lambda i=i: vswap(korder[2*i:2*i+2])) for i in range(5)]
    for i,p in enumerate(A2LIST[:O.nA2]):
        if O.thrA: a(f"s_waitcnt vmcnt({O.thrA})")
        w3_dma(a,p,vD,("a2",p))
        if prep and not O.ap: prep.pop(0)()
    if O.afl: a2flag()
    if O.ap: a("s_setprio 0")
    stamp(a,10)
    for f in prep: f()
    a.wait(vm=[("k",n) for n in range(10)])
    if O.prio2: a("s_setprio 1")
    a(f"s_cmp_lt_u32 s{sQB}, 8"); a("s_cbranch_scc1 AT_SLOW")
    vm0=list(a.vm)
    attn_fast()
    a.label("AT_DONE")
    yield
    a.label("AT_SLOW"); a.vm=list(vm0); a.lg=[]
    attn_slow(); a("s_branch AT_DONE")
    yield

def kernel():
    a=Asm()
    a("s_getpc_b64 s[66:67]")
    a(f"s_load_dwordx2 {sr(sX,2)}, s[0:1], 0"); a(f"s_load_dwordx2 {sr(sWQ,2)}, s[0:1], 8")
    a("s_cmp_ge_u32 s2, 256"); a("s_cbranch_scc1 END")
    a("v_lshrrev_b32 v1, 6, v0")
    for d,off in ((sGW,56),(sWS,80),(sDBG,72),(sWG,32),(sWU,40),(sWD,48),(sWO,16),(sOUT,64)):
        a(f"s_load_dwordx2 {sr(d,2)}, s[0:1], {off}")
    if O.stamp:
        a(f"v_mov_b32 v{vSTAMP}, 0"); stamp(a,0)
    a(f"v_readfirstlane_b32 s{sW}, v1")
    srd_tail(a,sX,2*MB); srd_tail(a,sWQ,512*3072)
    a(f"s_bfe_u32 s{sRB}, s2, 0x10002"); a(f"s_lshl_b32 s{sRB}, s{sRB}, 3")
    a(f"s_bfe_u32 s{sT}, s2, 0x30003"); a(f"s_add_u32 s{sRB}, s{sRB}, s{sT}")
    a(f"s_and_b32 s{sCG}, s2, 3"); a(f"s_lshl_b32 s{sCG}, s{sCG}, 2")
    a(f"s_lshr_b32 s{sT}, s2, 6"); a(f"s_add_u32 s{sCG}, s{sCG}, s{sT}")
    if O.rot==1:
        a(f"s_lshl_b32 s{sPH}, s{sT}, 1"); a(f"s_add_u32 s{sPH}, s{sPH}, s{sRB}"); a(f"s_and_b32 s{sT}, s2, 1"); a(f"s_add_u32 s{sPH}, s{sPH}, s{sT}")
    elif O.rot==4:
        a(f"s_and_b32 s{sPH}, s2, 7")
    elif O.rot==5:
        a(f"s_add_u32 s{sPH}, s{sT}, s{sRB}"); a(f"s_lshl_b32 s{sPH}, s{sPH}, 2"); a(f"s_and_b32 s{sT}, s2, 3"); a(f"s_add_u32 s{sPH}, s{sPH}, s{sT}")
    else: a(f"s_mov_b32 s{sPH}, 0")
    a(f"s_and_b32 s{sI}, s{sW}, 3")
    a(f"s_cmp_lt_u32 s{sW}, 4"); a("s_cbranch_scc1 G_WAVE")
    lg=list(a.lg)
    A=a_wave(a); G=g_wave(a)
    next(A)
    a.label("G_WAVE"); a.vm=[]; a.lg=list(lg)
    next(G)
    next(A)
    a.label("FINAL")
    final_reduce(a)
    a.label("END")
    a("s_endpgm")
    next(A)
    next(G)
    return a

PROMO=("v_exp_f32","v_rcp_f32","v_mul_f32","v_add_f32","v_sub_f32","v_and_b32","v_xor_b32","v_or_b32","v_mov_b32","v_max_f32","v_lshlrev_b32","v_mov_b64","v_add_u32","v_lshrrev_b32","v_min_f32")
def align_pass(a):
    import subprocess, re, tempfile
    d=tempfile.mkdtemp()
    open(d+"/a.s","w").write('.amdgcn_target "amdgcn-amd-amdhsa--gfx950"\n.text\nK:\n'+a.text())
    subprocess.run(["clang","-x","assembler","-target","amdgcn-amd-amdhsa","-mcpu=gfx950","-c",d+"/a.s","-o",d+"/a.o"],check=True)
    dis=subprocess.run(["llvm-objdump","-d","--mcpu=gfx950",d+"/a.o"],capture_output=True,text=True).stdout
    sizes=[4*len(m.group(1).split()) for m in re.finditer(r"// [0-9A-F]{12}: ((?:[0-9A-F]{8} ?)+)",dis)]
    idx=[i for i,l in enumerate(a.out) if l.startswith("  ") and not l.startswith("  ;")]
    assert len(idx)==len(sizes),(len(idx),len(sizes))
    off=0; cand=None; n=0; bad=0
    for i,sz in zip(idx,sizes):
        mn=a.out[i].split()[0]
        if sz>=8:
            if off%8==4:
                if cand is not None:
                    m2=a.out[cand].split()[0]; a.out[cand]=a.out[cand].replace(m2,m2+"_e64",1); off+=4; n+=1
                else: bad+=1
            cand=None
        elif mn in PROMO:
            if off%8==0 or cand is None: cand=i
        off+=sz
    print("align: promoted",n,"left misaligned",bad,"bytes",off,file=sys.stderr)

def build():
    a=kernel()
    if O.align: align_pass(a)
    print("instrs",len(a.seq),"nops",a.nops,file=sys.stderr)
    K=NAME+"_kernel"
    s=f"; @launch grid=(256,1,1) block=(512,1,1) lds={LDS_SIZE}\n"
    s+='.amdgcn_target "amdgcn-amd-amdhsa--gfx950"\n'
    s+=f".text\n.p2align 12\n.globl {K}\n.p2align 8\n.type {K},@function\n{K}:\n"
    s+=a.text()
    s+="  s_endpgm\n.fill 8192, 4, 0xBF800000\n"
    s+=f""".section .rodata,"a"
.p2align 6
.amdhsa_kernel {K}
  .amdhsa_next_free_vgpr 256
  .amdhsa_next_free_sgpr 102
  .amdhsa_accum_offset 256
  .amdhsa_group_segment_fixed_size 0
  .amdhsa_kernarg_size 88
  .amdhsa_user_sgpr_count 2
  .amdhsa_user_sgpr_kernarg_segment_ptr 1
  .amdhsa_system_sgpr_workgroup_id_x 1
.end_amdhsa_kernel
"""
    return s

if __name__=="__main__":
    args=sys.argv[1:]
    out=f"cdna_kernels/{NAME}.s"
    for x in args:
        if x=="--stamp": O.stamp="s_memrealtime"
        elif x=="--cyc": O.stamp="s_memtime"
        elif x.startswith("--"):
            k,v=x[2:].split("="); assert hasattr(O,k); setattr(O,k,int(v))
        else: out=x
    open(out,"w").write(build())
```

```python
import sys, math, struct
sys.path.insert(0, "work")
from asmlib import *

NAME = "gated_mix__sliding_block__swiglu_ffn__prompt"
MB = 1<<20
WS_Q, WS_K, WS_V, WS_A3, WS_F, WS_ST = 0, 2*MB, 4*MB, 6*MB, 14*MB, 15*MB
WS_SIZE = 16*MB
A3_TB = 118*1024
LOG2E = math.log2(math.e)
def f2u(f): return struct.unpack("<I", struct.pack("<f", f))[0]
MF = "v_mfma_f32_32x32x16_bf16"
MF16 = "v_mfma_f32_16x16x32_bf16"
SLOT=28672
L_GW, L_Z, L_G, L_SY, LDS_SIZE = 159744, 160768, 161792, 162304, 162560
L_CNT, L_C14, L_C13, L_OF, L_AF = L_SY, L_SY+4, L_SY+8, L_SY+12, L_SY+16
PARK=33*4096
SPIN_MAX = 200000
OOB = 0x40000000

class Opt:
    stamp=None; probe=0; p0=9
    rot=5; codepf=1; warm=1; wst=0; outaux=2; sleep=2; align=1; forceslow=0
    NA=4; dl=1; thr=0; thrA=6; thr3=6; nA2=0; early=2; hpos=3; qs=4; w2=1; prio2=2; t0s=5; osl=4; dbl=11; park=0; qsig=24; sigk=10; rsl=1; pst=-2; wmode=1; wn=8; wsp=6; ap=0; afl=0; pa=12; ord=1; tm=0; nfull=0; warmx=0; adly=0
O=Opt()

sWS,sX,sWQ,sWG,sWU,sWD,sWO,sOUT,sGW,sDBG = 4,8,12,16,20,24,28,32,36,40
sW,sI,sRB,sCG,sSB,sPH,sT,sT2,sT3,sTR,sTC = 44,45,46,47,48,49,50,51,52,53,54
sA,sB,sC,sD,sE,sF,sG_,sH,sLT = 55,56,57,58,59,60,61,62,63
sM=64
s1K,sDo,sHead,sRo = 98,99,100,101
vSTAMP=11

def stamp(a, idx, probe=0):
    if O.stamp and (probe==O.probe or idx in (0,15)):
        a(f"{O.stamp} s[96:97]"); a("s_waitcnt lgkmcnt(0)")
        a(f"v_writelane_b32 v{vSTAMP}, s96, {idx}")
def stamp_flush(a, vtmp):
    if O.stamp:
        a("s_waitcnt vmcnt(0)"); stamp(a,15)
        a(f"s_lshl_b32 s{sT}, s2, 3"); a(f"s_add_u32 s{sT}, s{sT}, s{sW}"); a(f"s_lshl_b32 s{sT}, s{sT}, 6")
        a(f"s_add_u32 s{sT}, s{sT}, {WS_ST}")
        a(f"v_mbcnt_lo_u32_b32 v{vtmp}, -1, 0"); a(f"v_lshlrev_b32 v{vtmp}, 2, v{vtmp}")
        a("s_mov_b64 exec, 0xffff")
        a(f"buffer_store_dword v{vSTAMP}, v{vtmp}, {sr(sWS,4)}, s{sT} offen")

def srd_tail(a, d, size):
    a(f"s_mov_b32 s{d+2}, {size:#x}"); a(f"s_mov_b32 s{d+3}, 0x20000")
def late_srds(a):
    for d,size in ((sWS,WS_SIZE),(sDBG,256),(sWG,512*2752),(sWU,512*2752),(sWD,1376*1024),(sWO,512*1024),(sOUT,2*MB)):
        srd_tail(a,d,size)
def late_scalars(a):
    a(f"s_mul_i32 s{sT}, s{sCG}, 43"); a(f"s_lshr_b32 s{sT}, s{sT}, 7")
    a(f"s_mul_i32 s{sSB}, s{sCG}, 3"); a(f"s_sub_u32 s{sSB}, s{sSB}, s{sT}")
    a(f"s_mul_i32 s{sT}, s{sT}, 3"); a(f"s_sub_u32 s{sT}, s{sCG}, s{sT}"); a(f"s_cmp_eq_u32 s{sT}, 2")
    a(f"s_cselect_b32 s{sLT}, {OOB:#x}, 0")
    a(f"s_and_b32 s{sTR}, s2, 7"); a(f"s_lshl_b32 s{sTR}, s{sTR}, 2"); a(f"s_bfe_u32 s{sT}, s2, 0x20003"); a(f"s_add_u32 s{sTR}, s{sTR}, s{sT}")
    a(f"s_lshr_b32 s{sTC}, s2, 5")
    a(f"s_lshl_b32 s{s1K}, s{sI}, 10")
    a(f"s_lshl_b32 s{sDo}, s{sI}, 14"); a(f"s_lshl_b32 s{sT}, s{sTC}, 7"); a(f"s_add_u32 s{sDo}, s{sDo}, s{sT}")
    a(f"s_lshl_b32 s{sRo}, s{sTR}, 1"); a(f"s_add_u32 s{sRo}, s{sRo}, s{sTC}"); a(f"s_and_b32 s{sRo}, s{sRo}, 7")
    a(f"s_mul_i32 s{sH}, s{sRo}, 21"); a(f"s_lshr_b32 s{sH}, s{sH}, 3")
    a(f"s_lshl_b32 s{sH}, s{sH}, 16"); a(f"s_lshl_b32 s{sRo}, s{sRo}, 16")

_uid=[0]
def uid(p): _uid[0]+=1; return f"{p}{_uid[0]}"
def poll(a, vdst, vaddr, srd, soff, first_tag=None, expect=1, sleep=None):
    L=uid("PL")
    if first_tag is not None:
        a.wait(vm=[first_tag])
        a(f"v_cmp_ne_u32 vcc, {expect}, v{vdst}")
        a(f"s_cbranch_vccz {L}_D")
    a(f"s_mov_b32 s{sT3}, {SPIN_MAX}")
    keep=list(a.vm)
    a.label(L)
    a(f"buffer_load_dword v{vdst}, v{vaddr}, {sr(srd,4)}, {soff} offen sc1")
    a("s_waitcnt vmcnt(0)")
    a(f"v_cmp_ne_u32 vcc, {expect}, v{vdst}")
    a(f"s_cbranch_vccz {L}_D")
    a(f"s_sleep {sleep or O.sleep}")
    a(f"s_sub_u32 s{sT3}, s{sT3}, 1")
    a(f"s_cmp_lg_u32 s{sT3}, 0")
    a(f"s_cbranch_scc1 {L}")
    a.label(L+"_D")
    if first_tag is not None: a.vm=keep
def lds_poll(a, vaddr, vdst, expect, off=0):
    L=uid("LP")
    a(f"s_mov_b32 s{sT3}, {SPIN_MAX}")
    a.label(L); a(f"ds_read_b32 v{vdst}, v{vaddr} offset:{off}"); a("s_waitcnt lgkmcnt(0)")
    a(f"v_cmp_ne_u32 vcc, {expect}, v{vdst}"); a(f"s_cbranch_vccz {L}_D"); a("s_sleep 1")
    a(f"s_sub_u32 s{sT3}, s{sT3}, 1"); a(f"s_cmp_lg_u32 s{sT3}, 0"); a(f"s_cbranch_scc1 {L}")
    a.label(L+"_D")
def lds_inc(a, vaddr, vone, off):
    a("s_mov_b64 exec, 1"); a(f"ds_add_u32 v{vaddr}, v{vone} offset:{off}"); a("s_mov_b64 exec, -1")
def emit(a, ops, tag=None):
    for op in ops:
        for o in (op if isinstance(op,tuple) else (op,)): a(o,tag)

def signal(a, kind, vtmp, tag=None):
    a(f"s_lshl_b32 s{sT}, s{sRB}, 4"); a(f"s_add_u32 s{sT}, s{sT}, s{sCG}"); a(f"s_lshl_b32 s{sT}, s{sT}, 5")
    a(f"s_add_u32 s{sT}, s{sT}, s{sI}"); a(f"s_lshl_b32 s{sT}, s{sT}, 2"); a(f"s_add_u32 s{sT}, s{sT}, {WS_F+kind*32768}")
    a(f"v_mov_b32 v{vtmp}, 1")
    a("s_mov_b64 exec, 1")
    if tag: a.wait(vm=[tag])
    else: a("s_waitcnt vmcnt(0)")
    a(f"buffer_store_dword v{vtmp}, off, {sr(sWS,4)}, s{sT} sc1", "flag")
    a("s_mov_b64 exec, -1")

def flag_lane_ops(vF, vL, t0, t1, sdst, kind):
    return [f"v_and_b32 v{t0}, 15, v{vL}", f"v_bfe_u32 v{t1}, v{vL}, 4, 1", f"v_lshlrev_b32 v{t1}, 2, v{t1}", f"v_lshl_add_u32 v{vF}, v{t0}, 7, v{t1}",
            f"s_lshr_b32 s{sdst}, s{sTR}, 1", f"s_lshl_b32 s{sdst}, s{sdst}, 11", f"s_and_b32 s{sT}, s{sTR}, 1", f"s_lshl_b32 s{sT}, s{sT}, 3",
            f"s_add_u32 s{sdst}, s{sdst}, s{sT}", f"s_add_u32 s{sdst}, s{sdst}, {WS_F+kind*32768}"]
def qaddr_ops(i):
    t,e=i>>1,i&1
    o=[f"s_mul_i32 s{sT}, s{sCG}, 3", f"s_add_u32 s{sT}, s{sT}, {t}", f"s_lshl_b32 s{sT2}, s{sRB}, 2", f"s_add_u32 s{sT2}, s{sT2}, s{sI}",
       (f"s_cmp_ge_u32 s{sT}, 32", f"s_cselect_b32 s{sT3}, 11, 10"), f"s_lshl_b32 s{sT2}, s{sT2}, s{sT3}"]
    if e: o+=[(f"s_cmp_ge_u32 s{sT}, 32", f"s_cselect_b32 s{sT3}, 1, 64"), f"s_lshl_b32 s{sT3}, s{sT3}, 10", f"s_add_u32 s{sT2}, s{sT2}, s{sT3}"]
    return o+[f"s_lshl_b32 s{sT}, s{sT}, 17", f"s_add_u32 s{sT}, s{sT}, s{sT2}"]
def w3_lane_ops(vD, vL, t0, t1):
    return [f"v_bfe_u32 v{t0}, v{vL}, 4, 1", f"v_lshlrev_b32 v{t0}, 2, v{t0}", f"v_and_b32 v{t1}, 7, v{vL}", f"v_xor_b32 v{t0}, v{t0}, v{t1}",
            f"v_lshlrev_b32 v{t0}, 4, v{t0}", f"v_lshrrev_b32 v{t1}, 3, v{vL}", f"v_lshl_add_u32 v{vD}, v{t1}, 10, v{t0}",
            f"v_add_u32 v{vD}, s{sDo}, v{vD}", f"v_add_u32 v{vD+1}, 8192, v{vD}"]

ROWS = list(range(28,39))+[6,13,20] + [0,1,2,3,4,5,7,8,9,10,11,12] + [14,15,16,17,18,19,21,22,23,24,25,26]
NRES=19; NT0=7; NREG=11; NS3=30
LOAD=[0,1,2,3,4,22,23, 5,6,7,8,9,10, 11,12,13,14,15,16, 17,18,19,20,21,24,25,26,27,28,29]
POS={n:p for p,n in enumerate(LOAD)}
A2LIST=list(range(7,13))+list(range(19,26))
def row_of(p,e): return ROWS[2*(p%NRES)+e]
def rot_off(n):
    if n<21: return [f"s_add_u32 s{sT2}, s{sH}, {n<<16}", f"s_add_u32 s{sT3}, s{sH}, {((n-21)<<16)&0xffffffff:#x}", f"s_min_u32 s{sT2}, s{sT2}, s{sT3}"]
    if n==21: return [f"s_and_b32 s{sT2}, s{sI}, 2", f"s_lshl_b32 s{sT2}, s{sT2}, 14", f"s_sub_u32 s{sT2}, {21<<16}, s{sT2}"]
    return [f"s_add_u32 s{sT2}, s{sRo}, {(n-22)<<16}", f"s_and_b32 s{sT2}, s{sT2}, {7<<16}"]
def w3_dma(a, p, vD, tag):
    n=LOAD[p]; R=sWD if n<22 else sWO
    a(f"s_add_u32 m0, s{s1K}, {row_of(p,0)*4096}")
    emit(a,rot_off(n))
    a(f"buffer_load_dwordx4 v{vD}, {sr(R,4)}, s{sT2} offen lds", tag)
    a(f"s_add_u32 m0, s{s1K}, {row_of(p,1)*4096}")
    a(f"buffer_load_dwordx4 v{vD+1}, {sr(R,4)}, s{sT2} offen lds", tag)

def final_reduce(a):
    vL,vA,vO,B = 1,2,6,16
    a(f"v_mbcnt_lo_u32_b32 v{vL}, -1, 0"); a(f"v_mbcnt_hi_u32_b32 v{vL}, -1, v{vL}")
    a(f"v_lshrrev_b32 v3, 3, v{vL}")
    a(f"v_bfe_u32 v4, v{vL}, 4, 1"); a(f"v_bfe_u32 v5, v{vL}, 3, 1"); a(f"v_lshl_or_b32 v4, v5, 1, v4")
    a(f"v_and_b32 v5, 4, v3"); a(f"v_or_b32 v4, v4, v5")
    a(f"v_and_b32 v5, 3, v{vL}"); a(f"v_lshlrev_b32 v5, 1, v5"); a(f"v_xor_b32 v4, v4, v5"); a(f"v_lshlrev_b32 v4, 4, v4")
    a(f"v_lshl_add_u32 v{vA}, v3, 7, v4")
    a(f"v_bfe_u32 v5, v{vL}, 2, 1"); a(f"v_lshl_add_u32 v{vA}, v5, 14, v{vA}")
    a(f"s_lshr_b32 s{sT}, s{sW}, 2"); a(f"s_lshl_b32 s{sT}, s{sT}, 15"); a(f"s_lshl_b32 s{sT2}, s{sI}, 12"); a(f"s_add_u32 s{sT}, s{sT}, s{sT2}")
    a(f"v_add_u32 v{vA}, s{sT}, v{vA}")
    a(f"v_and_b32 v5, 7, v{vL}"); a(f"v_lshlrev_b32 v5, 4, v5"); a(f"v_lshl_add_u32 v{vO}, v3, 10, v5")
    a(f"v_xor_b32 v{vA+1}, 16, v{vA}")
    a(f"s_lshl_b32 s{sT}, s{sTR}, 16"); a(f"s_lshl_b32 s{sT2}, s{sTC}, 7"); a(f"s_add_u32 s{sT}, s{sT}, s{sT2}")
    a(f"s_lshl_b32 s{sT2}, s{sW}, 13"); a(f"s_add_u32 s{sT}, s{sT}, s{sT2}")
    a("s_waitcnt lgkmcnt(0)"); a("s_barrier")
    stamp(a,13)
    for w in range(4):
        for hf in range(2):
            a(f"ds_read_b128 {vr(B+8*w+4*hf,4)}, v{vA+hf} offset:{w*1024}", ("rr",w))
    a.wait(lg=[("rr",1)])
    for r in range(0,8,2): a(f"v_pk_add_f32 {vr(B+r,2)}, {vr(B+r,2)}, {vr(B+8+r,2)}")
    a.wait(lg=[("rr",3)])
    for r in range(0,8,2): a(f"v_pk_add_f32 {vr(B+16+r,2)}, {vr(B+16+r,2)}, {vr(B+24+r,2)}")
    for r in range(0,8,2): a(f"v_pk_add_f32 {vr(B+r,2)}, {vr(B+r,2)}, {vr(B+16+r,2)}")
    for r in range(4): a(f"v_cvt_pk_bf16_f32 v{B+8+r}, v{B+2*r}, v{B+2*r+1}")
    aux=[""," sc1"," nt"," sc0 sc1"][O.outaux]
    a(f"buffer_store_dwordx4 {vr(B+8,4)}, v{vO}, {sr(sOUT,4)}, s{sT} offen{aux}", "out")
    stamp(a,14)
    stamp_flush(a,3)

def g_wave(a, lg0):
    vSt,vXa,vTm,vTq,vT2 = 0,1,3,5,7
    WB,NW,ACC,XR = 12,5,32,128
    GF,GA,vGb,vGa = 80,88,92,93
    vC,vS2,vPk,vSy = 4,3,5,6
    sSt,sK = sB,sC
    t0,t1,vL = 12,13,14
    def poison():
        for i in range(2): a(f"buffer_store_dwordx4 v[104:107], v{vSt}, {sr(sWS,4)}, s{82+i} offen sc1")
    def warm2():
        if O.warm:
            a(f"s_mov_b32 exec_hi, 0x7ff"); a(f"buffer_load_dword v99, v98, s[68:71], 0 offen"); a(f"s_mov_b32 exec_hi, -1")
    def warm_slot(k):
        L=uid("GW"); a(f"s_cmp_lg_u32 s84, {k}"); a(f"s_cbranch_scc1 {L}"); warm2()
        if O.pst==-1: poison()
        a.label(L)
    def g_publish():
        a(f"s_cmp_lg_u32 s72, 3"); a("s_cbranch_scc1 G_NOPUB")
        a(f"s_lshl_b32 s{sT}, s{sRB}, 2"); a("v_mov_b32 v100, 1"); a("s_mov_b64 exec, 1"); a("s_waitcnt vmcnt(0)")
        a(f"buffer_store_dword v100, off, {sr(sDBG,4)}, s{sT} sc1"); a("s_mov_b64 exec, -1")
        a.label("G_NOPUB")
    def setup(vi):
        a(f"v_and_b32 v{vL}, 63, v0")
        kargs(a); ids(a)
        late_srds(a); late_scalars(a)
        a(f"v_lshlrev_b32 v{vSt}, 4, v{vL}")
        a(f"v_and_b32 v{t0}, 31, v{vL}"); a(f"v_lshrrev_b32 v{t1}, 5, v{vL}")
        a(f"v_bfe_u32 v{vXa}, v{vL}, 1, 3"); a(f"v_xor_b32 v{vXa}, v{vXa}, v{t1}"); a(f"v_lshlrev_b32 v{vXa}, 4, v{vXa}")
        a(f"v_lshl_add_u32 v{vXa}, v{t0}, 7, v{vXa}")
        a(f"s_lshl_b32 s{sT}, s{sI}, 12"); a(f"v_add_u32 v{vXa}, s{sT}, v{vXa}"); a(f"v_add_u32 v{vXa+1}, {2*SLOT}, v{vXa}")
        a(f"v_lshrrev_b32 v{vGb}, 4, v{vL}"); a(f"v_xor_b32 v{vGb}, v{vGb}, v{vL}"); a(f"v_and_b32 v{vGb}, 1, v{vGb}")
        a(f"v_lshlrev_b32 v{vGb}, 10, v{vGb}"); a(f"v_lshl_add_u32 v{vGb}, v{t1}, 4, v{vGb}"); a(f"v_add_u32 v{vGb}, {L_GW}, v{vGb}")
        a(f"v_bfe_u32 v{t0}, v{vL}, 2, 2"); a(f"v_lshl_add_u32 v{t0}, v{t1}, 3, v{t0}"); a(f"v_lshlrev_b32 v{t0}, 6, v{t0}")
        a(f"v_and_b32 v{t1}, 3, v{vL}"); a(f"v_lshl_add_u32 v{t0}, v{t1}, 3, v{t0}")
        a(f"v_bfe_u32 v{t1}, v{vL}, 4, 1")
        a(f"v_lshl_add_u32 v{t0}, v{t1}, 5, v{t0}")
        a(f"v_add_u32 v{vTq}, 16384, v{t0}"); a(f"v_add_u32 v{vTq+1}, {16384+2*SLOT}, v{t0}")
        a(f"v_mul_u32_u24 v{t1}, 3072, v{t1}"); a(f"v_add_u32 v{vT2}, v{t0}, v{t1}")
        a(f"v_xor_b32 v{vT2+1}, 32, v{vT2}")
        a(f"v_add_u32 v{vT2+2}, {2*SLOT}, v{vT2}"); a(f"v_add_u32 v{vT2+3}, {2*SLOT}, v{vT2+1}")
        a(f"v_cmp_ne_u32 s[64:65], 0, v{t1}")
        for r in (16,17,18,19): a(f"v_mov_b32 v{r}, 0")
        a(f"v_add_u32 v{t0}, {L_Z}, v{vSt}"); a(f"ds_write_b128 v{t0}, v[16:19]")
        a(f"v_mov_b32 v{t0}, {L_SY}"); a(f"ds_write_b128 v{t0}, v[16:19]"); a(f"ds_write_b128 v{t0}, v[16:19] offset:16")
        a("s_waitcnt lgkmcnt(0)")
        stamp0(a)
        a(f"s_lshl_b32 s{sT}, s{sCG}, 2"); a(f"s_add_u32 s72, s{sT}, s{sI}"); a(f"s_cmp_lg_u32 s72, 3"); a(f"s_cbranch_scc1 G_NOINIT{vi}")
        a(f"v_and_b32 v{t0}, 15, v{vL}"); a(f"v_lshrrev_b32 v{t1}, 4, v{vL}"); a(f"v_lshlrev_b32 v{t0}, 7, v{t0}"); a(f"v_lshl_add_u32 v{t0}, v{t1}, 15, v{t0}")
        a(f"s_lshl_b32 s{sT}, s{sRB}, 11"); a(f"s_add_u32 s{sT}, s{sT}, {WS_F}")
        a("s_mov_b32 exec_hi, 0xffff")
        a(f"buffer_store_dwordx4 v[16:19], v{t0}, {sr(sWS,4)}, s{sT} offen sc1")
        a("s_mov_b32 exec_hi, -1")
        a.label(f"G_NOINIT{vi}")
        if O.pst!=-2:
            for r in (104,105,106,107): a(f"v_mov_b32 v{r}, -1")
            a(f"s_and_b32 s{sT2}, s{sI}, 2"); a(f"s_lshl_b32 s{sT}, s{sRB}, 2"); a(f"s_add_u32 s{sT}, s{sT}, s{sT2}"); a(f"s_mul_i32 s{sT}, s{sT}, {A3_TB}")
            a(f"s_and_b32 s{sT2}, s{sI}, 1"); a(f"s_lshl_b32 s{sT3}, s{sCG}, 1"); a(f"s_add_u32 s{sT2}, s{sT2}, s{sT3}"); a(f"s_lshl_b32 s{sT2}, s{sT2}, 10")
            a(f"s_add_u32 s{sT}, s{sT}, s{sT2}"); a(f"s_add_u32 s82, s{sT}, {WS_A3+86*1024}"); a(f"s_add_u32 s83, s82, {A3_TB}")
        if O.warm:
            a(f"s_cmp_eq_u32 s{sI}, 1"); a(f"s_cselect_b32 s68, s{sWU}, s{sWG}"); a(f"s_cselect_b32 s69, s{sWU+1}, s{sWG+1}")
            a(f"s_cmp_eq_u32 s{sI}, 2"); a(f"s_cselect_b32 s68, s{sWD}, s68"); a(f"s_cselect_b32 s69, s{sWD+1}, s69")
            a(f"s_mov_b32 s70, {1376*1024}")
            a(f"s_cmp_eq_u32 s{sI}, 3"); a(f"s_cselect_b32 s68, s{sWO}, s68"); a(f"s_cselect_b32 s69, s{sWO+1}, s69")
            a(f"s_cselect_b32 s70, {512*1024}, s70"); a("s_mov_b32 s71, 0x20000")
            a(f"s_mul_i32 s{sT}, s2, {43*128}")
            a(f"v_lshl_add_u32 v98, v{vL}, 7, s{sT}")
        if O.wmode==1: a(f"s_lshr_b32 s84, s2, 3"); a(f"s_and_b32 s84, s84, {O.wn-1}")
        if O.wmode==2: a(f"s_mov_b32 s84, s{sI}")
        if O.wmode==3: a(f"s_and_b32 s84, s2, {O.wn-1}")
        if O.wst<0 and not O.wmode: warm2()
        if O.wst<0 and O.wmode: warm_slot(0)
        if not O.park:
            for i in range(6): emit(a,qaddr_ops(i)); a(f"s_mov_b32 s{76+i}, s{sT}")
        a("s_setprio 2")

    seq=[]
    for st in range(8):
        for j in range(4):
            for t in range(3): seq.append((st,j,t))
    for j in range(4):
        for u in (3,4,5): seq.append((8,j,u))
    for u in (0,1,2):
        for j in range(4): seq.append((8,j,u))
    for st in range(9,14):
        for j in range(4):
            for u in range(6): seq.append((st,j,u))
    MT=len(seq)
    for u in range(6):
        for st in (14,15):
            for j in range(4): seq.append((st,j,u))
    N=len(seq); AH=NW-1; M8=96
    first={}
    for m,(st,j,t) in enumerate(seq): first.setdefault(st,m)
    ool=[]
    def reads(m):
        st,j,t=seq[m]; q=st&3; wb=WB+4*(m%NW); tg=("r",m)
        if first[st]==m and st<14:
            if O.dbl<=st<13: a("s_waitcnt lgkmcnt(0)")
            if O.p0<=st<O.p0+4: stamp(a,1+3*(st-O.p0),1)
            a("s_barrier")
            if O.p0<=st<O.p0+4: stamp(a,2+3*(st-O.p0),1)
            if st in (0,1,8,9): stamp(a,{0:1,1:2,8:3,9:4}[st])
            if st<9: stamp(a,2+st,3)
        if m==MT:
            a.wait(lg=["c14"])
            a(f"v_cmp_ne_u32 vcc, 4, v2"); a("s_cbranch_vccnz G_W14"); a.label("G_R14")
            def w14():
                a.label("G_W14"); a.lg=[]; lds_poll(a,vSy,2,4,L_C14-L_SY); a("s_branch G_R14")
            ool.append(w14)
            stamp(a,5); stamp(a,1,4)
        if st<8:
            if t==0:
                k=st*4+j; tm=vTm+(k&1)
                if j: a(f"v_xor_b32 v{tm}, {32*j}, v{vXa+(q>>1)}")
                else:
                    a(f"s_add_u32 s{sK}, s{sPH}, {st}"); a(f"s_and_b32 s{sK}, s{sK}, 7"); a(f"s_lshl_b32 s{sK}, s{sK}, 7")
                    a(f"v_add_u32 v{vGa}, s{sK}, v{vGb}")
                a(f"ds_read_b128 {vr(XR+4*k,4)}, v{tm if j else vXa+(q>>1)} offset:{(q&1)*SLOT}", tg)
                a(f"ds_read_b128 {vr(GF+4*(k&1),4)}, v{vGa} offset:{j*32}", tg)
            for e in range(2):
                a(f"ds_read_b64_tr_b16 {vr(wb+2*e,2)}, v{vTq+(q>>1)} offset:{(q&1)*SLOT+(j*3+t)*1024+e*256}", tg)
        else:
            for e in range(2):
                a(f"ds_read_b64_tr_b16 {vr(wb+2*e,2)}, v{vT2+2*(q>>1)+(t&1)} offset:{(q&1)*SLOT+j*6144+(t>>1)*1024+e*256}", tg)
    rp=[0]
    def pump(m):
        while rp[0]<N and rp[0]<=m+AH:
            r=rp[0]; st=seq[r][0]
            if first[st]==r and O.dbl<=st<13 and m<r-AH+O.dl: break
            reads(r); rp[0]+=1
    def mfma(m, vmask):
        st,j,t=seq[m]; k=(st&7)*4+j; A=vr(ACC+16*t,16)
        W,X=vr(WB+4*(m%NW),4),vr(XR+4*k,4)
        a.wait(lg=[("r",m),("r",m+1)] if (O.w2 and m>=MT+8 and m%2==0) else [("r",m)])
        if st<8 and t==0:
            a(f"{MF16} {vr(GA,4)}, {vr(GF+4*(k&1),4)}, {X}, {'0' if k==0 else vr(GA,4)}")
        p,q_=(X,W) if (st<8 and (vmask>>t)&1) else (W,X)
        a(f"{MF} {A}, {p}, {q_}, {'0' if k==0 else A}")
    for vi,vmask in ((1,4),(2,7),(0,0)):
        a.raw(".p2align 12")
        a.label(f"G_V{vi}")
        a.vm=[]; a.lg=list(lg0)
        setup(vi)
        stamp(a,1,3)
        a.vm=[]; a.lg=[]; rp[0]=0
        pump(-1)
        for m in range(M8):
            if m==M8-6: a("s_waitcnt vmcnt(0)")
            if m==12 and vi==0: g_publish()
            if not O.wmode and m==12*O.wst+1: warm2()
            if O.wmode:
                for k in range(O.wn):
                    if m==12*O.wst+1+k*O.wsp: warm_slot(k)
            if m==O.pst: poison()
            mfma(m,vmask); pump(m)
        if vi: a("s_branch G_P2")
    a.label("G_P2")
    fill={}
    def spread(ops, m0, m1):
        for i,o in enumerate(ops): fill.setdefault(m0+(i*(m1-m0))//len(ops),[]).append(o)
    SS=[0,4,8,11,15,17,20] if not O.park else [0,3,6,8,11,13,15]
    for i in range(6):
        A=ACC+8*i
        ops=[f"s_add_u32 s{sT}, s{s1K}, {PARK}", f"v_add_u32 v{vPk}, s{sT}, v{vSt}"] if (i==0 and O.park) else []
        for r in range(4): ops.append(f"v_cvt_pk_bf16_f32 v{A+r}, v{A+2*r}, v{A+2*r+1}")
        ops.append(f"ds_write_b128 v{vPk}, {vr(A,4)} offset:{i*4096}" if O.park else f"buffer_store_dwordx4 {vr(A,4)}, v{vSt}, {sr(sWS,4)}, s{76+i} offen sc1")
        spread(ops,M8+SS[i],M8+SS[i+1])
    spread([f"v_mul_f32 v{vC}, {f2u(LOG2E):#x}, v{vC}", f"v_exp_f32 v1, -v{vC}", f"v_exp_f32 v{vC}, v{vC}",
            f"v_add_f32 v1, 1.0, v1", f"v_add_f32 v{vC}, 1.0, v{vC}", f"v_rcp_f32 v1, v1", f"v_min_f32 v{vC}, {f2u(1e38):#x}, v{vC}",
            f"v_bfe_u32 v2, v{vSt}, 4, 5", f"s_lshl_b32 s{sT}, s{sI}, 7", f"s_add_u32 s{sT}, s{sT}, {L_G}",
            f"v_lshl_add_u32 v2, v2, 2, s{sT}", f"ds_write_b32 v2, v1", f"v_add_u32 v{vS2}, s{sLT}, v{vSt}",
            f"v_mov_b32 v{vSy}, {L_SY}"], M8+20, M8+27)
    vL,vD,vR,vA,vW,t0,t1,vF,vP = 147,148,150,156,158,162,163,146,145
    WB3,ACC3,AF,WR = 12,32,96,164; NA=O.NA; NF=22-NA; NR=NA+1; assert AF+8*NR<=144
    ops=[f"v_lshrrev_b32 v{vL}, 4, v{vSt}"]+w3_lane_ops(vD,vL,t0,t1)
    ops+=[f"v_lshrrev_b32 v{t0}, 5, v{vL}", f"v_bfe_u32 v{t1}, v{vL}, 2, 2", f"v_lshl_add_u32 v{t0}, v{t0}, 2, v{t1}", f"v_lshlrev_b32 v{vR}, 7, v{t0}",
          f"v_bfe_u32 v{t0}, v{vL}, 3, 1", f"v_lshl_add_u32 v{vR}, v{t0}, 6, v{vR}", f"v_bfe_u32 v{t0}, v{vL}, 4, 1", f"v_lshl_add_u32 v{vR}, v{t0}, 5, v{vR}",
          f"v_and_b32 v{t0}, 3, v{vL}", f"v_lshl_add_u32 v{vR}, v{t0}, 3, v{vR}", f"v_add_u32 v{vR}, s{s1K}, v{vR}",
          f"v_add_u32 v{vR+2}, 65536, v{vR}", f"v_add_u32 v{vR+4}, 131072, v{vR}"]
    ops+=[f"v_xor_b32 v{vR+2*g+1}, 64, v{vR+2*g}" for g in range(3)]
    ops+=[f"s_mul_i32 s{sT}, s{sTR}, {2*A3_TB}", f"s_add_u32 s{sT}, s{sT}, s{s1K}", f"s_add_u32 s{sT}, s{sT}, {WS_A3}",
          f"v_add_u32 v{vA}, s{sT}, v{vSt}", f"v_add_u32 v{vA+1}, {A3_TB}, v{vA}"]
    ops+=[f"v_bfe_u32 v{t0}, v{vL}, 1, 1", f"v_and_b32 v{t1}, 1, v{vL}", f"v_lshl_or_b32 v{t0}, v{t1}, 1, v{t0}", f"v_and_b32 v{t1}, 4, v{vL}",
          f"v_or_b32 v{t0}, v{t0}, v{t1}", f"v_lshrrev_b32 v{t1}, 5, v{vL}", f"v_xor_b32 v{t0}, v{t0}, v{t1}", f"v_lshlrev_b32 v{t0}, 4, v{t0}",
          f"v_and_b32 v{t1}, 7, v{vL}", f"v_lshl_add_u32 v{vW}, v{t1}, 7, v{t0}", f"v_bfe_u32 v{t1}, v{vL}, 3, 2",
          f"v_lshl_add_u32 v{vW}, v{t1}, 12, v{vW}", f"v_add_u32 v{vW}, s{s1K}, v{vW}"]
    ops+=[f"v_xor_b32 v{vW+q}, {32*q}, v{vW}" for q in range(1,4)]
    ops+=[f"s_lshl_b32 s{sT}, s{sRB}, 2", f"s_add_u32 s{sT}, s{sT}, s{sI}", f"s_mul_i32 s{sSt}, s{sT}, {A3_TB}", f"s_lshl_b32 s{sT}, s{sSB}, 11",
          f"s_add_u32 s{sSt}, s{sSt}, s{sT}", f"s_add_u32 s{sSt}, s{sSt}, {WS_A3}", f"s_add_u32 s{sD}, s{sSt}, 4096", f"s_mov_b32 s{sA}, {f2u(-LOG2E):#x}",
          f"v_mov_b32 v1, 1"]+flag_lane_ops(vF,vL,t0,t1,sG_,1)
    spread(ops,first[11]+2,first[13]+12)
    def rd3_ops(p, wb):
        return [(f"ds_read_b64_tr_b16 {vr(wb+4*cb+2*q,2)}, v{vR+2*(row_of(p,q)>>4)+cb} offset:{(row_of(p,q)&15)*4096}", ("r3",p)) for cb in range(2) for q in range(2)]
    def rd3(p,wb):
        for o,t in rd3_ops(p,wb): a(o,t)
    T=XR
    def ffn_epi(n):
        A=ACC+16*n; ops=[]; R=range(8)
        for r in R: ops.append(f"v_mul_f32 v{T+r}, s{sA}, v{A+r}")
        for r in R: ops.append(f"v_exp_f32 v{T+r}, v{T+r}"); ops.append(f"v_mul_f32 v{A+r}, v{A+r}, v{A+8+r}")
        for r in R: ops.append(f"v_fma_f32 v{T+r}, v{T+r}, v{vC}, v{vC}")
        for r in R: ops.append(f"v_rcp_f32 v{T+r}, v{T+r}")
        for r in R: ops.append(f"v_mul_f32 v{A+r}, v{A+r}, v{T+r}")
        for r in range(4): ops.append(f"v_cvt_pk_bf16_f32 v{A+8+r}, v{A+2*r}, v{A+2*r+1}")
        ops.append(f"buffer_store_dwordx4 {vr(A+8,4)}, v{vSt if n<4 else vS2}, {sr(sWS,4)}, s{sSt if n<4 else sD} offen offset:{(n&3)*1024} sc1")
        return ops
    def epi_a(n):
        A=ACC+16*n; ops=[]
        for r in range(8): ops.append(f"v_mul_f32 v{A+8+r}, v{A+r}, v{A+8+r}"); ops.append(f"v_mul_f32 v{A+r}, s{sA}, v{A+r}")
        for r in range(8): ops.append(f"v_exp_f32 v{A+r}, v{A+r}")
        return ops
    def epi_a_pk(n):
        A=ACC+16*n; ops=[]
        for r in range(0,8,2): ops.append(f"v_pk_mul_f32 {vr(A+8+r,2)}, {vr(A+r,2)}, {vr(A+8+r,2)}")
        for r in range(0,8,2): ops.append(f"v_pk_mul_f32 {vr(A+r,2)}, {vr(A+r,2)}, {vr(T+2,2)}")
        for r in range(8): ops.append(f"v_exp_f32 v{A+r}, v{A+r}")
        return ops
    def epi_b1(n):
        A=ACC+16*n
        return [f"v_pk_fma_f32 {vr(A+r,2)}, {vr(A+r,2)}, {vr(T,2)}, {vr(T,2)}" for r in range(0,8,2)]+[f"v_rcp_f32 v{A+r}, v{A+r}" for r in range(8)]
    def epi_b2(n):
        A=ACC+16*n
        ops=[f"v_pk_mul_f32 {vr(A+r,2)}, {vr(A+r,2)}, {vr(A+8+r,2)}" for r in range(0,8,2)]
        ops+=[f"v_cvt_pk_bf16_f32 v{A+8+r}, v{A+2*r}, v{A+2*r+1}" for r in range(4)]
        ops.append(ffn_epi(n)[-1])
        return ops
    for u in range(5): spread(ffn_epi(u) if (not O.tm or u<O.nfull) else epi_a(u), MT+8*(u+1)+(1 if (not O.tm or u<O.nfull) else 2), MT+8*(u+2)+(1 if u<4 else 0))
    a(f"v_cndmask_b32 v{vC}, v{GA}, v{GA+1}, s[64:65]")
    for m in range(M8,N):
        if m>=MT+8 and (m-MT)%8==0: stamp(a,1+(m-MT)//8,4)
        mfma(m,0)
        if m==MT-AH-3: a(f"ds_read_b32 v2, v{vSy} offset:{L_C14-L_SY}", "c14")
        pump(m)
        if O.pst>=120 and m==O.pst-2: a("v_mov_b64 v[132:133], -1"); a("v_mov_b64 v[134:135], -1")
        if O.pst>=120 and m in (O.pst,O.pst+4): a(f"buffer_store_dwordx4 v[132:135], v{vSt}, {sr(sWS,4)}, s{82+(m!=O.pst)} offen sc1")
        if not O.park and m==first[9]+O.qsig: signal(a,0,vPk)
        if MT<=m<MT+NT0: rd3(m-MT, WR+8*(m-MT))
        if m==MT+NT0: lds_inc(a,vSy,1,L_C13-L_SY)
        if m==N-AH: lds_inc(a,vSy,1,L_CNT-L_SY)
        emit(a,fill.get(m,[]),"hst")
    stamp(a,6); stamp(a,7,4)
    if not O.tm: emit(a,ffn_epi(5),"hst")
    else:
        emit(a,[f"v_mov_b32 v{T}, v{vC}", f"v_mov_b32 v{T+1}, v{vC}", f"v_mov_b32 v{T+2}, s{sA}", f"v_mov_b32 v{T+3}, s{sA}"])
        us=list(range(O.nfull,6))
        for i,u in enumerate(us):
            if u==5: emit(a,epi_a_pk(5))
            if u==5 and i: emit(a,epi_b2(us[i-1]),"hst")
            emit(a,epi_b1(u))
            if i and u!=5: emit(a,epi_b2(us[i-1]),"hst")
        emit(a,epi_b2(5),"hst")
    stamp(a,7); stamp(a,8,4)
    glist=list(range(13,19))+[p for p in A2LIST[O.nA2:]]
    glist.sort(key=lambda p: (p>=13,p))
    lds_poll(a,vSy,t1,4,L_CNT-L_SY)
    for p in glist[:O.early]: w3_dma(a,p,vD,("w",p))
    signal(a,1,t0,"hst")
    if O.prio2==1: a("s_setprio 0")
    stamp(a,8)
    def preread():
        a(f"s_lshl_b32 s{sT}, s{sI}, 2"); a(f"v_add_u32 v{t0}, s{sT}, v{vSy}")
        lds_poll(a,t0,t1,1,L_AF-L_SY)
        a.wait(vm=[("w",p) for p in range(NT0,NREG)])
        for p in range(NT0,NREG): rd3(p, WR+8*p)
        a("s_waitcnt lgkmcnt(0)")
    rest=glist[O.early:]+list(range(26,30)); npre=len(rest)-4
    if O.nA2>=4: npre=min(npre,2)
    hp=max(len(rest)-O.hpos,npre)
    for i,p in enumerate(rest):
        if i==npre: preread()
        if i==hp: a(f"buffer_load_dword v{vP}, v{vF}, {sr(sWS,4)}, s{sG_} offen sc1", "hf")
        w3_dma(a,p,vD,("w",p))
        if O.thr3: a(f"s_waitcnt vmcnt({O.thr3})")
    stamp(a,9)
    poll(a,vP,vF,sWS,f"s{sG_}",first_tag="hf" if hp<len(rest) else None)
    stamp(a,10)
    def aload_ops(n):
        af=AF+8*(n%NR); ops=[(o,None) for o in rot_off(n)]
        ops.append((f"s_lshr_b32 s{sT2}, s{sT2}, 4",None))
        if n>=22: ops.append((f"s_add_u32 s{sT2}, s{sT2}, {86*1024}",None))
        for tb in range(2):
            ops.append((f"buffer_load_dwordx4 {vr(af+4*tb,4)}, v{vA+tb}, {sr(sWS,4)}, s{sT2} offen sc1", ("a",n)))
        return ops
    def aload(n):
        for o,t in aload_ops(n): a(o,t)
    def chk_ops(n):
        af=AF+8*(n%NR)
        return [f"v_max3_u32 v{t0}, v{af}, v{af+1}, v{af+2}", f"v_max3_u32 v{t1}, v{af+3}, v{af+4}, v{af+5}",
                f"v_max3_u32 v{t0}, v{t0}, v{af+6}, v{af+7}", f"v_max_u32 v{t0}, v{t0}, v{t1}", f"v_cmp_eq_u32 vcc, -1, v{t0}"]
    def check(n):
        emit(a,chk_ops(n)); a(f"s_cbranch_vccnz G_RT{n}"); a.label(f"G_OK{n}")
        def retry():
            a.label(f"G_RT{n}"); a.vm=[]; a.lg=[]
            a(f"s_mov_b32 s{sE}, {SPIN_MAX}")
            a.label(f"G_RL{n}")
            a(f"s_sleep {O.rsl}")
            aload(n); a("s_waitcnt vmcnt(0)")
            emit(a,chk_ops(n)); a(f"s_cbranch_vccz G_OK{n}")
            a(f"s_sub_u32 s{sE}, s{sE}, 1"); a(f"s_cmp_lg_u32 s{sE}, 0"); a(f"s_cbranch_scc1 G_RL{n}")
            a(f"s_branch G_OK{n}")
        ool.append(retry)
    def step3(n):
        af=AF+8*(n%NR); wb=WR+8*POS[n] if POS[n]<NREG else WB3+8*(n&1)
        if n%2==0 and n<28: stamp(a,1+n//2,2)
        nxt = n+1<NS3 and POS[n+1]>=NREG
        a.wait(vm=[("a",n)]+([("w",POS[n+1])] if nxt else []), lg=[("r3",POS[n])])
        al = aload_ops(n+NA) if n+NA<NS3 else []
        def mf(i):
            tb,cb=i>>1,i&1; A=ACC3+16*i
            a(f"{MF} {vr(A,16)}, {vr(wb+4*cb,4)}, {vr(af+4*tb,4)}, {'0' if n==0 else vr(A,16)}")
        if n==21:
            if nxt: rd3(POS[n+1], WB3+8*((n+1)&1))
            for o,t in al: a(o,t)
            a(f"s_cmp_ge_u32 s{sI}, 2"); a(f"s_cbranch_scc1 G_SK21")
            for i in range(4): mf(i)
            a.label(f"G_SK21")
        else:
            mf(0)
            if nxt: rd3(POS[n+1], WB3+8*((n+1)&1))
            mf(1)
            for o,t in al[:-1]: a(o,t)
            mf(2)
            for o,t in al[-1:]: a(o,t)
            mf(3)
        if 22<=n+1<NS3:
            a.wait(vm=[("a",n+1)]); check(n+1)
    for n in range(NA): aload(n)
    if O.prio2==2: a("s_setprio 0")
    for n in range(NS3):
        if n==21: stamp(a,11)
        step3(n)
    stamp(a,12)
    for p in range(4):
        for q in range(4):
            a(f"ds_write_b128 v{vW+q}, {vr(ACC3+16*p+4*q,4)} offset:{p*16384}", "red")
    a("s_branch FINAL")
    for f in ool: f()

def a_wave(a):
    vSt,vL,vVo,vT0,vT1,vM,vM2,vBig,vGt = 0,1,2,3,4,5,6,7,8
    vP=10
    MK=12; Q=20; KF=28; VF=68; SM=148; S0=164; S1=180; CM=196; O_=212; P=228; P2=236
    vX0,vX1,vWq,vWg,vWu,vWg2,vWu2,vD,vBig2,vSy,vOne = 228,229,230,231,232,233,234,244,246,247,248
    PK=SM
    sXo,sQo,sFo,sLx,sLq,sK,sIt,sSl = sA,sB,sC,sD,sE,sF,64,65
    a(f"v_and_b32 v{vL}, 63, v0")
    a(f"v_lshrrev_b32 v{vT0}, 3, v{vL}"); a(f"v_lshrrev_b32 v{vT1}, 4, v{vL}")
    a(f"v_and_b32 v{vX0}, 7, v{vL}"); a(f"v_xor_b32 v{vX0}, v{vX0}, v{vT1}"); a(f"v_lshlrev_b32 v{vX0}, 4, v{vX0}")
    a(f"v_lshl_add_u32 v{vX0}, v{vT0}, 10, v{vX0}")
    a(f"v_xor_b32 v{vX1}, 64, v{vX0}"); a(f"v_add_u32 v{vX1}, {8192-1024}, v{vX1}")
    a(f"v_lshrrev_b32 v{vT0}, 2, v{vL}"); a(f"v_and_b32 v{vT1}, 3, v{vL}")
    a(f"v_mul_u32_u24 v{vWq}, 3072, v{vT0}"); a(f"v_lshl_add_u32 v{vWq}, v{vT1}, 4, v{vWq}")
    a(f"s_lshl_b32 s{sXo}, s{sRB}, 2"); a(f"s_add_u32 s{sXo}, s{sXo}, s{sI}"); a(f"s_lshl_b32 s{sXo}, s{sXo}, 15")
    a(f"s_lshl_b32 s{sT}, s{sI}, 8"); a(f"s_add_u32 s{sT}, s{sT}, s{sCG}"); a(f"s_mul_i32 s{sQo}, s{sT}, 192")
    a(f"s_lshl_b32 s{sLx}, s{sI}, 12"); a(f"s_mul_i32 s{sLq}, s{sI}, 3072")
    a(f"s_mov_b32 s{sIt}, 0")
    a(f"v_lshlrev_b32 v{vSt}, 4, v{vL}")
    a(f"s_mov_b32 m0, {L_GW}")
    qs(a)
    a("s_waitcnt lgkmcnt(0)")
    qs(a)
    stamp0(a)
    if O.adly: a(f"s_sleep {O.adly}")
    def issue1():
        a(f"s_add_u32 s{sK}, s{sPH}, s{sIt}"); a(f"s_and_b32 s{sK}, s{sK}, 7")
        a(f"s_and_b32 s{sSl}, s{sIt}, 3"); a(f"s_mul_i32 s{sSl}, s{sSl}, {SLOT}")
        a(f"s_add_u32 m0, s{sLx}, s{sSl}")
        a(f"s_lshl_b32 s{sT}, s{sK}, 7"); a(f"s_add_u32 s{sT}, s{sT}, s{sXo}")
        a(f"buffer_load_dwordx4 v{vX0}, {sr(sX,4)}, s{sT} offen lds")
        qs(a)
        a(f"buffer_load_dwordx4 v{vX1}, {sr(sX,4)}, s{sT} offen offset:1024 lds")
        a(f"s_add_u32 s{sT}, s{sT}, {16384-2048}")
        a(f"buffer_load_dwordx4 v{vX0}, {sr(sX,4)}, s{sT} offen offset:2048 lds")
        a(f"buffer_load_dwordx4 v{vX1}, {sr(sX,4)}, s{sT} offen offset:3072 lds")
        qs(a)
        a(f"s_add_u32 s{sT}, s{sSl}, s{sLq}")
        a(f"s_mul_i32 s{sT2}, s{sK}, {64*3072}")
        for t in range(3):
            a(f"s_add_u32 m0, s{sT}, {16384+t*1024-t*64}")
            if t==0: a(f"s_add_u32 s{sT2}, s{sT2}, s{sQo}")
            a(f"buffer_load_dwordx4 v{vWq}, {sr(sWQ,4)}, s{sT2} offen offset:{t*64} lds")
        qs(a)
    a(f"buffer_load_dwordx4 v{vSt}, {sr(sGW,4)}, 0 offen lds")
    a.label("A_L1")
    issue1()
    a(f"s_add_u32 s{sIt}, s{sIt}, 1"); a(f"s_cmp_eq_u32 s{sIt}, 1")
    if O.probe==5:
        a("s_cbranch_scc0 A_Q"); qflush(a); a("s_branch A_L1"); a.label("A_Q"); a("s_waitcnt lgkmcnt(0)")
    else: a("s_cbranch_scc1 A_L1")
    a("s_waitcnt vmcnt(7)"); a("s_barrier")
    a(f"s_cmp_lt_u32 s{sIt}, 8"); a("s_cbranch_scc1 A_L1")
    a("s_branch A_P2")
    yield
    a.label("A_P2")
    a.lg=[]; a.vm=[(("d",7),set())]*7
    kargs(a)
    late_srds(a); late_scalars(a)
    a(f"v_mul_u32_u24 v{vWg}, 2752, v{vT0}"); a(f"v_xor_b32 v{vWu}, 2, v{vT1}")
    a(f"v_lshl_add_u32 v{vWu}, v{vWu}, 4, v{vWg}"); a(f"v_lshl_add_u32 v{vWg}, v{vT1}, 4, v{vWg}")
    a(f"v_add_u32 v{vWg2}, s{sLT}, v{vWg}"); a(f"v_add_u32 v{vWu2}, s{sLT}, v{vWu}")
    a(f"s_mul_i32 s{sFo}, s{sI}, {16*2752}"); a(f"s_lshl_b32 s{sT}, s{sSB}, 6"); a(f"s_add_u32 s{sFo}, s{sFo}, s{sT}")
    a("s_waitcnt lgkmcnt(0)")
    a(f"s_lshl_b32 s{sLq}, s{sLq}, 1")
    def dmas(st):
        q=st&3; tg=("d",st)
        a(f"s_add_u32 s{sK}, s{sPH}, {st&7}"); a(f"s_and_b32 s{sK}, s{sK}, 7")
        a(f"s_mul_i32 s{sT2}, s{sK}, {64*2752}"); a(f"s_add_u32 s{sT2}, s{sT2}, s{sFo}")
        for m in range(2):
            for t in range(3):
                v=(vWu2 if m else vWg2) if t==2 else (vWu if m else vWg)
                a(f"s_add_u32 m0, s{sLq}, {q*SLOT+(m*3+t)*1024-t*64}")
                a(f"buffer_load_dwordx4 v{v}, {sr(sWU if m else sWG,4)}, s{sT2} offen offset:{t*64} lds", tg)
    sQB,sKo,sVo,sN = sG_,sA,sB,sD
    korder=[8,0,7,6,5,4,3,2,1,9]
    def setup_attn(part):
        if part==0:
            emit(a,w3_lane_ops(vD,vL,vM,vM2))
            a(f"s_and_b32 s{sT}, s{sI}, 1"); a(f"s_lshl_b32 s{sHead}, s{sCG}, 1"); a(f"s_add_u32 s{sHead}, s{sHead}, s{sT}")
            a(f"s_and_b32 s{sT2}, s{sI}, 2"); a(f"s_lshl_b32 s{sQB}, s{sRB}, 2"); a(f"s_add_u32 s{sQB}, s{sQB}, s{sT2}")
            a(f"v_mov_b32 v{vSy}, {L_SY}"); a(f"v_mov_b32 v{vOne}, 1")
        if part==1:
            a(f"v_mov_b32 v{vGt}, 0x3f803f80"); a(f"v_mov_b32 v{vGt+1}, 0x3f803f80")
            for r in range(0,80,2):
                if r&4: a(f"v_mov_b64 {vr(VF+r,2)}, {vr(vGt,2)}")
        if part==2:
            a(f"v_and_b32 v{vT0}, 31, v{vL}")
            a(f"v_lshrrev_b32 v{vT1}, 5, v{vL}"); a(f"v_lshlrev_b32 v{vT1}, 2, v{vT1}"); a(f"v_sub_u32 v{vT0}, v{vT0}, v{vT1}")
            for r in range(16): a(f"v_cmp_le_i32 {sr(sM+2*r,2)}, {(r&3)+8*(r>>2)}, v{vT0}")
            a(f"v_mov_b32 v{vBig}, 0xffff"); a(f"v_mov_b32 v{vM}, 0xffff0000")
            for i in range(8):
                a(f"v_cndmask_b32 v{MK+i}, 0, v{vBig}, {sr(sM+4*i,2)}")
                a(f"v_cndmask_b32 v{vT1}, 0, v{vM}, {sr(sM+4*i+2,2)}")
                a(f"v_or_b32 v{MK+i}, v{MK+i}, v{vT1}")
            a(f"v_mov_b32 v{vBig}, {f2u(-1e30):#x}"); a(f"v_mov_b32 v{vBig2}, {f2u(2.0**60):#x}")
            a(f"v_and_b32 v{vVo}, 47, v{vL}"); a(f"v_lshlrev_b32 v{vVo}, 4, v{vVo}")
            a(f"v_and_b32 v{vT1}, 16, v{vL}"); a(f"v_lshl_add_u32 v{vVo}, v{vT1}, 6, v{vVo}")
        if part==3:
            a(f"v_and_b32 v{vT0}, 15, v{vL}"); a(f"v_min_u32 v{vT0}, 9, v{vT0}")
            a(f"v_and_b32 v{vT1}, 1, v{vL}"); a(f"v_or_b32 v{vT1}, 8, v{vT1}")
            a(f"v_cmp_le_u32 vcc, 32, v{vL}"); a(f"v_cndmask_b32 v{vT0}, v{vT0}, v{vT1}, vcc")
            a(f"s_sub_u32 s{sT}, s{sQB}, 8"); a(f"v_add_u32 v{vT0}, s{sT}, v{vT0}"); a(f"v_max_i32 v{vT0}, 0, v{vT0}")
            a(f"v_add_u32 v{vT1}, 16, v{vL}"); a(f"v_and_b32 v{vT1}, 48, v{vT1}"); a(f"v_cndmask_b32 v{vT1}, v{vT1}, 0, vcc")
            a(f"v_add_u32 v{vT1}, s{sCG}, v{vT1}"); a(f"v_mul_u32_u24 v{vT1}, 43, v{vT1}"); a(f"v_lshrrev_b32 v{vT1}, 7, v{vT1}")
            a(f"v_lshrrev_b32 v{vM}, 2, v{vT0}"); a(f"v_lshl_add_u32 v{vT1}, v{vM}, 4, v{vT1}"); a(f"v_lshlrev_b32 v{vT1}, 7, v{vT1}")
            a(f"v_and_b32 v{vT0}, 3, v{vT0}"); a(f"v_lshl_add_u32 v{vM2}, v{vT0}, 2, v{vT1}")
            a(f"s_lshl_b32 s{sKo}, s{sHead}, 16")
            a(f"s_and_b32 s{sT}, s{sI}, 1"); a(f"s_lshl_b32 s{sT}, s{sT}, 8")
            a(f"s_lshl_b32 s{sVo}, s{sCG}, 17"); a(f"s_add_u32 s{sVo}, s{sVo}, s{sT}"); a(f"s_add_u32 s{sVo}, s{sVo}, {WS_V}")
            a(f"s_mov_b32 s{sN}, {WS_F}")
        if part==4:
            a(f"v_and_b32 v{vT1}, 31, v{vL}"); a(f"s_and_b32 s{sT}, s{sI}, 2"); a(f"s_lshl_b32 s{sT}, s{sT}, 7"); a(f"s_add_u32 s{sT}, s{sT}, {L_G}")
            a(f"v_lshl_add_u32 v{vT1}, v{vT1}, 2, s{sT}")
            for u in range(2): a(f"ds_read_b32 v{vGt+u}, v{vT1} offset:{u*128}")
            a("s_waitcnt lgkmcnt(0)")
    def unpark():
        a(f"s_add_u32 s{sT}, s{s1K}, {PARK}"); a(f"v_add_u32 v{vT0}, s{sT}, v{vSt}")
        for i in range(6): a(f"ds_read_b128 {vr(PK+4*i,4)}, v{vT0} offset:{i*4096}")
    def qstore(i):
        emit(a,qaddr_ops(i))
        a(f"buffer_store_dwordx4 {vr(PK+4*i,4)}, v{vSt}, {sr(sWS,4)}, s{sT} offen sc1", "qst")
    def vswap(ns):
        for n in ns:
            a.wait(vm=[("v",n)])
            for r in range(4): a(f"v_permlane16_swap_b32 v{VF+8*n+r}, v{VF+8*n+4+r}")
    def a2flag():
        a(f"s_lshl_b32 s{sT3}, s{sI}, 2"); a(f"v_add_u32 v{vT0}, s{sT3}, v{vSy}")
        a("s_waitcnt vmcnt(0)"); a(f"ds_write_b32 v{vT0}, v{vOne} offset:{L_AF-L_SY}")
    def attn_slow():
        for u in range(2):
            Qr=vr(Q+4*u,4); nd=8+u; no=u
            K_=lambda n: vr(KF+4*n,4)
            a(f"s_add_u32 s{sN}, s{sQB}, {u}")
            if u==0: stamp(a,7)
            a(f"{MF} {vr(S0,16)}, {K_(nd)}, {Qr}, 0")
            a(f"{MF} {vr(S1,16)}, {K_(no)}, {Qr}, 0")
            bufs=[CM,O_,S0,S1]
            def smf(d, c="0", buf=None): a(f"{MF} {vr(buf,16)}, {K_(nd-d)}, {Qr}, {c}")
            smf(1,buf=bufs[0]); smf(2,buf=bufs[1])
            a(f"s_cmp_ge_u32 s{sN}, 8"); a(f"s_cbranch_scc1 AT_OLD{u}")
            for r in range(16): a(f"v_mov_b32 v{S1+r}, v{vBig}")
            a.label(f"AT_OLD{u}")
            for r in range(16): a(f"v_cndmask_b32 v{SM+r}, v{S1+r}, v{S0+r}, {sr(sM+2*r,2)}")
            a(f"v_max3_f32 v{vM}, v{SM}, v{SM+1}, v{SM+2}")
            a(f"v_max3_f32 v{vM2}, v{SM+3}, v{SM+4}, v{SM+5}")
            for r in range(6,16,4):
                a(f"v_max3_f32 v{vM}, v{vM}, v{SM+r}, v{SM+r+1}")
                if r+2<16: a(f"v_max3_f32 v{vM2}, v{vM2}, v{SM+r+2}, v{SM+r+3}")
            for d in range(1,8):
                a(f"s_cmp_lt_u32 s{sN}, {d}"); a(f"s_cbranch_scc1 AT_MX{u}")
                if d+2<8: smf(d+2,buf=bufs[(d+1)%4])
                b=bufs[(d-1)%4]
                for r in range(0,16,4):
                    a(f"v_max3_f32 v{vM}, v{vM}, v{b+r}, v{b+r+1}")
                    a(f"v_max3_f32 v{vM2}, v{vM2}, v{b+r+2}, v{b+r+3}")
            a.label(f"AT_MX{u}")
            a(f"v_max_f32 v{vM}, v{vM}, v{vM2}")
            a(f"v_mov_b32 v{vM2}, v{vM}")
            if u==0: a2flag()
            a(f"v_permlane32_swap_b32 v{vM}, v{vM2}")
            a(f"v_max_f32 v{vM}, v{vM}, v{vM2}")
            a(f"v_sub_f32 v{CM}, 0, v{vM}")
            a(f"v_mov_b32 v{CM+1}, v{CM}")
            for r in range(2,16,2): a(f"v_mov_b64 {vr(CM+r,2)}, {vr(CM,2)}")
            sb=[S0,S1]
            a(f"v_sub_f32 v{SM}, v{SM}, v{vM}"); a(f"v_sub_f32 v{SM+1}, v{SM+1}, v{vM}")
            smf(1,vr(CM,16),sb[1])
            for r in range(2,16): a(f"v_sub_f32 v{SM+r}, v{SM+r}, v{vM}")
            for r in range(16): a(f"v_exp_f32 v{SM+r}, v{SM+r}")
            for r in range(8): a(f"v_cvt_pk_bf16_f32 v{P2+r}, v{SM+2*r}, v{SM+2*r+1}")
            for r in range(8): a(f"v_and_b32 v{P+r}, v{P2+r}, v{MK+r}")
            a(f"{MF} {vr(O_,16)}, {vr(VF+8*nd,4)}, {vr(P,4)}, 0")
            for r in range(4): a(f"v_xor_b32 v{P2+r}, v{P2+r}, v{P+r}")
            a(f"{MF} {vr(O_,16)}, {vr(VF+8*nd+4,4)}, {vr(P+4,4)}, {vr(O_,16)}")
            for r in range(4,8): a(f"v_xor_b32 v{P2+r}, v{P2+r}, v{P+r}")
            a(f"{MF} {vr(O_,16)}, {vr(VF+8*no,4)}, {vr(P2,4)}, {vr(O_,16)}"); a(f"{MF} {vr(O_,16)}, {vr(VF+8*no+4,4)}, {vr(P2+4,4)}, {vr(O_,16)}")
            for d in range(1,8):
                a(f"s_cmp_lt_u32 s{sN}, {d}"); a(f"s_cbranch_scc1 AT_FIN{u}")
                b=sb[d&1]; pb=P if d&1 else P2; n=nd-d
                for r in range(4): a(f"v_exp_f32 v{b+r}, v{b+r}")
                if d+1<8: smf(d+1,vr(CM,16),sb[(d+1)&1])
                for r in range(4,9): a(f"v_exp_f32 v{b+r}, v{b+r}")
                for r in range(4): a(f"v_cvt_pk_bf16_f32 v{pb+r}, v{b+2*r}, v{b+2*r+1}")
                for r in range(9,11): a(f"v_exp_f32 v{b+r}, v{b+r}")
                a(f"{MF} {vr(O_,16)}, {vr(VF+8*n,4)}, {vr(pb,4)}, {vr(O_,16)}")
                for r in range(11,16): a(f"v_exp_f32 v{b+r}, v{b+r}")
                for r in range(4,8): a(f"v_cvt_pk_bf16_f32 v{pb+r}, v{b+2*r}, v{b+2*r+1}")
                a(f"{MF} {vr(O_,16)}, {vr(VF+8*n+4,4)}, {vr(pb+4,4)}, {vr(O_,16)}")
            a.label(f"AT_FIN{u}")
            a(f"s_mul_i32 s{sT}, s{sN}, {A3_TB}"); a(f"s_lshl_b32 s{sT2}, s{sHead}, 10"); a(f"s_add_u32 s{sT}, s{sT}, s{sT2}")
            a(f"s_add_u32 s{sT}, s{sT}, {WS_A3+86*1024}")
            a(f"v_rcp_f32 v{vT0}, v{O_+8}")
            a(f"v_mul_f32 v{vT0}, v{vT0}, v{vGt+u}")
            for r in range(8): a(f"v_mul_f32 v{O_+r}, v{O_+r}, v{vT0}")
            for r in range(4): a(f"v_cvt_pk_bf16_f32 v{SM+r}, v{O_+2*r}, v{O_+2*r+1}")
            for r in range(4): a(f"v_min_u32 v{SM+r}, -2, v{SM+r}")
            a(f"buffer_store_dwordx4 {vr(SM,4)}, v{vSt}, {sr(sWS,4)}, s{sT} offen sc1", "ost")
            stamp(a,8+u)
    def attn_fast():
        K_=lambda n: vr(KF+4*n,4)
        sb=[S0,S1]; sOv=0
        def smf(u,d): a(f"{MF} {vr(sb[d&1],16)}, {K_(8+u-d)}, {vr(Q+4*u,4)}, {vr(CM,16)}")
        def head(u):
            for r in range(16): a(f"v_cndmask_b32 v{SM+r}, v{SM+r}, v{S0+r}, {sr(sM+2*r,2)}")
            a(f"v_max3_f32 v{vM}, v{SM}, v{SM+1}, v{SM+2}")
            a(f"v_max3_f32 v{vM2}, v{SM+3}, v{SM+4}, v{SM+5}")
            a(f"v_max3_f32 v{vM}, v{vM}, v{SM+6}, v{SM+7}"); a(f"v_max3_f32 v{vM2}, v{vM2}, v{SM+8}, v{SM+9}")
            a(f"v_max3_f32 v{vM}, v{vM}, v{SM+10}, v{SM+11}"); a(f"v_max3_f32 v{vM2}, v{vM2}, v{SM+12}, v{SM+13}")
            a(f"v_max3_f32 v{vM}, v{vM}, v{SM+14}, v{SM+15}")
            a(f"v_max_f32 v{vM}, v{vM}, v{vM2}")
            a(f"v_mov_b32 v{vM2}, v{vM}")
            a(f"s_mul_i32 s{sT}, s{sQB}, {A3_TB}"); a(f"s_lshl_b32 s{sT2}, s{sHead}, 10")
            a(f"v_permlane32_swap_b32 v{vM}, v{vM2}")
            a(f"v_max_f32 v{vM}, v{vM}, v{vM2}")
            a(f"v_sub_f32 v{CM}, 0, v{vM}")
            a(f"v_sub_f32 v{CM+1}, 0, v{vM}")
            for r in range(2,16,2): a(f"v_mov_b64 {vr(CM+r,2)}, {vr(CM,2)}")
            a(f"v_sub_f32 v{SM}, v{SM}, v{vM}"); a(f"v_sub_f32 v{SM+1}, v{SM+1}, v{vM}")
            smf(u,1)
        def fin(u):
            a(f"s_add_u32 s{sT}, s{sT}, s{sT2}"); a(f"s_add_u32 s{sT}, s{sT}, {WS_A3+86*1024+u*A3_TB}")
            a(f"v_rcp_f32 v{vT0}, v{O_+8}")
            a(f"v_cmp_ngt_f32 vcc, v{vBig2}, v{O_+8}")
            a(f"v_mul_f32 v{vT0}, v{vT0}, v{vGt+u}")
            a("s_branch AT_SLOW" if O.forceslow==u+1 else "s_cbranch_vccnz AT_SLOW")
            for r in range(8): a(f"v_mul_f32 v{O_+r}, v{O_+r}, v{vT0}")
            for r in range(4): a(f"v_cvt_pk_bf16_f32 v{P+r}, v{O_+2*r}, v{O_+2*r+1}")
            for r in range(4): a(f"v_min_u32 v{P+r}, -2, v{P+r}")
            a(f"buffer_store_dwordx4 {vr(P,4)}, v{vSt}, {sr(sWS,4)}, s{sT} offen sc1", "ost")
            stamp(a,8+u)
        def body(u):
            nd=8+u; no=u
            for r in range(2,16): a(f"v_sub_f32 v{SM+r}, v{SM+r}, v{vM}")
            for r in range(16): a(f"v_exp_f32 v{SM+r}, v{SM+r}")
            if u==0: a2flag()
            for r in range(8): a(f"v_cvt_pk_bf16_f32 v{P2+r}, v{SM+2*r}, v{SM+2*r+1}")
            for r in range(6): a(f"v_and_b32 v{P+r}, v{P2+r}, v{MK+r}")
            a(f"{MF} {vr(O_,16)}, {vr(VF+8*nd,4)}, {vr(P,4)}, 0")
            for r in range(6,8): a(f"v_and_b32 v{P+r}, v{P2+r}, v{MK+r}")
            for r in range(4): a(f"v_xor_b32 v{P2+r}, v{P2+r}, v{P+r}")
            a(f"{MF} {vr(O_,16)}, {vr(VF+8*nd+4,4)}, {vr(P+4,4)}, {vr(O_,16)}")
            for r in range(4,8): a(f"v_xor_b32 v{P2+r}, v{P2+r}, v{P+r}")
            pend=[f"{MF} {vr(O_,16)}, {vr(VF+8*no,4)}, {vr(P2,4)}, {vr(O_,16)}", f"{MF} {vr(O_,16)}, {vr(VF+8*no+4,4)}, {vr(P2+4,4)}, {vr(O_,16)}"]
            for d in range(1,8):
                b=sb[d&1]; pb=P if d&1 else P2; n=nd-d
                a(f"v_exp_f32 v{b}, v{b}")
                if len(pend)>1: a(pend.pop(0))
                for r in range(1,4): a(f"v_exp_f32 v{b+r}, v{b+r}")
                a(pend.pop(0))
                for r in range(4,8): a(f"v_exp_f32 v{b+r}, v{b+r}")
                if d<7: smf(u,d+1)
                elif u==0: a(f"{MF} {vr(S0,16)}, {K_(9)}, {vr(Q+4,4)}, 0")
                a(f"v_exp_f32 v{b+8}, v{b+8}")
                for r in range(4): a(f"v_cvt_pk_bf16_f32 v{pb+r}, v{b+2*r}, v{b+2*r+1}")
                for r in range(9,11): a(f"v_exp_f32 v{b+r}, v{b+r}")
                a(f"{MF} {vr(O_,16)}, {vr(VF+8*n,4)}, {vr(pb,4)}, {vr(O_,16)}")
                for r in range(11,14): a(f"v_exp_f32 v{b+r}, v{b+r}")
                if d==7 and u==0: a(f"{MF} {vr(SM,16)}, {K_(1)}, {vr(Q+4,4)}, 0")
                for r in range(14,16): a(f"v_exp_f32 v{b+r}, v{b+r}")
                for r in range(4,8): a(f"v_cvt_pk_bf16_f32 v{pb+r}, v{b+2*r}, v{b+2*r+1}")
                pend=[f"{MF} {vr(O_,16)}, {vr(VF+8*n+4,4)}, {vr(pb+4,4)}, {vr(O_,16)}"]
            a(pend.pop(0))
        stamp(a,7)
        a(f"{MF} {vr(S0,16)}, {K_(8)}, {vr(Q,4)}, 0")
        a(f"{MF} {vr(SM,16)}, {K_(0)}, {vr(Q,4)}, 0")
        head(0); body(0); head(1); fin(0)
        a(f"s_mul_i32 s{sT}, s{sQB}, {A3_TB}")
        body(1); fin(1)
    stages={k:([k+2] if k<O.dbl else [k+2,k+3] if k==O.dbl else [k+3]) for k in range(6,13)}
    t0sched=[{7:[0],10:[1],11:[2,3],12:[4,5,6]},{7:[0],8:[1],10:[2],11:[3,4],12:[5,6]},{10:[0,1],11:[2,3],12:[4,5,6]},{11:[0,1,2],12:[3,4,5,6]},{12:[0,1,2,3,4,5,6]},{7:[0],8:[1],10:[2,3],12:[4,5,6]}][O.t0s]
    a(f"v_and_b32 v{vBig}, 15, v{vL}"); a(f"v_lshlrev_b32 v{vBig}, 2, v{vBig}")
    for k in range(6,13):
        if k==6: a(f"buffer_load_dword v{vP}, v{vBig}, {sr(sDBG,4)}, 0 offen sc1", "init")
        if k==9 and O.park: unpark()
        if k==10 and O.park:
            for i in range(O.qs,6): qstore(i)
        for st in stages[k]: dmas(st)
        if k==6: setup_attn(0)
        if k==9 and O.park:
            a("s_waitcnt lgkmcnt(0)")
            for i in range(O.qs): qstore(i)
        if k==O.pa:
            a(f"v_mov_b64 {vr(S1,2)}, -1"); a(f"v_mov_b64 {vr(S1+2,2)}, -1")
            a(f"s_mul_i32 s{sT}, s{sQB}, {A3_TB}"); a(f"s_lshl_b32 s{sT2}, s{sHead}, 10"); a(f"s_add_u32 s{sT}, s{sT}, s{sT2}"); a(f"s_add_u32 s{sT}, s{sT}, {WS_A3+86*1024}")
            a(f"buffer_store_dwordx4 {vr(S1,4)}, v{vSt}, {sr(sWS,4)}, s{sT} offen sc1"); a(f"s_add_u32 s{sT}, s{sT}, {A3_TB}")
            a(f"buffer_store_dwordx4 {vr(S1,4)}, v{vSt}, {sr(sWS,4)}, s{sT} offen sc1")
        for p in t0sched.get(k,[]): w3_dma(a,p,vD,("t0",p))
        if O.p0<=k<O.p0+4: stamp(a,3+3*(k-O.p0),1)
        if k in (8,9,10,11): setup_attn(k-7)
        if k==O.sigk and O.park: signal(a,0,vT0,"qst")
        a.wait(vm=[("d",k+1)])
        if k==7: poll(a,vP,vBig,sDBG,"0",first_tag="init")
        if O.p0<=k+1<O.p0+4: stamp(a,1+3*(k+1-O.p0),1)
        a("s_barrier")
        if O.p0<=k+1<O.p0+4: stamp(a,2+3*(k+1-O.p0),1)
        if k+1 in (8,13): stamp(a,{8:3,13:4}[k+1])
    a(f"buffer_load_dword v{vP}, v{vM2}, {sr(sWS,4)}, s{sN} offen sc1", "qf")
    a("s_waitcnt vmcnt(1)")
    lds_inc(a,vSy,vOne,L_C14-L_SY)
    poll(a,vP,vM2,sWS,f"s{sN}",first_tag="qf")
    stamp(a,5)
    a(f"s_lshl_b32 s{sT}, s{sQB}, 10"); a(f"s_add_u32 s{sT}, s{sT}, s{sKo}")
    for u in range(2): a(f"buffer_load_dwordx4 {vr(Q+4*u,4)}, v{vSt}, {sr(sWS,4)}, s{sT} offen offset:{u*1024} sc1", ("q",u))
    a(f"s_add_u32 s{sKo}, s{sKo}, {WS_K}")
    for n in korder:
        a(f"s_add_i32 s{sT}, s{sQB}, {n-8}"); a(f"s_max_i32 s{sT}, s{sT}, 0"); a(f"s_lshl_b32 s{sT}, s{sT}, 11"); a(f"s_add_u32 s{sT}, s{sT}, s{sVo}")
        a(f"buffer_load_dwordx4 {vr(VF+8*n,4)}, v{vVo}, {sr(sWS,4)}, s{sT} offen sc1", ("v",n))
        if O.thr: a(f"s_waitcnt vmcnt({O.thr})")
    for n in korder:
        a(f"s_add_i32 s{sT}, s{sQB}, {n-8}"); a(f"s_max_i32 s{sT}, s{sT}, 0"); a(f"s_lshl_b32 s{sT}, s{sT}, 10"); a(f"s_add_u32 s{sT}, s{sT}, s{sKo}")
        a(f"buffer_load_dwordx4 {vr(KF+4*n,4)}, v{vSt}, {sr(sWS,4)}, s{sT} offen sc1", ("k",n))
        if O.thr: a(f"s_waitcnt vmcnt({O.thr})")
    stamp(a,6)
    lds_poll(a,vSy,vT1,4,L_C13-L_SY)
    if O.ap: a("s_setprio 3")
    prep=[]
    def qscale(h):
        a.wait(vm=[("q",1)])
        for r in range(4*h,4*h+4):
            a(f"v_lshlrev_b32 v{S0+2*r}, 16, v{Q+r}"); a(f"v_and_b32 v{S0+2*r+1}, 0xffff0000, v{Q+r}")
        for r in range(8*h,8*h+8): a(f"v_mul_f32 v{S0+r}, {f2u(0.25*LOG2E):#x}, v{S0+r}")
        for r in range(4*h,4*h+4): a(f"v_cvt_pk_bf16_f32 v{Q+r}, v{S0+2*r}, v{S0+2*r+1}")
    prep=[lambda:qscale(0),lambda:qscale(1)]+[(lambda i=i: vswap(korder[2*i:2*i+2])) for i in range(5)]
    for i,p in enumerate(A2LIST[:O.nA2]):
        if O.thrA: a(f"s_waitcnt vmcnt({O.thrA})")
        w3_dma(a,p,vD,("a2",p))
        if prep and not O.ap: prep.pop(0)()
    if O.afl: a2flag()
    if O.ap: a("s_setprio 0")
    stamp(a,10)
    for f in prep: f()
    a.wait(vm=[("k",n) for n in range(10)])
    if O.prio2: a("s_setprio 1")
    a(f"s_cmp_lt_u32 s{sQB}, 8"); a("s_cbranch_scc1 AT_SLOW")
    vm0=list(a.vm)
    attn_fast()
    a.label("AT_DONE")
    yield
    a.label("AT_SLOW"); a.vm=list(vm0); a.lg=[]
    attn_slow(); a("s_branch AT_DONE")
    yield

def ids(a):
    a(f"s_bfe_u32 s{sRB}, s2, 0x10002"); a(f"s_lshl_b32 s{sRB}, s{sRB}, 3")
    a(f"s_bfe_u32 s{sT}, s2, 0x30003"); a(f"s_add_u32 s{sRB}, s{sRB}, s{sT}")
    a(f"s_and_b32 s{sCG}, s2, 3"); a(f"s_lshl_b32 s{sCG}, s{sCG}, 2")
    a(f"s_lshr_b32 s{sT}, s2, 6"); a(f"s_add_u32 s{sCG}, s{sCG}, s{sT}")
    if O.rot==1:
        a(f"s_lshl_b32 s{sPH}, s{sT}, 1"); a(f"s_add_u32 s{sPH}, s{sPH}, s{sRB}"); a(f"s_and_b32 s{sT}, s2, 1"); a(f"s_add_u32 s{sPH}, s{sPH}, s{sT}")
    elif O.rot==2:
        a(f"s_add_u32 s{sPH}, s{sT}, s{sRB}"); a(f"s_lshl_b32 s{sPH}, s{sPH}, 2")
    elif O.rot==6:
        a(f"s_add_u32 s{sPH}, s{sT}, s{sRB}"); a(f"s_lshl_b32 s{sPH}, s{sPH}, 1"); a(f"s_and_b32 s{sT}, s2, 1"); a(f"s_add_u32 s{sPH}, s{sPH}, s{sT}")
    elif O.rot==7:
        a(f"s_add_u32 s{sPH}, s{sT}, s{sRB}"); a(f"s_lshl_b32 s{sPH}, s{sPH}, 2"); a(f"s_and_b32 s{sT}, s2, 3"); a(f"s_add_u32 s{sPH}, s{sPH}, s{sT}")
        a(f"s_bfe_u32 s{sT}, s2, 0x10002"); a(f"s_lshl_b32 s{sT}, s{sT}, 1"); a(f"s_add_u32 s{sPH}, s{sPH}, s{sT}")
    elif O.rot==4:
        a(f"s_and_b32 s{sPH}, s2, 7")
    elif O.rot==5:
        a(f"s_add_u32 s{sPH}, s{sT}, s{sRB}"); a(f"s_lshl_b32 s{sPH}, s{sPH}, 2"); a(f"s_and_b32 s{sT}, s2, 3"); a(f"s_add_u32 s{sPH}, s{sPH}, s{sT}")
    else: a(f"s_mov_b32 s{sPH}, 0")
    a(f"s_and_b32 s{sI}, s{sW}, 3")

def kernel():
    a=Asm()
    a("s_getpc_b64 s[66:67]")
    a("v_lshrrev_b32 v1, 6, v0")
    a(f"s_load_dwordx2 {sr(sX,2)}, s[0:1], 0"); a(f"s_load_dwordx2 {sr(sWQ,2)}, s[0:1], 8"); a(f"s_load_dwordx2 {sr(sGW,2)}, s[0:1], 56")
    a(f"v_readfirstlane_b32 s{sW}, v1")
    a("s_lshr_b32 s3, s2, 8"); a("s_cbranch_scc1 END")
    if O.stamp:
        a(f"v_mov_b32 v{vSTAMP}, 0"); a(f"{O.stamp} s[96:97]")
    a(f"s_cmp_lt_u32 s{sW}, 4"); a("s_cbranch_scc1 G_STUB")
    lg=list(a.lg)
    a(f"s_mov_b32 s{sX+3}, 0x20000"); a(f"s_mov_b32 s{sWQ+3}, s{sX+3}"); a(f"s_mov_b32 s{sGW+3}, s{sX+3}")
    a(f"s_lshl_b32 s{sX+2}, s{sX+3}, 4"); a(f"s_mul_i32 s{sWQ+2}, s{sX+3}, 12"); a(f"s_movk_i32 s{sGW+2}, 1024")
    qs(a)
    ids(a)
    A=a_wave(a)
    next(A)
    a.label("G_STUB"); a.vm=[]; a.lg=list(lg)
    if O.codepf:
        a(f"s_lshr_b32 s{sT}, s2, 3"); a(f"s_lshl_b32 s{sT}, s{sT}, 7"); a(f"s_lshl_b32 s{sT2}, s{sW}, 14"); a(f"s_add_u32 s{sT}, s{sT}, s{sT2}")
        a(f"v_and_b32 v12, 3, v0"); a(f"v_lshl_add_u32 v12, v12, 12, s{sT}")
        a("s_mov_b64 exec, 15")
        a(f"global_load_dword v97, v12, s[66:67]", "cpf")
        a("s_mov_b64 exec, -1")
    a(f"s_and_b32 s{sCG}, s2, 3"); a(f"s_lshl_b32 s{sCG}, s{sCG}, 2")
    a(f"s_lshr_b32 s{sT}, s2, 6"); a(f"s_add_u32 s{sCG}, s{sCG}, s{sT}")
    a(f"s_cmp_eq_u32 s{sCG}, 10"); a("s_cbranch_scc1 G_V1")
    a(f"s_cmp_gt_u32 s{sCG}, 10"); a("s_cbranch_scc1 G_V2")
    a("s_branch G_V0")
    next(A)
    a.label("FINAL")
    final_reduce(a)
    a.label("END")
    a("s_endpgm")
    next(A)
    g_wave(a,lg)
    return a
def kargs(a):
    for d,off in ((sWS,80),(sDBG,72),(sWG,32),(sWU,40),(sWD,48),(sWO,16),(sOUT,64)):
        a(f"s_load_dwordx2 {sr(d,2)}, s[0:1], {off}")
_q=[0]
def qs(a):
    if O.probe==5 and _q[0]<12:
        a(f"{O.stamp} s[{68+2*_q[0]}:{69+2*_q[0]}]"); _q[0]+=1
def qflush(a):
    if O.probe==5:
        a("s_waitcnt lgkmcnt(0)")
        for i in range(_q[0]): a(f"v_writelane_b32 v{vSTAMP}, s{68+2*i}, {i+1}")
        _q[0]=99
def stamp0(a):
    if O.stamp: a(f"v_writelane_b32 v{vSTAMP}, s96, 0")

PROMO=("v_exp_f32","v_rcp_f32","v_mul_f32","v_add_f32","v_sub_f32","v_and_b32","v_xor_b32","v_or_b32","v_mov_b32","v_max_f32","v_lshlrev_b32","v_mov_b64","v_add_u32","v_lshrrev_b32","v_min_f32")
def align_pass(a):
    import subprocess, re, tempfile
    d=tempfile.mkdtemp()
    open(d+"/a.s","w").write('.amdgcn_target "amdgcn-amd-amdhsa--gfx950"\n.text\nK:\n'+a.text().replace(".p2align 12\n",""))
    subprocess.run(["clang","-x","assembler","-target","amdgcn-amd-amdhsa","-mcpu=gfx950","-c",d+"/a.s","-o",d+"/a.o"],check=True)
    dis=subprocess.run(["llvm-objdump","-d","--mcpu=gfx950",d+"/a.o"],capture_output=True,text=True).stdout
    sizes=[4*len(m.group(1).split()) for m in re.finditer(r"// [0-9A-F]{12}: ((?:[0-9A-F]{8} ?)+)",dis)]
    idx=[i for i,l in enumerate(a.out) if l.startswith("  ") and not l.startswith("  ;")]
    assert len(idx)==len(sizes),(len(idx),len(sizes))
    off=0; cand=None; n=0; bad=0
    for i,sz in zip(idx,sizes):
        mn=a.out[i].split()[0]
        if a.out[i-2].startswith(".p2align"): off=(off+7)//8*8; cand=None
        if sz>=8:
            if off%8==4:
                if cand is not None:
                    m2=a.out[cand].split()[0]; a.out[cand]=a.out[cand].replace(m2,m2+"_e64",1); off+=4; n+=1
                else: bad+=1
            cand=None
        elif mn in PROMO:
            if off%8==0 or cand is None: cand=i
        off+=sz
    print("align: promoted",n,"left misaligned",bad,"bytes",off,file=sys.stderr)

def build():
    a=kernel()
    if O.align: align_pass(a)
    print("instrs",len(a.seq),"nops",a.nops,file=sys.stderr)
    K=NAME+"_kernel"
    s=f"; @launch grid=(256,1,1) block=(512,1,1) lds={LDS_SIZE}\n"
    s+='.amdgcn_target "amdgcn-amd-amdhsa--gfx950"\n'
    s+=f".text\n.p2align 12\n.globl {K}\n.p2align 8\n.type {K},@function\n{K}:\n"
    s+=a.text()
    s+="  s_endpgm\n.fill 8192, 4, 0xBF800000\n"
    s+=f""".section .rodata,"a"
.p2align 6
.amdhsa_kernel {K}
  .amdhsa_next_free_vgpr 256
  .amdhsa_next_free_sgpr 102
  .amdhsa_accum_offset 256
  .amdhsa_group_segment_fixed_size 0
  .amdhsa_kernarg_size 88
  .amdhsa_user_sgpr_count 2
  .amdhsa_user_sgpr_kernarg_segment_ptr 1
  .amdhsa_system_sgpr_workgroup_id_x 1
.end_amdhsa_kernel
"""
    return s

if __name__=="__main__":
    args=sys.argv[1:]
    out=f"cdna_kernels/{NAME}.s"
    for x in args:
        if x=="--stamp": O.stamp="s_memrealtime"
        elif x=="--cyc": O.stamp="s_memtime"
        elif x.startswith("--"):
            k,v=x[2:].split("="); assert hasattr(O,k); setattr(O,k,int(v))
        else: out=x
    open(out,"w").write(build())
```

```python
import sys, math, struct
sys.path.insert(0, "work")
from asmlib import *

NAME = "gated_mix__sliding_block__swiglu_ffn__prompt"
MB = 1<<20
WS_Q, WS_K, WS_V, WS_A3, WS_F, WS_ST = 0, 2*MB, 4*MB, 6*MB, 14*MB, 15*MB
WS_SIZE = 16*MB
A3_TB = 118*1024
LOG2E = math.log2(math.e)
def f2u(f): return struct.unpack("<I", struct.pack("<f", f))[0]
MF = "v_mfma_f32_32x32x16_bf16"
MF16 = "v_mfma_f32_16x16x32_bf16"
SLOT=28672
L_GW, L_Z, L_G, L_SY, LDS_SIZE = 159744, 160768, 161792, 162304, 162560
L_CNT, L_C14, L_C13, L_OF, L_AF = L_SY, L_SY+4, L_SY+8, L_SY+12, L_SY+16
PARK=33*4096
SPIN_MAX = 200000
OOB = 0x40000000

class Opt:
    stamp=None; probe=0; p0=9
    rot=5; codepf=1; warm=1; wst=0; outaux=2; sleep=2; align=1; forceslow=0
    NA=4; dl=1; thr=0; thrA=6; thr3=6; nA2=0; early=2; hpos=3; qs=4; w2=1; prio2=2; t0s=5; osl=4; dbl=11; park=0; qsig=24; sigk=10; rsl=1; pst=-2; wmode=1; wn=8; wsp=6; ap=0; afl=0; pa=12; ord=1; tm=0; nfull=0; warmx=0; adly=0; lay=1; cpl=0; fr=1; ck=1; ek=1
O=Opt()

sWS,sX,sWQ,sWG,sWU,sWD,sWO,sOUT,sGW,sDBG = 4,8,12,16,20,24,28,32,36,40
sW,sI,sRB,sCG,sSB,sPH,sT,sT2,sT3,sTR,sTC = 44,45,46,47,48,49,50,51,52,53,54
sA,sB,sC,sD,sE,sF,sG_,sH,sLT = 55,56,57,58,59,60,61,62,63
sM=64
s1K,sDo,sHead,sRo = 98,99,100,101
vSTAMP=11

def stamp(a, idx, probe=0):
    if O.stamp and (probe==O.probe or idx in (0,15)):
        a(f"{O.stamp} s[96:97]"); a("s_waitcnt lgkmcnt(0)")
        a(f"v_writelane_b32 v{vSTAMP}, s96, {idx}")
def stamp_flush(a, vtmp):
    if O.stamp:
        a("s_waitcnt vmcnt(0)"); stamp(a,15)
        a(f"s_lshl_b32 s{sT}, s2, 3"); a(f"s_add_u32 s{sT}, s{sT}, s{sW}"); a(f"s_lshl_b32 s{sT}, s{sT}, 6")
        a(f"s_add_u32 s{sT}, s{sT}, {WS_ST}")
        a(f"v_mbcnt_lo_u32_b32 v{vtmp}, -1, 0"); a(f"v_lshlrev_b32 v{vtmp}, 2, v{vtmp}")
        a("s_mov_b64 exec, 0xffff")
        a(f"buffer_store_dword v{vSTAMP}, v{vtmp}, {sr(sWS,4)}, s{sT} offen")

def srd_tail(a, d, size):
    a(f"s_mov_b32 s{d+2}, {size:#x}"); a(f"s_mov_b32 s{d+3}, 0x20000")
def late_srds(a):
    for d,size in ((sWS,WS_SIZE),(sDBG,256),(sWG,512*2752),(sWU,512*2752),(sWD,1376*1024),(sWO,512*1024),(sOUT,2*MB)):
        srd_tail(a,d,size)
def late_scalars(a):
    a(f"s_mul_i32 s{sT}, s{sCG}, 43"); a(f"s_lshr_b32 s{sT}, s{sT}, 7")
    a(f"s_mul_i32 s{sSB}, s{sCG}, 3"); a(f"s_sub_u32 s{sSB}, s{sSB}, s{sT}")
    a(f"s_mul_i32 s{sT}, s{sT}, 3"); a(f"s_sub_u32 s{sT}, s{sCG}, s{sT}"); a(f"s_cmp_eq_u32 s{sT}, 2")
    a(f"s_cselect_b32 s{sLT}, {OOB:#x}, 0")
    a(f"s_and_b32 s{sTR}, s2, 7"); a(f"s_lshl_b32 s{sTR}, s{sTR}, 2"); a(f"s_bfe_u32 s{sT}, s2, 0x20003"); a(f"s_add_u32 s{sTR}, s{sTR}, s{sT}")
    a(f"s_lshr_b32 s{sTC}, s2, 5")
    a(f"s_lshl_b32 s{s1K}, s{sI}, 10")
    a(f"s_lshl_b32 s{sDo}, s{sI}, 14"); a(f"s_lshl_b32 s{sT}, s{sTC}, 7"); a(f"s_add_u32 s{sDo}, s{sDo}, s{sT}")
    a(f"s_lshl_b32 s{sRo}, s{sTR}, 1"); a(f"s_add_u32 s{sRo}, s{sRo}, s{sTC}"); a(f"s_and_b32 s{sRo}, s{sRo}, 7")
    a(f"s_mul_i32 s{sH}, s{sRo}, 21"); a(f"s_lshr_b32 s{sH}, s{sH}, 3")
    a(f"s_lshl_b32 s{sH}, s{sH}, 16"); a(f"s_lshl_b32 s{sRo}, s{sRo}, 16")

_uid=[0]
def uid(p): _uid[0]+=1; return f"{p}{_uid[0]}"
def poll(a, vdst, vaddr, srd, soff, first_tag=None, expect=1, sleep=None):
    L=uid("PL")
    if first_tag is not None:
        a.wait(vm=[first_tag])
        a(f"v_cmp_ne_u32 vcc, {expect}, v{vdst}")
        a(f"s_cbranch_vccz {L}_D")
    a(f"s_mov_b32 s{sT3}, {SPIN_MAX}")
    keep=list(a.vm)
    a.label(L)
    a(f"buffer_load_dword v{vdst}, v{vaddr}, {sr(srd,4)}, {soff} offen sc1")
    a("s_waitcnt vmcnt(0)")
    a(f"v_cmp_ne_u32 vcc, {expect}, v{vdst}")
    a(f"s_cbranch_vccz {L}_D")
    a(f"s_sleep {sleep or O.sleep}")
    a(f"s_sub_u32 s{sT3}, s{sT3}, 1")
    a(f"s_cmp_lg_u32 s{sT3}, 0")
    a(f"s_cbranch_scc1 {L}")
    a.label(L+"_D")
    if first_tag is not None: a.vm=keep
def lds_poll(a, vaddr, vdst, expect, off=0):
    L=uid("LP")
    a(f"s_mov_b32 s{sT3}, {SPIN_MAX}")
    a.label(L); a(f"ds_read_b32 v{vdst}, v{vaddr} offset:{off}"); a("s_waitcnt lgkmcnt(0)")
    a(f"v_cmp_ne_u32 vcc, {expect}, v{vdst}"); a(f"s_cbranch_vccz {L}_D"); a("s_sleep 1")
    a(f"s_sub_u32 s{sT3}, s{sT3}, 1"); a(f"s_cmp_lg_u32 s{sT3}, 0"); a(f"s_cbranch_scc1 {L}")
    a.label(L+"_D")
def lds_inc(a, vaddr, vone, off):
    a("s_mov_b64 exec, 1"); a(f"ds_add_u32 v{vaddr}, v{vone} offset:{off}"); a("s_mov_b64 exec, -1")
def emit(a, ops, tag=None):
    for op in ops:
        for o in (op if isinstance(op,tuple) else (op,)): a(o,tag)

def signal(a, kind, vtmp, tag=None):
    a(f"s_lshl_b32 s{sT}, s{sRB}, 4"); a(f"s_add_u32 s{sT}, s{sT}, s{sCG}"); a(f"s_lshl_b32 s{sT}, s{sT}, 5")
    a(f"s_add_u32 s{sT}, s{sT}, s{sI}"); a(f"s_lshl_b32 s{sT}, s{sT}, 2"); a(f"s_add_u32 s{sT}, s{sT}, {WS_F+kind*32768}")
    a(f"v_mov_b32 v{vtmp}, 1")
    a("s_mov_b64 exec, 1")
    if tag: a.wait(vm=[tag])
    else: a("s_waitcnt vmcnt(0)")
    a(f"buffer_store_dword v{vtmp}, off, {sr(sWS,4)}, s{sT} sc1", "flag")
    a("s_mov_b64 exec, -1")

def flag_lane_ops(vF, vL, t0, t1, sdst, kind):
    return [f"v_and_b32 v{t0}, 15, v{vL}", f"v_bfe_u32 v{t1}, v{vL}, 4, 1", f"v_lshlrev_b32 v{t1}, 2, v{t1}", f"v_lshl_add_u32 v{vF}, v{t0}, 7, v{t1}",
            f"s_lshr_b32 s{sdst}, s{sTR}, 1", f"s_lshl_b32 s{sdst}, s{sdst}, 11", f"s_and_b32 s{sT}, s{sTR}, 1", f"s_lshl_b32 s{sT}, s{sT}, 3",
            f"s_add_u32 s{sdst}, s{sdst}, s{sT}", f"s_add_u32 s{sdst}, s{sdst}, {WS_F+kind*32768}"]
def qaddr_ops(i):
    t,e=i>>1,i&1
    o=[f"s_mul_i32 s{sT}, s{sCG}, 3", f"s_add_u32 s{sT}, s{sT}, {t}", f"s_lshl_b32 s{sT2}, s{sRB}, 2", f"s_add_u32 s{sT2}, s{sT2}, s{sI}",
       (f"s_cmp_ge_u32 s{sT}, 32", f"s_cselect_b32 s{sT3}, 11, 10"), f"s_lshl_b32 s{sT2}, s{sT2}, s{sT3}"]
    if e: o+=[(f"s_cmp_ge_u32 s{sT}, 32", f"s_cselect_b32 s{sT3}, 1, 64"), f"s_lshl_b32 s{sT3}, s{sT3}, 10", f"s_add_u32 s{sT2}, s{sT2}, s{sT3}"]
    return o+[f"s_lshl_b32 s{sT}, s{sT}, 17", f"s_add_u32 s{sT}, s{sT}, s{sT2}"]
def w3_lane_ops(vD, vL, t0, t1):
    return [f"v_bfe_u32 v{t0}, v{vL}, 4, 1", f"v_lshlrev_b32 v{t0}, 2, v{t0}", f"v_and_b32 v{t1}, 7, v{vL}", f"v_xor_b32 v{t0}, v{t0}, v{t1}",
            f"v_lshlrev_b32 v{t0}, 4, v{t0}", f"v_lshrrev_b32 v{t1}, 3, v{vL}", f"v_lshl_add_u32 v{vD}, v{t1}, 10, v{t0}",
            f"v_add_u32 v{vD}, s{sDo}, v{vD}", f"v_add_u32 v{vD+1}, 8192, v{vD}"]

ROWS = list(range(28,39))+[6,13,20] + [0,1,2,3,4,5,7,8,9,10,11,12] + [14,15,16,17,18,19,21,22,23,24,25,26]
NRES=19; NT0=7; NREG=11; NS3=30
LOAD=[0,1,2,3,4,22,23, 5,6,7,8,9,10, 11,12,13,14,15,16, 17,18,19,20,21,24,25,26,27,28,29]
POS={n:p for p,n in enumerate(LOAD)}
A2LIST=list(range(7,13))+list(range(19,26))
def row_of(p,e): return ROWS[2*(p%NRES)+e]
def rot_off(n):
    if n<21: return [f"s_add_u32 s{sT2}, s{sH}, {n<<16}", f"s_add_u32 s{sT3}, s{sH}, {((n-21)<<16)&0xffffffff:#x}", f"s_min_u32 s{sT2}, s{sT2}, s{sT3}"]
    if n==21: return [f"s_and_b32 s{sT2}, s{sI}, 2", f"s_lshl_b32 s{sT2}, s{sT2}, 14", f"s_sub_u32 s{sT2}, {21<<16}, s{sT2}"]
    return [f"s_add_u32 s{sT2}, s{sRo}, {(n-22)<<16}", f"s_and_b32 s{sT2}, s{sT2}, {7<<16}"]
def w3_dma(a, p, vD, tag):
    n=LOAD[p]; R=sWD if n<22 else sWO
    a(f"s_add_u32 m0, s{s1K}, {row_of(p,0)*4096}")
    emit(a,rot_off(n))
    a(f"buffer_load_dwordx4 v{vD}, {sr(R,4)}, s{sT2} offen lds", tag)
    a(f"s_add_u32 m0, s{s1K}, {row_of(p,1)*4096}")
    a(f"buffer_load_dwordx4 v{vD+1}, {sr(R,4)}, s{sT2} offen lds", tag)

def final_reduce(a):
    vL,vA,vO,B = 1,2,6,16
    a(f"v_mbcnt_lo_u32_b32 v{vL}, -1, 0"); a(f"v_mbcnt_hi_u32_b32 v{vL}, -1, v{vL}")
    if not O.fr:
        a(f"v_lshrrev_b32 v3, 3, v{vL}")
        a(f"v_bfe_u32 v4, v{vL}, 4, 1"); a(f"v_bfe_u32 v5, v{vL}, 3, 1"); a(f"v_lshl_or_b32 v4, v5, 1, v4")
        a(f"v_and_b32 v5, 4, v3"); a(f"v_or_b32 v4, v4, v5")
        a(f"v_and_b32 v5, 3, v{vL}"); a(f"v_lshlrev_b32 v5, 1, v5"); a(f"v_xor_b32 v4, v4, v5"); a(f"v_lshlrev_b32 v4, 4, v4")
        a(f"v_lshl_add_u32 v{vA}, v3, 7, v4")
    else:
        a(f"v_lshrrev_b32 v4, 4, v{vL}"); a(f"v_bfe_u32 v5, v{vL}, 3, 1"); a(f"v_lshl_add_u32 v3, v5, 2, v4")
        a(f"v_lshlrev_b32 v{vA}, 8, v4"); a(f"v_lshl_add_u32 v{vA}, v5, 7, v{vA}")
        a(f"v_and_b32 v5, 3, v{vL}"); a(f"v_lshl_add_u32 v{vA}, v5, 5, v{vA}")
        a(f"v_and_b32 v5, 16, v{vL}"); a(f"v_add_u32 v{vA}, v{vA}, v5"); a(f"v_cmp_ne_u32 vcc, 0, v5")
    a(f"v_bfe_u32 v5, v{vL}, 2, 1"); a(f"v_lshl_add_u32 v{vA}, v5, 14, v{vA}")
    a(f"s_lshr_b32 s{sT}, s{sW}, 2"); a(f"s_lshl_b32 s{sT}, s{sT}, 15"); a(f"s_lshl_b32 s{sT2}, s{sI}, 12"); a(f"s_add_u32 s{sT}, s{sT}, s{sT2}")
    a(f"v_add_u32 v{vA}, s{sT}, v{vA}")
    a(f"v_and_b32 v5, 7, v{vL}"); a(f"v_lshlrev_b32 v5, 4, v5"); a(f"v_lshl_add_u32 v{vO}, v3, 10, v5")
    a(f"v_xor_b32 v{vA+1}, 16, v{vA}")
    a(f"s_lshl_b32 s{sT}, s{sTR}, 16"); a(f"s_lshl_b32 s{sT2}, s{sTC}, 7"); a(f"s_add_u32 s{sT}, s{sT}, s{sT2}")
    a(f"s_lshl_b32 s{sT2}, s{sW}, 13"); a(f"s_add_u32 s{sT}, s{sT}, s{sT2}")
    a("s_waitcnt lgkmcnt(0)"); a("s_barrier")
    stamp(a,13)
    for w in range(4):
        for hf in range(2):
            a(f"ds_read_b128 {vr(B+8*w+4*hf,4)}, v{vA+hf} offset:{w*1024}", ("rr",w))
    a.wait(lg=[("rr",1)])
    for r in range(0,8,2): a(f"v_pk_add_f32 {vr(B+r,2)}, {vr(B+r,2)}, {vr(B+8+r,2)}")
    a.wait(lg=[("rr",3)])
    for r in range(0,8,2): a(f"v_pk_add_f32 {vr(B+16+r,2)}, {vr(B+16+r,2)}, {vr(B+24+r,2)}")
    for r in range(0,8,2): a(f"v_pk_add_f32 {vr(B+r,2)}, {vr(B+r,2)}, {vr(B+16+r,2)}")
    if O.fr:
        for r in range(4): a(f"v_cvt_pk_bf16_f32 v{B+12+r}, v{B+2*r}, v{B+2*r+1}")
        for r in range(4): a(f"v_cndmask_b32 v{B+8+r}, v{B+12+r}, v{B+12+(r^2)}, vcc")
    else:
        for r in range(4): a(f"v_cvt_pk_bf16_f32 v{B+8+r}, v{B+2*r}, v{B+2*r+1}")
    aux=[""," sc1"," nt"," sc0 sc1"][O.outaux]
    a(f"buffer_store_dwordx4 {vr(B+8,4)}, v{vO}, {sr(sOUT,4)}, s{sT} offen{aux}", "out")
    stamp(a,14)
    stamp_flush(a,3)

def g_wave(a, lg0):
    vSt,vXa,vTm,vTq,vT2 = 0,1,3,5,7
    WB,NW,ACC,XR = 12,5,32,128
    GF,GA,vGb,vGa = 80,88,92,93
    vC,vS2,vPk,vSy = 4,3,5,6
    sSt,sK = sB,sC
    t0,t1,vL = 12,13,14
    def poison():
        for i in range(2): a(f"buffer_store_dwordx4 v[104:107], v{vSt}, {sr(sWS,4)}, s{82+i} offen sc1")
    def warm2():
        if O.warm:
            a(f"s_mov_b32 exec_hi, 0x7ff"); a(f"buffer_load_dword v99, v98, s[68:71], 0 offen"); a(f"s_mov_b32 exec_hi, -1")
    def warm_slot(k):
        L=uid("GW"); a(f"s_cmp_lg_u32 s84, {k}"); a(f"s_cbranch_scc1 {L}"); warm2()
        if O.pst==-1: poison()
        a.label(L)
    def g_publish():
        a(f"s_cmp_lg_u32 s72, 3"); a("s_cbranch_scc1 G_NOPUB")
        a(f"s_lshl_b32 s{sT}, s{sRB}, 2"); a("v_mov_b32 v100, 1"); a("s_mov_b64 exec, 1"); a("s_waitcnt vmcnt(0)")
        a(f"buffer_store_dword v100, off, {sr(sDBG,4)}, s{sT} sc1"); a("s_mov_b64 exec, -1")
        a.label("G_NOPUB")
    def setup(vi):
        a(f"v_and_b32 v{vL}, 63, v0")
        kargs(a); ids(a)
        late_srds(a); late_scalars(a)
        a(f"v_lshlrev_b32 v{vSt}, 4, v{vL}")
        a(f"v_and_b32 v{t0}, 31, v{vL}"); a(f"v_lshrrev_b32 v{t1}, 5, v{vL}")
        a(f"v_bfe_u32 v{vXa}, v{vL}, 1, 3"); a(f"v_xor_b32 v{vXa}, v{vXa}, v{t1}"); a(f"v_lshlrev_b32 v{vXa}, 4, v{vXa}")
        a(f"v_lshl_add_u32 v{vXa}, v{t0}, 7, v{vXa}")
        a(f"s_lshl_b32 s{sT}, s{sI}, 12"); a(f"v_add_u32 v{vXa}, s{sT}, v{vXa}"); a(f"v_add_u32 v{vXa+1}, {2*SLOT}, v{vXa}")
        a(f"v_lshrrev_b32 v{vGb}, 4, v{vL}"); a(f"v_xor_b32 v{vGb}, v{vGb}, v{vL}"); a(f"v_and_b32 v{vGb}, 1, v{vGb}")
        a(f"v_lshlrev_b32 v{vGb}, 10, v{vGb}"); a(f"v_lshl_add_u32 v{vGb}, v{t1}, 4, v{vGb}"); a(f"v_add_u32 v{vGb}, {L_GW}, v{vGb}")
        a(f"v_bfe_u32 v{t0}, v{vL}, 2, 2"); a(f"v_lshl_add_u32 v{t0}, v{t1}, 3, v{t0}"); a(f"v_lshlrev_b32 v{t0}, 6, v{t0}")
        a(f"v_and_b32 v{t1}, 3, v{vL}"); a(f"v_lshl_add_u32 v{t0}, v{t1}, 3, v{t0}")
        a(f"v_bfe_u32 v{t1}, v{vL}, 4, 1")
        a(f"v_lshl_add_u32 v{t0}, v{t1}, 5, v{t0}")
        a(f"v_add_u32 v{vTq}, 16384, v{t0}"); a(f"v_add_u32 v{vTq+1}, {16384+2*SLOT}, v{t0}")
        a(f"v_mul_u32_u24 v{t1}, 3072, v{t1}"); a(f"v_add_u32 v{vT2}, v{t0}, v{t1}")
        a(f"v_xor_b32 v{vT2+1}, 32, v{vT2}")
        a(f"v_add_u32 v{vT2+2}, {2*SLOT}, v{vT2}"); a(f"v_add_u32 v{vT2+3}, {2*SLOT}, v{vT2+1}")
        a(f"v_cmp_ne_u32 s[64:65], 0, v{t1}")
        for r in (16,17,18,19): a(f"v_mov_b32 v{r}, 0")
        a(f"v_add_u32 v{t0}, {L_Z}, v{vSt}"); a(f"ds_write_b128 v{t0}, v[16:19]")
        a(f"v_mov_b32 v{t0}, {L_SY}"); a(f"ds_write_b128 v{t0}, v[16:19]"); a(f"ds_write_b128 v{t0}, v[16:19] offset:16")
        a("s_waitcnt lgkmcnt(0)")
        stamp0(a)
        a(f"s_lshl_b32 s{sT}, s{sCG}, 2"); a(f"s_add_u32 s72, s{sT}, s{sI}"); a(f"s_cmp_lg_u32 s72, 3"); a(f"s_cbranch_scc1 G_NOINIT{vi}")
        a(f"v_and_b32 v{t0}, 15, v{vL}"); a(f"v_lshrrev_b32 v{t1}, 4, v{vL}"); a(f"v_lshlrev_b32 v{t0}, 7, v{t0}"); a(f"v_lshl_add_u32 v{t0}, v{t1}, 15, v{t0}")
        a(f"s_lshl_b32 s{sT}, s{sRB}, 11"); a(f"s_add_u32 s{sT}, s{sT}, {WS_F}")
        a("s_mov_b32 exec_hi, 0xffff")
        a(f"buffer_store_dwordx4 v[16:19], v{t0}, {sr(sWS,4)}, s{sT} offen sc1")
        a("s_mov_b32 exec_hi, -1")
        a.label(f"G_NOINIT{vi}")
        if O.pst!=-2:
            for r in (104,105,106,107): a(f"v_mov_b32 v{r}, -1")
            a(f"s_and_b32 s{sT2}, s{sI}, 2"); a(f"s_lshl_b32 s{sT}, s{sRB}, 2"); a(f"s_add_u32 s{sT}, s{sT}, s{sT2}"); a(f"s_mul_i32 s{sT}, s{sT}, {A3_TB}")
            a(f"s_and_b32 s{sT2}, s{sI}, 1"); a(f"s_lshl_b32 s{sT3}, s{sCG}, 1"); a(f"s_add_u32 s{sT2}, s{sT2}, s{sT3}"); a(f"s_lshl_b32 s{sT2}, s{sT2}, 10")
            a(f"s_add_u32 s{sT}, s{sT}, s{sT2}"); a(f"s_add_u32 s82, s{sT}, {WS_A3+86*1024}"); a(f"s_add_u32 s83, s82, {A3_TB}")
        if O.warm:
            a(f"s_cmp_eq_u32 s{sI}, 1"); a(f"s_cselect_b32 s68, s{sWU}, s{sWG}"); a(f"s_cselect_b32 s69, s{sWU+1}, s{sWG+1}")
            a(f"s_cmp_eq_u32 s{sI}, 2"); a(f"s_cselect_b32 s68, s{sWD}, s68"); a(f"s_cselect_b32 s69, s{sWD+1}, s69")
            a(f"s_mov_b32 s70, {1376*1024}")
            a(f"s_cmp_eq_u32 s{sI}, 3"); a(f"s_cselect_b32 s68, s{sWO}, s68"); a(f"s_cselect_b32 s69, s{sWO+1}, s69")
            a(f"s_cselect_b32 s70, {512*1024}, s70"); a("s_mov_b32 s71, 0x20000")
            a(f"s_mul_i32 s{sT}, s2, {43*128}")
            a(f"v_lshl_add_u32 v98, v{vL}, 7, s{sT}")
        if O.wmode==1: a(f"s_lshr_b32 s84, s2, 3"); a(f"s_and_b32 s84, s84, {O.wn-1}")
        if O.wmode==2: a(f"s_mov_b32 s84, s{sI}")
        if O.wmode==3: a(f"s_and_b32 s84, s2, {O.wn-1}")
        if O.wst<0 and not O.wmode: warm2()
        if O.wst<0 and O.wmode: warm_slot(0)
        if not O.park:
            for i in range(6): emit(a,qaddr_ops(i)); a(f"s_mov_b32 s{76+i}, s{sT}")
        a("s_setprio 2")

    seq=[]
    for st in range(8):
        for j in range(4):
            for t in range(3): seq.append((st,j,t))
    for j in range(4):
        for u in (3,4,5): seq.append((8,j,u))
    for u in (0,1,2):
        for j in range(4): seq.append((8,j,u))
    for st in range(9,14):
        for j in range(4):
            for u in range(6): seq.append((st,j,u))
    MT=len(seq)
    for u in range(6):
        for st in (14,15):
            for j in range(4): seq.append((st,j,u))
    N=len(seq); AH=NW-1; M8=96
    first={}
    for m,(st,j,t) in enumerate(seq): first.setdefault(st,m)
    ool=[]
    def reads(m):
        st,j,t=seq[m]; q=st&3; wb=WB+4*(m%NW); tg=("r",m)
        if first[st]==m and st<14:
            if O.dbl<=st<13: a("s_waitcnt lgkmcnt(0)")
            if O.p0<=st<O.p0+4: stamp(a,1+3*(st-O.p0),1)
            a("s_barrier")
            if O.p0<=st<O.p0+4: stamp(a,2+3*(st-O.p0),1)
            if st in (0,1,8,9): stamp(a,{0:1,1:2,8:3,9:4}[st])
            if st<9: stamp(a,2+st,3)
        if m==MT:
            a.wait(lg=["c14"])
            a(f"v_cmp_ne_u32 vcc, 4, v2"); a("s_cbranch_vccnz G_W14"); a.label("G_R14")
            def w14():
                a.label("G_W14"); a.lg=[]; lds_poll(a,vSy,2,4,L_C14-L_SY); a("s_branch G_R14")
            ool.append(w14)
            stamp(a,5); stamp(a,1,4)
        if st<8:
            if t==0:
                k=st*4+j; tm=vTm+(k&1)
                if j: a(f"v_xor_b32 v{tm}, {32*j}, v{vXa+(q>>1)}")
                else:
                    a(f"s_add_u32 s{sK}, s{sPH}, {st}"); a(f"s_and_b32 s{sK}, s{sK}, 7"); a(f"s_lshl_b32 s{sK}, s{sK}, 7")
                    a(f"v_add_u32 v{vGa}, s{sK}, v{vGb}")
                a(f"ds_read_b128 {vr(XR+4*k,4)}, v{tm if j else vXa+(q>>1)} offset:{(q&1)*SLOT}", tg)
                a(f"ds_read_b128 {vr(GF+4*(k&1),4)}, v{vGa} offset:{j*32}", tg)
            for e in range(2):
                a(f"ds_read_b64_tr_b16 {vr(wb+2*e,2)}, v{vTq+(q>>1)} offset:{(q&1)*SLOT+(j*3+t)*1024+e*256}", tg)
        else:
            for e in range(2):
                a(f"ds_read_b64_tr_b16 {vr(wb+2*e,2)}, v{vT2+2*(q>>1)+(t&1)} offset:{(q&1)*SLOT+j*6144+(t>>1)*1024+e*256}", tg)
    rp=[0]
    def pump(m):
        while rp[0]<N and rp[0]<=m+AH:
            r=rp[0]; st=seq[r][0]
            if first[st]==r and O.dbl<=st<13 and m<r-AH+O.dl: break
            reads(r); rp[0]+=1
    def mfma(m, vmask):
        st,j,t=seq[m]; k=(st&7)*4+j; A=vr(ACC+16*t,16)
        W,X=vr(WB+4*(m%NW),4),vr(XR+4*k,4)
        a.wait(lg=[("r",m),("r",m+1)] if (O.w2 and m>=MT+8 and m%2==0) else [("r",m)])
        if st<8 and t==0:
            a(f"{MF16} {vr(GA,4)}, {vr(GF+4*(k&1),4)}, {X}, {'0' if k==0 else vr(GA,4)}")
        p,q_=(X,W) if (st<8 and (vmask>>t)&1) else (W,X)
        a(f"{MF} {A}, {p}, {q_}, {'0' if k==0 else A}")
    for vi,vmask in ((1,4),(2,7),(0,0)):
        a.raw(".p2align 12")
        a.label(f"G_V{vi}")
        a.vm=[]; a.lg=list(lg0)
        setup(vi)
        stamp(a,1,3)
        a.vm=[]; a.lg=[]; rp[0]=0
        pump(-1)
        for m in range(M8):
            if m==M8-6: a("s_waitcnt vmcnt(0)")
            if m==12 and vi==0: g_publish()
            if not O.wmode and m==12*O.wst+1: warm2()
            if O.wmode:
                for k in range(O.wn):
                    if m==12*O.wst+1+k*O.wsp: warm_slot(k)
            if m==O.pst: poison()
            mfma(m,vmask); pump(m)
        if vi: a("s_branch G_P2")
    a.label("G_P2")
    fill={}
    def spread(ops, m0, m1):
        for i,o in enumerate(ops): fill.setdefault(m0+(i*(m1-m0))//len(ops),[]).append(o)
    SS=[0,4,8,11,15,17,20] if not O.park else [0,3,6,8,11,13,15]
    for i in range(6):
        A=ACC+8*i
        ops=[f"s_add_u32 s{sT}, s{s1K}, {PARK}", f"v_add_u32 v{vPk}, s{sT}, v{vSt}"] if (i==0 and O.park) else []
        for r in range(4): ops.append(f"v_cvt_pk_bf16_f32 v{A+r}, v{A+2*r}, v{A+2*r+1}")
        ops.append(f"ds_write_b128 v{vPk}, {vr(A,4)} offset:{i*4096}" if O.park else f"buffer_store_dwordx4 {vr(A,4)}, v{vSt}, {sr(sWS,4)}, s{76+i} offen sc1")
        spread(ops,M8+SS[i],M8+SS[i+1])
    spread([f"v_mul_f32 v{vC}, {f2u(LOG2E):#x}, v{vC}", f"v_exp_f32 v1, -v{vC}", f"v_exp_f32 v{vC}, v{vC}",
            f"v_add_f32 v1, 1.0, v1", f"v_add_f32 v{vC}, 1.0, v{vC}", f"v_rcp_f32 v1, v1", f"v_min_f32 v{vC}, {f2u(1e38):#x}, v{vC}",
            f"v_bfe_u32 v2, v{vSt}, 4, 5", f"s_lshl_b32 s{sT}, s{sI}, 7", f"s_add_u32 s{sT}, s{sT}, {L_G}",
            f"v_lshl_add_u32 v2, v2, 2, s{sT}", f"ds_write_b32 v2, v1", f"v_add_u32 v{vS2}, s{sLT}, v{vSt}",
            f"v_mov_b32 v{vSy}, {L_SY}"], M8+20, M8+27)
    vL,vD,vR,vA,vW,t0,t1,vF,vP = 147,148,150,156,158,162,163,146,145
    WB3,ACC3,AF,WR = 12,32,96,164; NA=O.NA; NF=22-NA; NR=NA+1; assert AF+8*NR<=144
    ops=[f"v_lshrrev_b32 v{vL}, 4, v{vSt}"]+w3_lane_ops(vD,vL,t0,t1)
    ops+=[f"v_lshrrev_b32 v{t0}, 5, v{vL}", f"v_bfe_u32 v{t1}, v{vL}, 2, 2", f"v_lshl_add_u32 v{t0}, v{t0}, 2, v{t1}", f"v_lshlrev_b32 v{vR}, 7, v{t0}",
          f"v_bfe_u32 v{t0}, v{vL}, 3, 1", f"v_lshl_add_u32 v{vR}, v{t0}, 6, v{vR}", f"v_bfe_u32 v{t0}, v{vL}, 4, 1", f"v_lshl_add_u32 v{vR}, v{t0}, 5, v{vR}",
          f"v_and_b32 v{t0}, 3, v{vL}", f"v_lshl_add_u32 v{vR}, v{t0}, 3, v{vR}", f"v_add_u32 v{vR}, s{s1K}, v{vR}",
          f"v_add_u32 v{vR+2}, 65536, v{vR}", f"v_add_u32 v{vR+4}, 131072, v{vR}"]
    ops+=[f"v_xor_b32 v{vR+2*g+1}, 64, v{vR+2*g}" for g in range(3)]
    ops+=[f"s_mul_i32 s{sT}, s{sTR}, {2*A3_TB}", f"s_add_u32 s{sT}, s{sT}, s{s1K}", f"s_add_u32 s{sT}, s{sT}, {WS_A3}",
          f"v_add_u32 v{vA}, s{sT}, v{vSt}", f"v_add_u32 v{vA+1}, {A3_TB}, v{vA}"]
    if not O.fr:
        ops+=[f"v_bfe_u32 v{t0}, v{vL}, 1, 1", f"v_and_b32 v{t1}, 1, v{vL}", f"v_lshl_or_b32 v{t0}, v{t1}, 1, v{t0}", f"v_and_b32 v{t1}, 4, v{vL}",
              f"v_or_b32 v{t0}, v{t0}, v{t1}", f"v_lshrrev_b32 v{t1}, 5, v{vL}", f"v_xor_b32 v{t0}, v{t0}, v{t1}", f"v_lshlrev_b32 v{t0}, 4, v{t0}",
              f"v_and_b32 v{t1}, 7, v{vL}", f"v_lshl_add_u32 v{vW}, v{t1}, 7, v{t0}", f"v_bfe_u32 v{t1}, v{vL}, 3, 2",
              f"v_lshl_add_u32 v{vW}, v{t1}, 12, v{vW}", f"v_add_u32 v{vW}, s{s1K}, v{vW}"]
        ops+=[f"v_xor_b32 v{vW+q}, {32*q}, v{vW}" for q in range(1,4)]
    ops+=[f"s_lshl_b32 s{sT}, s{sRB}, 2", f"s_add_u32 s{sT}, s{sT}, s{sI}", f"s_mul_i32 s{sSt}, s{sT}, {A3_TB}", f"s_lshl_b32 s{sT}, s{sSB}, 11",
          f"s_add_u32 s{sSt}, s{sSt}, s{sT}", f"s_add_u32 s{sSt}, s{sSt}, {WS_A3}", f"s_add_u32 s{sD}, s{sSt}, 4096", f"s_mov_b32 s{sA}, {f2u(-LOG2E):#x}",
          f"v_mov_b32 v1, 1"]+flag_lane_ops(vF,vL,t0,t1,sG_,1)
    spread(ops,first[11]+2,first[13]+12)
    def rd3_ops(p, wb):
        return [(f"ds_read_b64_tr_b16 {vr(wb+4*cb+2*q,2)}, v{vR+2*(row_of(p,q)>>4)+cb} offset:{(row_of(p,q)&15)*4096}", ("r3",p)) for cb in range(2) for q in range(2)]
    def rd3(p,wb):
        for o,t in rd3_ops(p,wb): a(o,t)
    T=XR
    def ffn_epi(n):
        A=ACC+16*n; ops=[]; R=range(8)
        for r in R: ops.append(f"v_mul_f32 v{T+r}, s{sA}, v{A+r}")
        for r in R: ops.append(f"v_exp_f32 v{T+r}, v{T+r}"); ops.append(f"v_mul_f32 v{A+r}, v{A+r}, v{A+8+r}")
        for r in R: ops.append(f"v_fma_f32 v{T+r}, v{T+r}, v{vC}, v{vC}")
        for r in R: ops.append(f"v_rcp_f32 v{T+r}, v{T+r}")
        for r in R: ops.append(f"v_mul_f32 v{A+r}, v{A+r}, v{T+r}")
        for r in range(4): ops.append(f"v_cvt_pk_bf16_f32 v{A+8+r}, v{A+2*r}, v{A+2*r+1}")
        ops.append(f"buffer_store_dwordx4 {vr(A+8,4)}, v{vSt if n<4 else vS2}, {sr(sWS,4)}, s{sSt if n<4 else sD} offen offset:{(n&3)*1024} sc1")
        return ops
    def epi_a(n):
        A=ACC+16*n; ops=[]
        for r in range(8): ops.append(f"v_mul_f32 v{A+8+r}, v{A+r}, v{A+8+r}"); ops.append(f"v_mul_f32 v{A+r}, s{sA}, v{A+r}")
        for r in range(8): ops.append(f"v_exp_f32 v{A+r}, v{A+r}")
        return ops
    def epi_a_pk(n):
        A=ACC+16*n; ops=[]
        for r in range(0,8,2): ops.append(f"v_pk_mul_f32 {vr(A+8+r,2)}, {vr(A+r,2)}, {vr(A+8+r,2)}")
        for r in range(0,8,2): ops.append(f"v_pk_mul_f32 {vr(A+r,2)}, {vr(A+r,2)}, {vr(T+2,2)}")
        for r in range(8): ops.append(f"v_exp_f32 v{A+r}, v{A+r}")
        return ops
    def epi_b1(n):
        A=ACC+16*n
        return [f"v_pk_fma_f32 {vr(A+r,2)}, {vr(A+r,2)}, {vr(T,2)}, {vr(T,2)}" for r in range(0,8,2)]+[f"v_rcp_f32 v{A+r}, v{A+r}" for r in range(8)]
    def epi_b2(n):
        A=ACC+16*n
        ops=[f"v_pk_mul_f32 {vr(A+r,2)}, {vr(A+r,2)}, {vr(A+8+r,2)}" for r in range(0,8,2)]
        ops+=[f"v_cvt_pk_bf16_f32 v{A+8+r}, v{A+2*r}, v{A+2*r+1}" for r in range(4)]
        ops.append(ffn_epi(n)[-1])
        return ops
    for u in range(5): spread(ffn_epi(u) if (not O.tm or u<O.nfull) else epi_a(u), MT+8*(u+1)+(1 if (not O.tm or u<O.nfull) else 2), MT+8*(u+2)+(1 if u<4 else 0))
    a(f"v_cndmask_b32 v{vC}, v{GA}, v{GA+1}, s[64:65]")
    for m in range(M8,N):
        if m>=MT+8 and (m-MT)%8==0: stamp(a,1+(m-MT)//8,4)
        mfma(m,0)
        if m==MT-AH-3: a(f"ds_read_b32 v2, v{vSy} offset:{L_C14-L_SY}", "c14")
        pump(m)
        if O.pst>=120 and m==O.pst-2: a("v_mov_b64 v[132:133], -1"); a("v_mov_b64 v[134:135], -1")
        if O.pst>=120 and m in (O.pst,O.pst+4): a(f"buffer_store_dwordx4 v[132:135], v{vSt}, {sr(sWS,4)}, s{82+(m!=O.pst)} offen sc1")
        if not O.park and m==first[9]+O.qsig: signal(a,0,vPk)
        if MT<=m<MT+NT0: rd3(m-MT, WR+8*(m-MT))
        if m==MT+NT0: lds_inc(a,vSy,1,L_C13-L_SY)
        if m==N-AH: lds_inc(a,vSy,1,L_CNT-L_SY)
        emit(a,fill.get(m,[]),"hst")
    stamp(a,6); stamp(a,7,4)
    if not O.tm: emit(a,ffn_epi(5),"hst")
    else:
        emit(a,[f"v_mov_b32 v{T}, v{vC}", f"v_mov_b32 v{T+1}, v{vC}", f"v_mov_b32 v{T+2}, s{sA}", f"v_mov_b32 v{T+3}, s{sA}"])
        us=list(range(O.nfull,6))
        for i,u in enumerate(us):
            if u==5: emit(a,epi_a_pk(5))
            if u==5 and i: emit(a,epi_b2(us[i-1]),"hst")
            emit(a,epi_b1(u))
            if i and u!=5: emit(a,epi_b2(us[i-1]),"hst")
        emit(a,epi_b2(5),"hst")
    stamp(a,7); stamp(a,8,4)
    glist=list(range(13,19))+[p for p in A2LIST[O.nA2:]]
    glist.sort(key=lambda p: (p>=13,p))
    lds_poll(a,vSy,t1,4,L_CNT-L_SY)
    for p in glist[:O.early]: w3_dma(a,p,vD,("w",p))
    signal(a,1,t0,"hst")
    if O.prio2==1: a("s_setprio 0")
    stamp(a,8)
    def preread():
        a(f"s_lshl_b32 s{sT}, s{sI}, 2"); a(f"v_add_u32 v{t0}, s{sT}, v{vSy}")
        lds_poll(a,t0,t1,1,L_AF-L_SY)
        a.wait(vm=[("w",p) for p in range(NT0,NREG)])
        for p in range(NT0,NREG): rd3(p, WR+8*p)
        a("s_waitcnt lgkmcnt(0)")
    rest=glist[O.early:]+list(range(26,30)); npre=len(rest)-4
    if O.nA2>=4: npre=min(npre,2)
    hp=max(len(rest)-O.hpos,npre)
    for i,p in enumerate(rest):
        if i==npre: preread()
        if i==hp: a(f"buffer_load_dword v{vP}, v{vF}, {sr(sWS,4)}, s{sG_} offen sc1", "hf")
        w3_dma(a,p,vD,("w",p))
        if O.thr3: a(f"s_waitcnt vmcnt({O.thr3})")
    stamp(a,9)
    poll(a,vP,vF,sWS,f"s{sG_}",first_tag="hf" if hp<len(rest) else None)
    stamp(a,10)
    def aload_ops(n):
        af=AF+8*(n%NR); ops=[(o,None) for o in rot_off(n)]
        ops.append((f"s_lshr_b32 s{sT2}, s{sT2}, 4",None))
        if n>=22: ops.append((f"s_add_u32 s{sT2}, s{sT2}, {86*1024}",None))
        for tb in range(2):
            ops.append((f"buffer_load_dwordx4 {vr(af+4*tb,4)}, v{vA+tb}, {sr(sWS,4)}, s{sT2} offen sc1", ("a",n)))
        return ops
    def aload(n):
        for o,t in aload_ops(n): a(o,t)
    def chk_ops(n):
        af=AF+8*(n%NR)
        return [f"v_max3_u32 v{t0}, v{af}, v{af+1}, v{af+2}", f"v_max3_u32 v{t1}, v{af+3}, v{af+4}, v{af+5}",
                f"v_max3_u32 v{t0}, v{t0}, v{af+6}, v{af+7}", f"v_max_u32 v{t0}, v{t0}, v{t1}", f"v_cmp_eq_u32 vcc, -1, v{t0}"]
    def check(n, skip=0):
        emit(a,chk_ops(n)[skip:]); a(f"s_cbranch_vccnz G_RT{n}"); a.label(f"G_OK{n}")
        def retry():
            a.label(f"G_RT{n}"); a.vm=[]; a.lg=[]
            a(f"s_mov_b32 s{sE}, {SPIN_MAX}")
            a.label(f"G_RL{n}")
            a(f"s_sleep {O.rsl}")
            aload(n); a("s_waitcnt vmcnt(0)")
            emit(a,chk_ops(n)); a(f"s_cbranch_vccz G_OK{n}")
            a(f"s_sub_u32 s{sE}, s{sE}, 1"); a(f"s_cmp_lg_u32 s{sE}, 0"); a(f"s_cbranch_scc1 G_RL{n}")
            a(f"s_branch G_OK{n}")
        ool.append(retry)
    def step3(n):
        af=AF+8*(n%NR); wb=WR+8*POS[n] if POS[n]<NREG else WB3+8*(n&1)
        if n%2==0 and n<28: stamp(a,1+n//2,2)
        nxt = n+1<NS3 and POS[n+1]>=NREG
        a.wait(vm=[("a",n)]+([("w",POS[n+1])] if nxt else []), lg=[("r3",POS[n])])
        al = aload_ops(n+NA) if n+NA<NS3 else []
        def mf(i):
            tb,cb=i>>1,i&1; A=ACC3+16*i
            p_,q_=(vr(af+4*tb,4),vr(wb+4*cb,4)) if O.fr else (vr(wb+4*cb,4),vr(af+4*tb,4))
            a(f"{MF} {vr(A,16)}, {p_}, {q_}, {'0' if n==0 else vr(A,16)}")
            if O.fr and n==NS3-1 and i==0: a(f"s_mov_b32 m0, s{s1K}")
        if n==21:
            if nxt: rd3(POS[n+1], WB3+8*((n+1)&1))
            for o,t in al: a(o,t)
            a(f"s_cmp_ge_u32 s{sI}, 2"); a(f"s_cbranch_scc1 G_SK21")
            for i in range(4): mf(i)
            a.label(f"G_SK21")
        else:
            mf(0)
            if nxt: rd3(POS[n+1], WB3+8*((n+1)&1))
            mf(1)
            for o,t in al[:-1]: a(o,t)
            mf(2)
            for o,t in al[-1:]: a(o,t)
            if O.ck and 22<=n+1<NS3:
                a.wait(vm=[("a",n+1)]); emit(a,chk_ops(n+1)[:3]); mf(3); check(n+1,3)
                return
            mf(3)
        if 22<=n+1<NS3:
            a.wait(vm=[("a",n+1)]); check(n+1)
    for n in range(NA): aload(n)
    if O.prio2==2: a("s_setprio 0")
    for n in range(NS3):
        if n==21: stamp(a,11)
        step3(n)
    stamp(a,12)
    for p in range(4):
        for q in range(4):
            if not O.fr: a(f"ds_write_b128 v{vW+q}, {vr(ACC3+16*p+4*q,4)} offset:{p*16384}", "red")
            else:
                for r in range(4): a(f"ds_write_addtid_b32 v{ACC3+16*p+4*q+r} offset:{(4*p+q)*4096+r*256}", "red")
    a("s_branch FINAL")
    for f in ool: f()

def a_wave(a, pre):
    vSt,vL,vVo,vT0,vT1,vM,vM2,vBig,vGt = 0,1,2,3,4,5,6,7,8
    vP=10
    MK=12; Q=20; KF=28; VF=68; SM=148; S0=164; S1=180; CM=196; O_=212; P=228; P2=236
    vX0,vX1,vWq,vWg,vWu,vWg2,vWu2,vD,vBig2,vSy,vOne = 228,229,230,231,232,233,234,244,246,247,248
    PK=SM
    sXo,sQo,sFo,sLx,sLq,sK,sIt,sSl = sA,sB,sC,sD,sE,sF,64,65
    def a_setup():
        pre()
        a(f"v_and_b32 v{vL}, 63, v0")
        a(f"v_lshrrev_b32 v{vT0}, 3, v{vL}"); a(f"v_lshrrev_b32 v{vT1}, 4, v{vL}")
        a(f"v_and_b32 v{vX0}, 7, v{vL}"); a(f"v_xor_b32 v{vX0}, v{vX0}, v{vT1}"); a(f"v_lshlrev_b32 v{vX0}, 4, v{vX0}")
        a(f"v_lshl_add_u32 v{vX0}, v{vT0}, 10, v{vX0}")
        a(f"v_xor_b32 v{vX1}, 64, v{vX0}"); a(f"v_add_u32 v{vX1}, {8192-1024}, v{vX1}")
        a(f"v_lshrrev_b32 v{vT0}, 2, v{vL}"); a(f"v_and_b32 v{vT1}, 3, v{vL}")
        a(f"v_mul_u32_u24 v{vWq}, 3072, v{vT0}"); a(f"v_lshl_add_u32 v{vWq}, v{vT1}, 4, v{vWq}")
        a(f"s_lshl_b32 s{sXo}, s{sRB}, 2"); a(f"s_add_u32 s{sXo}, s{sXo}, s{sI}"); a(f"s_lshl_b32 s{sXo}, s{sXo}, 15")
        a(f"s_lshl_b32 s{sT}, s{sI}, 8"); a(f"s_add_u32 s{sT}, s{sT}, s{sCG}"); a(f"s_mul_i32 s{sQo}, s{sT}, 192")
        a(f"s_lshl_b32 s{sLx}, s{sI}, 12"); a(f"s_mul_i32 s{sLq}, s{sI}, 3072")
        a(f"s_mov_b32 s{sIt}, 0")
        a(f"v_lshlrev_b32 v{vSt}, 4, v{vL}")
        a(f"s_mov_b32 m0, {L_GW}")
        if O.ek: kargs(a); late_srds(a)
        qs(a)
        a("s_waitcnt lgkmcnt(0)")
        qs(a)
        stamp0(a)
        if O.adly: a(f"s_sleep {O.adly}")
        a(f"buffer_load_dwordx4 v{vSt}, {sr(sGW,4)}, 0 offen lds")
    def issue1():
        a(f"s_add_u32 s{sK}, s{sPH}, s{sIt}"); a(f"s_and_b32 s{sK}, s{sK}, 7")
        a(f"s_and_b32 s{sSl}, s{sIt}, 3"); a(f"s_mul_i32 s{sSl}, s{sSl}, {SLOT}")
        a(f"s_add_u32 m0, s{sLx}, s{sSl}")
        a(f"s_lshl_b32 s{sT}, s{sK}, 7"); a(f"s_add_u32 s{sT}, s{sT}, s{sXo}")
        a(f"buffer_load_dwordx4 v{vX0}, {sr(sX,4)}, s{sT} offen lds")
        qs(a)
        a(f"buffer_load_dwordx4 v{vX1}, {sr(sX,4)}, s{sT} offen offset:1024 lds")
        a(f"s_add_u32 s{sT}, s{sT}, {16384-2048}")
        a(f"buffer_load_dwordx4 v{vX0}, {sr(sX,4)}, s{sT} offen offset:2048 lds")
        a(f"buffer_load_dwordx4 v{vX1}, {sr(sX,4)}, s{sT} offen offset:3072 lds")
        qs(a)
        a(f"s_add_u32 s{sT}, s{sSl}, s{sLq}")
        a(f"s_mul_i32 s{sT2}, s{sK}, {64*3072}")
        for t in range(3):
            a(f"s_add_u32 m0, s{sT}, {16384+t*1024-t*64}")
            if t==0: a(f"s_add_u32 s{sT2}, s{sT2}, s{sQo}")
            a(f"buffer_load_dwordx4 v{vWq}, {sr(sWQ,4)}, s{sT2} offen offset:{t*64} lds")
        qs(a)
    lgE=list(a.lg)
    if O.lay: a("s_branch A_SETUP"); a.lg=[]
    else: a_setup()
    a.label("A_L1")
    issue1()
    a(f"s_add_u32 s{sIt}, s{sIt}, 1"); a(f"s_cmp_eq_u32 s{sIt}, 1")
    if O.probe==5:
        a("s_cbranch_scc0 A_Q"); qflush(a); a("s_branch A_L1"); a.label("A_Q"); a("s_waitcnt lgkmcnt(0)")
    else: a("s_cbranch_scc1 A_L1")
    a("s_waitcnt vmcnt(7)"); a("s_barrier")
    a(f"s_cmp_lt_u32 s{sIt}, 8"); a("s_cbranch_scc1 A_L1")
    a("s_branch A_P2")
    if O.lay:
        a.label("A_SETUP"); a.lg=lgE; a.vm=[]
        a_setup(); a("s_branch A_L1")
    yield
    a.label("A_P2")
    a.lg=[]; a.vm=[(("d",7),set())]*7
    if not O.ek: kargs(a); late_srds(a)
    late_scalars(a)
    a(f"v_mul_u32_u24 v{vWg}, 2752, v{vT0}"); a(f"v_xor_b32 v{vWu}, 2, v{vT1}")
    a(f"v_lshl_add_u32 v{vWu}, v{vWu}, 4, v{vWg}"); a(f"v_lshl_add_u32 v{vWg}, v{vT1}, 4, v{vWg}")
    a(f"v_add_u32 v{vWg2}, s{sLT}, v{vWg}"); a(f"v_add_u32 v{vWu2}, s{sLT}, v{vWu}")
    a(f"s_mul_i32 s{sFo}, s{sI}, {16*2752}"); a(f"s_lshl_b32 s{sT}, s{sSB}, 6"); a(f"s_add_u32 s{sFo}, s{sFo}, s{sT}")
    a("s_waitcnt lgkmcnt(0)")
    a(f"s_lshl_b32 s{sLq}, s{sLq}, 1")
    def dmas(st):
        q=st&3; tg=("d",st)
        a(f"s_add_u32 s{sK}, s{sPH}, {st&7}"); a(f"s_and_b32 s{sK}, s{sK}, 7")
        a(f"s_mul_i32 s{sT2}, s{sK}, {64*2752}"); a(f"s_add_u32 s{sT2}, s{sT2}, s{sFo}")
        for m in range(2):
            for t in range(3):
                v=(vWu2 if m else vWg2) if t==2 else (vWu if m else vWg)
                a(f"s_add_u32 m0, s{sLq}, {q*SLOT+(m*3+t)*1024-t*64}")
                a(f"buffer_load_dwordx4 v{v}, {sr(sWU if m else sWG,4)}, s{sT2} offen offset:{t*64} lds", tg)
    sQB,sKo,sVo,sN = sG_,sA,sB,sD
    korder=[8,0,7,6,5,4,3,2,1,9]
    def setup_attn(part):
        if part==0:
            emit(a,w3_lane_ops(vD,vL,vM,vM2))
            a(f"s_and_b32 s{sT}, s{sI}, 1"); a(f"s_lshl_b32 s{sHead}, s{sCG}, 1"); a(f"s_add_u32 s{sHead}, s{sHead}, s{sT}")
            a(f"s_and_b32 s{sT2}, s{sI}, 2"); a(f"s_lshl_b32 s{sQB}, s{sRB}, 2"); a(f"s_add_u32 s{sQB}, s{sQB}, s{sT2}")
            a(f"v_mov_b32 v{vSy}, {L_SY}"); a(f"v_mov_b32 v{vOne}, 1")
        if part==1:
            a(f"v_mov_b32 v{vGt}, 0x3f803f80"); a(f"v_mov_b32 v{vGt+1}, 0x3f803f80")
            for r in range(0,80,2):
                if r&4: a(f"v_mov_b64 {vr(VF+r,2)}, {vr(vGt,2)}")
        if part==2:
            a(f"v_and_b32 v{vT0}, 31, v{vL}")
            a(f"v_lshrrev_b32 v{vT1}, 5, v{vL}"); a(f"v_lshlrev_b32 v{vT1}, 2, v{vT1}"); a(f"v_sub_u32 v{vT0}, v{vT0}, v{vT1}")
            for r in range(16): a(f"v_cmp_le_i32 {sr(sM+2*r,2)}, {(r&3)+8*(r>>2)}, v{vT0}")
            a(f"v_mov_b32 v{vBig}, 0xffff"); a(f"v_mov_b32 v{vM}, 0xffff0000")
            for i in range(8):
                a(f"v_cndmask_b32 v{MK+i}, 0, v{vBig}, {sr(sM+4*i,2)}")
                a(f"v_cndmask_b32 v{vT1}, 0, v{vM}, {sr(sM+4*i+2,2)}")
                a(f"v_or_b32 v{MK+i}, v{MK+i}, v{vT1}")
            a(f"v_mov_b32 v{vBig}, {f2u(-1e30):#x}"); a(f"v_mov_b32 v{vBig2}, {f2u(2.0**60):#x}")
            a(f"v_and_b32 v{vVo}, 47, v{vL}"); a(f"v_lshlrev_b32 v{vVo}, 4, v{vVo}")
            a(f"v_and_b32 v{vT1}, 16, v{vL}"); a(f"v_lshl_add_u32 v{vVo}, v{vT1}, 6, v{vVo}")
        if part==3:
            a(f"v_and_b32 v{vT0}, 15, v{vL}"); a(f"v_min_u32 v{vT0}, 9, v{vT0}")
            a(f"v_and_b32 v{vT1}, 1, v{vL}"); a(f"v_or_b32 v{vT1}, 8, v{vT1}")
            a(f"v_cmp_le_u32 vcc, 32, v{vL}"); a(f"v_cndmask_b32 v{vT0}, v{vT0}, v{vT1}, vcc")
            a(f"s_sub_u32 s{sT}, s{sQB}, 8"); a(f"v_add_u32 v{vT0}, s{sT}, v{vT0}"); a(f"v_max_i32 v{vT0}, 0, v{vT0}")
            a(f"v_add_u32 v{vT1}, 16, v{vL}"); a(f"v_and_b32 v{vT1}, 48, v{vT1}"); a(f"v_cndmask_b32 v{vT1}, v{vT1}, 0, vcc")
            a(f"v_add_u32 v{vT1}, s{sCG}, v{vT1}"); a(f"v_mul_u32_u24 v{vT1}, 43, v{vT1}"); a(f"v_lshrrev_b32 v{vT1}, 7, v{vT1}")
            a(f"v_lshrrev_b32 v{vM}, 2, v{vT0}"); a(f"v_lshl_add_u32 v{vT1}, v{vM}, 4, v{vT1}"); a(f"v_lshlrev_b32 v{vT1}, 7, v{vT1}")
            a(f"v_and_b32 v{vT0}, 3, v{vT0}"); a(f"v_lshl_add_u32 v{vM2}, v{vT0}, 2, v{vT1}")
            a(f"s_lshl_b32 s{sKo}, s{sHead}, 16")
            a(f"s_and_b32 s{sT}, s{sI}, 1"); a(f"s_lshl_b32 s{sT}, s{sT}, 8")
            a(f"s_lshl_b32 s{sVo}, s{sCG}, 17"); a(f"s_add_u32 s{sVo}, s{sVo}, s{sT}"); a(f"s_add_u32 s{sVo}, s{sVo}, {WS_V}")
            a(f"s_mov_b32 s{sN}, {WS_F}")
        if part==4:
            a(f"v_and_b32 v{vT1}, 31, v{vL}"); a(f"s_and_b32 s{sT}, s{sI}, 2"); a(f"s_lshl_b32 s{sT}, s{sT}, 7"); a(f"s_add_u32 s{sT}, s{sT}, {L_G}")
            a(f"v_lshl_add_u32 v{vT1}, v{vT1}, 2, s{sT}")
            for u in range(2): a(f"ds_read_b32 v{vGt+u}, v{vT1} offset:{u*128}")
            a("s_waitcnt lgkmcnt(0)")
    def unpark():
        a(f"s_add_u32 s{sT}, s{s1K}, {PARK}"); a(f"v_add_u32 v{vT0}, s{sT}, v{vSt}")
        for i in range(6): a(f"ds_read_b128 {vr(PK+4*i,4)}, v{vT0} offset:{i*4096}")
    def qstore(i):
        emit(a,qaddr_ops(i))
        a(f"buffer_store_dwordx4 {vr(PK+4*i,4)}, v{vSt}, {sr(sWS,4)}, s{sT} offen sc1", "qst")
    def vswap(ns):
        for n in ns:
            a.wait(vm=[("v",n)])
            for r in range(4): a(f"v_permlane16_swap_b32 v{VF+8*n+r}, v{VF+8*n+4+r}")
    def a2flag():
        a(f"s_lshl_b32 s{sT3}, s{sI}, 2"); a(f"v_add_u32 v{vT0}, s{sT3}, v{vSy}")
        a("s_waitcnt vmcnt(0)"); a(f"ds_write_b32 v{vT0}, v{vOne} offset:{L_AF-L_SY}")
    def attn_slow():
        for u in range(2):
            Qr=vr(Q+4*u,4); nd=8+u; no=u
            K_=lambda n: vr(KF+4*n,4)
            a(f"s_add_u32 s{sN}, s{sQB}, {u}")
            if u==0: stamp(a,7)
            a(f"{MF} {vr(S0,16)}, {K_(nd)}, {Qr}, 0")
            a(f"{MF} {vr(S1,16)}, {K_(no)}, {Qr}, 0")
            bufs=[CM,O_,S0,S1]
            def smf(d, c="0", buf=None): a(f"{MF} {vr(buf,16)}, {K_(nd-d)}, {Qr}, {c}")
            smf(1,buf=bufs[0]); smf(2,buf=bufs[1])
            a(f"s_cmp_ge_u32 s{sN}, 8"); a(f"s_cbranch_scc1 AT_OLD{u}")
            for r in range(16): a(f"v_mov_b32 v{S1+r}, v{vBig}")
            a.label(f"AT_OLD{u}")
            for r in range(16): a(f"v_cndmask_b32 v{SM+r}, v{S1+r}, v{S0+r}, {sr(sM+2*r,2)}")
            a(f"v_max3_f32 v{vM}, v{SM}, v{SM+1}, v{SM+2}")
            a(f"v_max3_f32 v{vM2}, v{SM+3}, v{SM+4}, v{SM+5}")
            for r in range(6,16,4):
                a(f"v_max3_f32 v{vM}, v{vM}, v{SM+r}, v{SM+r+1}")
                if r+2<16: a(f"v_max3_f32 v{vM2}, v{vM2}, v{SM+r+2}, v{SM+r+3}")
            for d in range(1,8):
                a(f"s_cmp_lt_u32 s{sN}, {d}"); a(f"s_cbranch_scc1 AT_MX{u}")
                if d+2<8: smf(d+2,buf=bufs[(d+1)%4])
                b=bufs[(d-1)%4]
                for r in range(0,16,4):
                    a(f"v_max3_f32 v{vM}, v{vM}, v{b+r}, v{b+r+1}")
                    a(f"v_max3_f32 v{vM2}, v{vM2}, v{b+r+2}, v{b+r+3}")
            a.label(f"AT_MX{u}")
            a(f"v_max_f32 v{vM}, v{vM}, v{vM2}")
            a(f"v_mov_b32 v{vM2}, v{vM}")
            if u==0: a2flag()
            a(f"v_permlane32_swap_b32 v{vM}, v{vM2}")
            a(f"v_max_f32 v{vM}, v{vM}, v{vM2}")
            a(f"v_sub_f32 v{CM}, 0, v{vM}")
            a(f"v_mov_b32 v{CM+1}, v{CM}")
            for r in range(2,16,2): a(f"v_mov_b64 {vr(CM+r,2)}, {vr(CM,2)}")
            sb=[S0,S1]
            a(f"v_sub_f32 v{SM}, v{SM}, v{vM}"); a(f"v_sub_f32 v{SM+1}, v{SM+1}, v{vM}")
            smf(1,vr(CM,16),sb[1])
            for r in range(2,16): a(f"v_sub_f32 v{SM+r}, v{SM+r}, v{vM}")
            for r in range(16): a(f"v_exp_f32 v{SM+r}, v{SM+r}")
            for r in range(8): a(f"v_cvt_pk_bf16_f32 v{P2+r}, v{SM+2*r}, v{SM+2*r+1}")
            for r in range(8): a(f"v_and_b32 v{P+r}, v{P2+r}, v{MK+r}")
            a(f"{MF} {vr(O_,16)}, {vr(VF+8*nd,4)}, {vr(P,4)}, 0")
            for r in range(4): a(f"v_xor_b32 v{P2+r}, v{P2+r}, v{P+r}")
            a(f"{MF} {vr(O_,16)}, {vr(VF+8*nd+4,4)}, {vr(P+4,4)}, {vr(O_,16)}")
            for r in range(4,8): a(f"v_xor_b32 v{P2+r}, v{P2+r}, v{P+r}")
            a(f"{MF} {vr(O_,16)}, {vr(VF+8*no,4)}, {vr(P2,4)}, {vr(O_,16)}"); a(f"{MF} {vr(O_,16)}, {vr(VF+8*no+4,4)}, {vr(P2+4,4)}, {vr(O_,16)}")
            for d in range(1,8):
                a(f"s_cmp_lt_u32 s{sN}, {d}"); a(f"s_cbranch_scc1 AT_FIN{u}")
                b=sb[d&1]; pb=P if d&1 else P2; n=nd-d
                for r in range(4): a(f"v_exp_f32 v{b+r}, v{b+r}")
                if d+1<8: smf(d+1,vr(CM,16),sb[(d+1)&1])
                for r in range(4,9): a(f"v_exp_f32 v{b+r}, v{b+r}")
                for r in range(4): a(f"v_cvt_pk_bf16_f32 v{pb+r}, v{b+2*r}, v{b+2*r+1}")
                for r in range(9,11): a(f"v_exp_f32 v{b+r}, v{b+r}")
                a(f"{MF} {vr(O_,16)}, {vr(VF+8*n,4)}, {vr(pb,4)}, {vr(O_,16)}")
                for r in range(11,16): a(f"v_exp_f32 v{b+r}, v{b+r}")
                for r in range(4,8): a(f"v_cvt_pk_bf16_f32 v{pb+r}, v{b+2*r}, v{b+2*r+1}")
                a(f"{MF} {vr(O_,16)}, {vr(VF+8*n+4,4)}, {vr(pb+4,4)}, {vr(O_,16)}")
            a.label(f"AT_FIN{u}")
            a(f"s_mul_i32 s{sT}, s{sN}, {A3_TB}"); a(f"s_lshl_b32 s{sT2}, s{sHead}, 10"); a(f"s_add_u32 s{sT}, s{sT}, s{sT2}")
            a(f"s_add_u32 s{sT}, s{sT}, {WS_A3+86*1024}")
            a(f"v_rcp_f32 v{vT0}, v{O_+8}")
            a(f"v_mul_f32 v{vT0}, v{vT0}, v{vGt+u}")
            for r in range(8): a(f"v_mul_f32 v{O_+r}, v{O_+r}, v{vT0}")
            for r in range(4): a(f"v_cvt_pk_bf16_f32 v{SM+r}, v{O_+2*r}, v{O_+2*r+1}")
            for r in range(4): a(f"v_min_u32 v{SM+r}, -2, v{SM+r}")
            a(f"buffer_store_dwordx4 {vr(SM,4)}, v{vSt}, {sr(sWS,4)}, s{sT} offen sc1", "ost")
            stamp(a,8+u)
    def attn_fast():
        K_=lambda n: vr(KF+4*n,4)
        sb=[S0,S1]; sOv=0
        def smf(u,d): a(f"{MF} {vr(sb[d&1],16)}, {K_(8+u-d)}, {vr(Q+4*u,4)}, {vr(CM,16)}")
        def head(u):
            for r in range(16): a(f"v_cndmask_b32 v{SM+r}, v{SM+r}, v{S0+r}, {sr(sM+2*r,2)}")
            a(f"v_max3_f32 v{vM}, v{SM}, v{SM+1}, v{SM+2}")
            a(f"v_max3_f32 v{vM2}, v{SM+3}, v{SM+4}, v{SM+5}")
            a(f"v_max3_f32 v{vM}, v{vM}, v{SM+6}, v{SM+7}"); a(f"v_max3_f32 v{vM2}, v{vM2}, v{SM+8}, v{SM+9}")
            a(f"v_max3_f32 v{vM}, v{vM}, v{SM+10}, v{SM+11}"); a(f"v_max3_f32 v{vM2}, v{vM2}, v{SM+12}, v{SM+13}")
            a(f"v_max3_f32 v{vM}, v{vM}, v{SM+14}, v{SM+15}")
            a(f"v_max_f32 v{vM}, v{vM}, v{vM2}")
            a(f"v_mov_b32 v{vM2}, v{vM}")
            a(f"s_mul_i32 s{sT}, s{sQB}, {A3_TB}"); a(f"s_lshl_b32 s{sT2}, s{sHead}, 10")
            a(f"v_permlane32_swap_b32 v{vM}, v{vM2}")
            a(f"v_max_f32 v{vM}, v{vM}, v{vM2}")
            a(f"v_sub_f32 v{CM}, 0, v{vM}")
            a(f"v_sub_f32 v{CM+1}, 0, v{vM}")
            for r in range(2,16,2): a(f"v_mov_b64 {vr(CM+r,2)}, {vr(CM,2)}")
            a(f"v_sub_f32 v{SM}, v{SM}, v{vM}"); a(f"v_sub_f32 v{SM+1}, v{SM+1}, v{vM}")
            smf(u,1)
        def fin(u):
            a(f"s_add_u32 s{sT}, s{sT}, s{sT2}"); a(f"s_add_u32 s{sT}, s{sT}, {WS_A3+86*1024+u*A3_TB}")
            a(f"v_rcp_f32 v{vT0}, v{O_+8}")
            a(f"v_cmp_ngt_f32 vcc, v{vBig2}, v{O_+8}")
            a(f"v_mul_f32 v{vT0}, v{vT0}, v{vGt+u}")
            a("s_branch AT_SLOW" if O.forceslow==u+1 else "s_cbranch_vccnz AT_SLOW")
            for r in range(8): a(f"v_mul_f32 v{O_+r}, v{O_+r}, v{vT0}")
            for r in range(4): a(f"v_cvt_pk_bf16_f32 v{P+r}, v{O_+2*r}, v{O_+2*r+1}")
            for r in range(4): a(f"v_min_u32 v{P+r}, -2, v{P+r}")
            a(f"buffer_store_dwordx4 {vr(P,4)}, v{vSt}, {sr(sWS,4)}, s{sT} offen sc1", "ost")
            stamp(a,8+u)
        def body(u):
            nd=8+u; no=u
            for r in range(2,16): a(f"v_sub_f32 v{SM+r}, v{SM+r}, v{vM}")
            for r in range(16): a(f"v_exp_f32 v{SM+r}, v{SM+r}")
            if u==0: a2flag()
            for r in range(8): a(f"v_cvt_pk_bf16_f32 v{P2+r}, v{SM+2*r}, v{SM+2*r+1}")
            for r in range(6): a(f"v_and_b32 v{P+r}, v{P2+r}, v{MK+r}")
            a(f"{MF} {vr(O_,16)}, {vr(VF+8*nd,4)}, {vr(P,4)}, 0")
            for r in range(6,8): a(f"v_and_b32 v{P+r}, v{P2+r}, v{MK+r}")
            for r in range(4): a(f"v_xor_b32 v{P2+r}, v{P2+r}, v{P+r}")
            a(f"{MF} {vr(O_,16)}, {vr(VF+8*nd+4,4)}, {vr(P+4,4)}, {vr(O_,16)}")
            for r in range(4,8): a(f"v_xor_b32 v{P2+r}, v{P2+r}, v{P+r}")
            pend=[f"{MF} {vr(O_,16)}, {vr(VF+8*no,4)}, {vr(P2,4)}, {vr(O_,16)}", f"{MF} {vr(O_,16)}, {vr(VF+8*no+4,4)}, {vr(P2+4,4)}, {vr(O_,16)}"]
            for d in range(1,8):
                b=sb[d&1]; pb=P if d&1 else P2; n=nd-d
                a(f"v_exp_f32 v{b}, v{b}")
                if len(pend)>1: a(pend.pop(0))
                for r in range(1,4): a(f"v_exp_f32 v{b+r}, v{b+r}")
                a(pend.pop(0))
                for r in range(4,8): a(f"v_exp_f32 v{b+r}, v{b+r}")
                if d<7: smf(u,d+1)
                elif u==0: a(f"{MF} {vr(S0,16)}, {K_(9)}, {vr(Q+4,4)}, 0")
                a(f"v_exp_f32 v{b+8}, v{b+8}")
                for r in range(4): a(f"v_cvt_pk_bf16_f32 v{pb+r}, v{b+2*r}, v{b+2*r+1}")
                for r in range(9,11): a(f"v_exp_f32 v{b+r}, v{b+r}")
                a(f"{MF} {vr(O_,16)}, {vr(VF+8*n,4)}, {vr(pb,4)}, {vr(O_,16)}")
                for r in range(11,14): a(f"v_exp_f32 v{b+r}, v{b+r}")
                if d==7 and u==0: a(f"{MF} {vr(SM,16)}, {K_(1)}, {vr(Q+4,4)}, 0")
                for r in range(14,16): a(f"v_exp_f32 v{b+r}, v{b+r}")
                for r in range(4,8): a(f"v_cvt_pk_bf16_f32 v{pb+r}, v{b+2*r}, v{b+2*r+1}")
                pend=[f"{MF} {vr(O_,16)}, {vr(VF+8*n+4,4)}, {vr(pb+4,4)}, {vr(O_,16)}"]
            a(pend.pop(0))
        stamp(a,7)
        a(f"{MF} {vr(S0,16)}, {K_(8)}, {vr(Q,4)}, 0")
        a(f"{MF} {vr(SM,16)}, {K_(0)}, {vr(Q,4)}, 0")
        head(0); body(0); head(1); fin(0)
        a(f"s_mul_i32 s{sT}, s{sQB}, {A3_TB}")
        body(1); fin(1)
    stages={k:([k+2] if k<O.dbl else [k+2,k+3] if k==O.dbl else [k+3]) for k in range(6,13)}
    t0sched=[{7:[0],10:[1],11:[2,3],12:[4,5,6]},{7:[0],8:[1],10:[2],11:[3,4],12:[5,6]},{10:[0,1],11:[2,3],12:[4,5,6]},{11:[0,1,2],12:[3,4,5,6]},{12:[0,1,2,3,4,5,6]},{7:[0],8:[1],10:[2,3],12:[4,5,6]}][O.t0s]
    a(f"v_and_b32 v{vBig}, 15, v{vL}"); a(f"v_lshlrev_b32 v{vBig}, 2, v{vBig}")
    for k in range(6,13):
        if k==6: a(f"buffer_load_dword v{vP}, v{vBig}, {sr(sDBG,4)}, 0 offen sc1", "init")
        if k==9 and O.park: unpark()
        if k==10 and O.park:
            for i in range(O.qs,6): qstore(i)
        for st in stages[k]: dmas(st)
        if k==6: setup_attn(0)
        if k==9 and O.park:
            a("s_waitcnt lgkmcnt(0)")
            for i in range(O.qs): qstore(i)
        if k==O.pa:
            a(f"v_mov_b64 {vr(S1,2)}, -1"); a(f"v_mov_b64 {vr(S1+2,2)}, -1")
            a(f"s_mul_i32 s{sT}, s{sQB}, {A3_TB}"); a(f"s_lshl_b32 s{sT2}, s{sHead}, 10"); a(f"s_add_u32 s{sT}, s{sT}, s{sT2}"); a(f"s_add_u32 s{sT}, s{sT}, {WS_A3+86*1024}")
            a(f"buffer_store_dwordx4 {vr(S1,4)}, v{vSt}, {sr(sWS,4)}, s{sT} offen sc1"); a(f"s_add_u32 s{sT}, s{sT}, {A3_TB}")
            a(f"buffer_store_dwordx4 {vr(S1,4)}, v{vSt}, {sr(sWS,4)}, s{sT} offen sc1")
        for p in t0sched.get(k,[]): w3_dma(a,p,vD,("t0",p))
        if O.p0<=k<O.p0+4: stamp(a,3+3*(k-O.p0),1)
        if k in (8,9,10,11): setup_attn(k-7)
        if k==O.sigk and O.park: signal(a,0,vT0,"qst")
        a.wait(vm=[("d",k+1)])
        if k==7: poll(a,vP,vBig,sDBG,"0",first_tag="init")
        if O.p0<=k+1<O.p0+4: stamp(a,1+3*(k+1-O.p0),1)
        a("s_barrier")
        if O.p0<=k+1<O.p0+4: stamp(a,2+3*(k+1-O.p0),1)
        if k+1 in (8,13): stamp(a,{8:3,13:4}[k+1])
    a(f"buffer_load_dword v{vP}, v{vM2}, {sr(sWS,4)}, s{sN} offen sc1", "qf")
    a("s_waitcnt vmcnt(1)")
    lds_inc(a,vSy,vOne,L_C14-L_SY)
    poll(a,vP,vM2,sWS,f"s{sN}",first_tag="qf")
    stamp(a,5)
    a(f"s_lshl_b32 s{sT}, s{sQB}, 10"); a(f"s_add_u32 s{sT}, s{sT}, s{sKo}")
    for u in range(2): a(f"buffer_load_dwordx4 {vr(Q+4*u,4)}, v{vSt}, {sr(sWS,4)}, s{sT} offen offset:{u*1024} sc1", ("q",u))
    a(f"s_add_u32 s{sKo}, s{sKo}, {WS_K}")
    for n in korder:
        a(f"s_add_i32 s{sT}, s{sQB}, {n-8}"); a(f"s_max_i32 s{sT}, s{sT}, 0"); a(f"s_lshl_b32 s{sT}, s{sT}, 11"); a(f"s_add_u32 s{sT}, s{sT}, s{sVo}")
        a(f"buffer_load_dwordx4 {vr(VF+8*n,4)}, v{vVo}, {sr(sWS,4)}, s{sT} offen sc1", ("v",n))
        if O.thr: a(f"s_waitcnt vmcnt({O.thr})")
    for n in korder:
        a(f"s_add_i32 s{sT}, s{sQB}, {n-8}"); a(f"s_max_i32 s{sT}, s{sT}, 0"); a(f"s_lshl_b32 s{sT}, s{sT}, 10"); a(f"s_add_u32 s{sT}, s{sT}, s{sKo}")
        a(f"buffer_load_dwordx4 {vr(KF+4*n,4)}, v{vSt}, {sr(sWS,4)}, s{sT} offen sc1", ("k",n))
        if O.thr: a(f"s_waitcnt vmcnt({O.thr})")
    stamp(a,6)
    lds_poll(a,vSy,vT1,4,L_C13-L_SY)
    if O.ap: a("s_setprio 3")
    prep=[]
    def qscale(h):
        a.wait(vm=[("q",1)])
        for r in range(4*h,4*h+4):
            a(f"v_lshlrev_b32 v{S0+2*r}, 16, v{Q+r}"); a(f"v_and_b32 v{S0+2*r+1}, 0xffff0000, v{Q+r}")
        for r in range(8*h,8*h+8): a(f"v_mul_f32 v{S0+r}, {f2u(0.25*LOG2E):#x}, v{S0+r}")
        for r in range(4*h,4*h+4): a(f"v_cvt_pk_bf16_f32 v{Q+r}, v{S0+2*r}, v{S0+2*r+1}")
    prep=[lambda:qscale(0),lambda:qscale(1)]+[(lambda i=i: vswap(korder[2*i:2*i+2])) for i in range(5)]
    for i,p in enumerate(A2LIST[:O.nA2]):
        if O.thrA: a(f"s_waitcnt vmcnt({O.thrA})")
        w3_dma(a,p,vD,("a2",p))
        if prep and not O.ap: prep.pop(0)()
    if O.afl: a2flag()
    if O.ap: a("s_setprio 0")
    stamp(a,10)
    for f in prep: f()
    a.wait(vm=[("k",n) for n in range(10)])
    if O.prio2: a("s_setprio 1")
    a(f"s_cmp_lt_u32 s{sQB}, 8"); a("s_cbranch_scc1 AT_SLOW")
    vm0=list(a.vm)
    attn_fast()
    a.label("AT_DONE")
    yield
    a.label("AT_SLOW"); a.vm=list(vm0); a.lg=[]
    attn_slow(); a("s_branch AT_DONE")
    yield

def ids(a):
    a(f"s_bfe_u32 s{sRB}, s2, 0x10002"); a(f"s_lshl_b32 s{sRB}, s{sRB}, 3")
    a(f"s_bfe_u32 s{sT}, s2, 0x30003"); a(f"s_add_u32 s{sRB}, s{sRB}, s{sT}")
    a(f"s_and_b32 s{sCG}, s2, 3"); a(f"s_lshl_b32 s{sCG}, s{sCG}, 2")
    a(f"s_lshr_b32 s{sT}, s2, 6"); a(f"s_add_u32 s{sCG}, s{sCG}, s{sT}")
    if O.rot==1:
        a(f"s_lshl_b32 s{sPH}, s{sT}, 1"); a(f"s_add_u32 s{sPH}, s{sPH}, s{sRB}"); a(f"s_and_b32 s{sT}, s2, 1"); a(f"s_add_u32 s{sPH}, s{sPH}, s{sT}")
    elif O.rot==2:
        a(f"s_add_u32 s{sPH}, s{sT}, s{sRB}"); a(f"s_lshl_b32 s{sPH}, s{sPH}, 2")
    elif O.rot==6:
        a(f"s_add_u32 s{sPH}, s{sT}, s{sRB}"); a(f"s_lshl_b32 s{sPH}, s{sPH}, 1"); a(f"s_and_b32 s{sT}, s2, 1"); a(f"s_add_u32 s{sPH}, s{sPH}, s{sT}")
    elif O.rot==7:
        a(f"s_add_u32 s{sPH}, s{sT}, s{sRB}"); a(f"s_lshl_b32 s{sPH}, s{sPH}, 2"); a(f"s_and_b32 s{sT}, s2, 3"); a(f"s_add_u32 s{sPH}, s{sPH}, s{sT}")
        a(f"s_bfe_u32 s{sT}, s2, 0x10002"); a(f"s_lshl_b32 s{sT}, s{sT}, 1"); a(f"s_add_u32 s{sPH}, s{sPH}, s{sT}")
    elif O.rot==4:
        a(f"s_and_b32 s{sPH}, s2, 7")
    elif O.rot==5:
        a(f"s_add_u32 s{sPH}, s{sT}, s{sRB}"); a(f"s_lshl_b32 s{sPH}, s{sPH}, 2"); a(f"s_and_b32 s{sT}, s2, 3"); a(f"s_add_u32 s{sPH}, s{sPH}, s{sT}")
    else: a(f"s_mov_b32 s{sPH}, 0")
    a(f"s_and_b32 s{sI}, s{sW}, 3")

def kernel():
    a=Asm()
    a("s_getpc_b64 s[66:67]")
    a("v_lshrrev_b32 v1, 6, v0")
    a(f"s_load_dwordx2 {sr(sX,2)}, s[0:1], 0"); a(f"s_load_dwordx2 {sr(sWQ,2)}, s[0:1], 8"); a(f"s_load_dwordx2 {sr(sGW,2)}, s[0:1], 56")
    a(f"v_readfirstlane_b32 s{sW}, v1")
    a("s_lshr_b32 s3, s2, 8"); a("s_cbranch_scc1 END")
    if O.stamp:
        a(f"v_mov_b32 v{vSTAMP}, 0"); a(f"{O.stamp} s[96:97]")
    a(f"s_cmp_lt_u32 s{sW}, 4"); a("s_cbranch_scc1 G_STUB")
    lg=list(a.lg)
    def pre():
        a(f"s_mov_b32 s{sX+3}, 0x20000"); a(f"s_mov_b32 s{sWQ+3}, s{sX+3}"); a(f"s_mov_b32 s{sGW+3}, s{sX+3}")
        a(f"s_lshl_b32 s{sX+2}, s{sX+3}, 4"); a(f"s_mul_i32 s{sWQ+2}, s{sX+3}, 12"); a(f"s_movk_i32 s{sGW+2}, 1024")
        qs(a)
        ids(a)
    A=a_wave(a,pre)
    next(A)
    a.label("G_STUB"); a.vm=[]; a.lg=list(lg)
    if O.codepf:
        a(f"s_lshr_b32 s{sT}, s2, 3"); a(f"s_lshl_b32 s{sT}, s{sT}, 7"); a(f"s_lshl_b32 s{sT2}, s{sW}, 14"); a(f"s_add_u32 s{sT}, s{sT}, s{sT2}")
        a(f"v_and_b32 v12, 3, v0"); a(f"v_lshl_add_u32 v12, v12, 12, s{sT}")
        a("s_mov_b64 exec, 15")
        a(f"global_load_dword v97, v12, s[66:67]", "cpf")
        a("s_mov_b64 exec, -1")
    a(f"s_and_b32 s{sCG}, s2, 3"); a(f"s_lshl_b32 s{sCG}, s{sCG}, 2")
    a(f"s_lshr_b32 s{sT}, s2, 6"); a(f"s_add_u32 s{sCG}, s{sCG}, s{sT}")
    a(f"s_cmp_eq_u32 s{sCG}, 10"); a("s_cbranch_scc1 G_V1")
    a(f"s_cmp_gt_u32 s{sCG}, 10"); a("s_cbranch_scc1 G_V2")
    a("s_branch G_V0")
    next(A)
    a.label("FINAL")
    final_reduce(a)
    a.label("END")
    a("s_endpgm")
    next(A)
    g_wave(a,lg)
    return a
def kargs(a):
    for d,off in ((sWS,80),(sDBG,72),(sWG,32),(sWU,40),(sWD,48),(sWO,16),(sOUT,64)):
        a(f"s_load_dwordx2 {sr(d,2)}, s[0:1], {off}")
_q=[0]
def qs(a):
    if O.probe==5 and _q[0]<12:
        a(f"{O.stamp} s[{68+2*_q[0]}:{69+2*_q[0]}]"); _q[0]+=1
def qflush(a):
    if O.probe==5:
        a("s_waitcnt lgkmcnt(0)")
        for i in range(_q[0]): a(f"v_writelane_b32 v{vSTAMP}, s{68+2*i}, {i+1}")
        _q[0]=99
def stamp0(a):
    if O.stamp: a(f"v_writelane_b32 v{vSTAMP}, s96, 0")

PROMO=("v_exp_f32","v_rcp_f32","v_mul_f32","v_add_f32","v_sub_f32","v_and_b32","v_xor_b32","v_or_b32","v_mov_b32","v_max_f32","v_lshlrev_b32","v_mov_b64","v_add_u32","v_lshrrev_b32","v_min_f32")
def align_pass(a):
    import subprocess, re, tempfile
    d=tempfile.mkdtemp()
    open(d+"/a.s","w").write('.amdgcn_target "amdgcn-amd-amdhsa--gfx950"\n.text\nK:\n'+a.text().replace(".p2align 12\n",""))
    subprocess.run(["clang","-x","assembler","-target","amdgcn-amd-amdhsa","-mcpu=gfx950","-c",d+"/a.s","-o",d+"/a.o"],check=True)
    dis=subprocess.run(["llvm-objdump","-d","--mcpu=gfx950",d+"/a.o"],capture_output=True,text=True).stdout
    sizes=[4*len(m.group(1).split()) for m in re.finditer(r"// [0-9A-F]{12}: ((?:[0-9A-F]{8} ?)+)",dis)]
    idx=[i for i,l in enumerate(a.out) if l.startswith("  ") and not l.startswith("  ;")]
    assert len(idx)==len(sizes),(len(idx),len(sizes))
    off=0; cand=None; n=0; bad=0
    for i,sz in zip(idx,sizes):
        mn=a.out[i].split()[0]
        if a.out[i-2].startswith(".p2align"): off=(off+7)//8*8; cand=None
        if sz>=8:
            if off%8==4:
                if cand is not None:
                    m2=a.out[cand].split()[0]; a.out[cand]=a.out[cand].replace(m2,m2+"_e64",1); off+=4; n+=1
                else: bad+=1
            cand=None
        elif mn in PROMO:
            if off%8==0 or cand is None: cand=i
        off+=sz
    print("align: promoted",n,"left misaligned",bad,"bytes",off,file=sys.stderr)

def build():
    a=kernel()
    if O.align: align_pass(a)
    print("instrs",len(a.seq),"nops",a.nops,file=sys.stderr)
    K=NAME+"_kernel"
    s=f"; @launch grid=(256,1,1) block=(512,1,1) lds={LDS_SIZE}\n"
    s+='.amdgcn_target "amdgcn-amd-amdhsa--gfx950"\n'
    s+=f".text\n.p2align 12\n.globl {K}\n.p2align 8\n.type {K},@function\n{K}:\n"
    s+=a.text()
    s+="  s_endpgm\n.fill 8192, 4, 0xBF800000\n"
    s+=f""".section .rodata,"a"
.p2align 6
.amdhsa_kernel {K}
  .amdhsa_next_free_vgpr 256
  .amdhsa_next_free_sgpr 102
  .amdhsa_accum_offset 256
  .amdhsa_group_segment_fixed_size 0
  .amdhsa_kernarg_size 88
  .amdhsa_user_sgpr_count 2
  .amdhsa_user_sgpr_kernarg_segment_ptr 1
  .amdhsa_system_sgpr_workgroup_id_x 1
.end_amdhsa_kernel
"""
    return s

if __name__=="__main__":
    args=sys.argv[1:]
    out=f"cdna_kernels/{NAME}.s"
    for x in args:
        if x=="--stamp": O.stamp="s_memrealtime"
        elif x=="--cyc": O.stamp="s_memtime"
        elif x.startswith("--"):
            k,v=x[2:].split("="); assert hasattr(O,k); setattr(O,k,int(v))
        else: out=x
    open(out,"w").write(build())
```

```python
import sys, math, struct
sys.path.insert(0, "work")
from asmlib import *

NAME = "gated_mix__sliding_block__swiglu_ffn__prompt"
MB = 1<<20
WS_Q, WS_K, WS_V, WS_A3, WS_F, WS_ST = 0, 2*MB, 4*MB, 6*MB, 14*MB, 15*MB
WS_SIZE = 16*MB
A3_TB = 118*1024
LOG2E = math.log2(math.e)
def f2u(f): return struct.unpack("<I", struct.pack("<f", f))[0]
MF = "v_mfma_f32_32x32x16_bf16"
MF16 = "v_mfma_f32_16x16x32_bf16"
SLOT=28672
L_GW, L_Z, L_G, L_SY, LDS_SIZE = 159744, 160768, 161792, 162304, 162560
L_CNT, L_C14, L_C13, L_OF, L_AF = L_SY, L_SY+4, L_SY+8, L_SY+12, L_SY+16
PARK=33*4096
SPIN_MAX = 200000
OOB = 0x40000000

class Opt:
    stamp=None; probe=0; p0=9
    rot=5; codepf=1; warm=1; wst=0; outaux=2; sleep=2; align=1; forceslow=0
    NA=4; dl=1; thr=0; thrA=6; thr3=6; nA2=0; early=2; hpos=3; qs=4; w2=1; prio2=2; t0s=5; osl=4; dbl=11; park=0; qsig=24; sigk=10; rsl=1; pst=-2; wmode=1; wn=8; wsp=6; ap=0; afl=0; pa=12; ord=1; tm=0; nfull=0; warmx=0; adly=0; lay=1; cpl=0; fr=1; ck=1; ek=1; swap=1; npr=4; tp=0; s8=0; qsch=0; pfast=0; wf=1; tlb=1
O=Opt()

sWS,sX,sWQ,sWG,sWU,sWD,sWO,sOUT,sGW,sDBG = 4,8,12,16,20,24,28,32,36,40
sW,sI,sRB,sCG,sSB,sPH,sT,sT2,sT3,sTR,sTC = 44,45,46,47,48,49,50,51,52,53,54
sA,sB,sC,sD,sE,sF,sG_,sH,sLT = 55,56,57,58,59,60,61,62,63
sM=64
s1K,sDo,sHead,sRo = 98,99,100,101
vSTAMP=11

def stamp(a, idx, probe=0):
    if O.stamp and (probe==O.probe or idx in (0,15)):
        a(f"{O.stamp} s[96:97]"); a("s_waitcnt lgkmcnt(0)")
        a(f"v_writelane_b32 v{vSTAMP}, s96, {idx}")
def stamp_flush(a, vtmp):
    if O.stamp:
        a("s_waitcnt vmcnt(0)"); stamp(a,15)
        a(f"s_lshl_b32 s{sT}, s2, 3"); a(f"s_add_u32 s{sT}, s{sT}, s{sW}"); a(f"s_xor_b32 s{sT}, s{sT}, {4 if O.swap else 0}"); a(f"s_lshl_b32 s{sT}, s{sT}, 6")
        a(f"s_add_u32 s{sT}, s{sT}, {WS_ST}")
        a(f"v_mbcnt_lo_u32_b32 v{vtmp}, -1, 0"); a(f"v_lshlrev_b32 v{vtmp}, 2, v{vtmp}")
        a("s_mov_b64 exec, 0xffff")
        a(f"buffer_store_dword v{vSTAMP}, v{vtmp}, {sr(sWS,4)}, s{sT} offen")

def srd_tail(a, d, size):
    a(f"s_mov_b32 s{d+2}, {size:#x}"); a(f"s_mov_b32 s{d+3}, 0x20000")
def late_srds(a):
    for d,size in ((sWS,WS_SIZE),(sDBG,256),(sWG,512*2752),(sWU,512*2752),(sWD,1376*1024),(sWO,512*1024),(sOUT,2*MB)):
        srd_tail(a,d,size)
def late_scalars(a):
    a(f"s_mul_i32 s{sT}, s{sCG}, 43"); a(f"s_lshr_b32 s{sT}, s{sT}, 7")
    a(f"s_mul_i32 s{sSB}, s{sCG}, 3"); a(f"s_sub_u32 s{sSB}, s{sSB}, s{sT}")
    a(f"s_mul_i32 s{sT}, s{sT}, 3"); a(f"s_sub_u32 s{sT}, s{sCG}, s{sT}"); a(f"s_cmp_eq_u32 s{sT}, 2")
    a(f"s_cselect_b32 s{sLT}, {OOB:#x}, 0")
    a(f"s_and_b32 s{sTR}, s2, 7"); a(f"s_lshl_b32 s{sTR}, s{sTR}, 2"); a(f"s_bfe_u32 s{sT}, s2, 0x20003"); a(f"s_add_u32 s{sTR}, s{sTR}, s{sT}")
    a(f"s_lshr_b32 s{sTC}, s2, 5")
    a(f"s_lshl_b32 s{s1K}, s{sI}, 10")
    a(f"s_lshl_b32 s{sDo}, s{sI}, 14"); a(f"s_lshl_b32 s{sT}, s{sTC}, 7"); a(f"s_add_u32 s{sDo}, s{sDo}, s{sT}")
    a(f"s_lshl_b32 s{sRo}, s{sTR}, 1"); a(f"s_add_u32 s{sRo}, s{sRo}, s{sTC}"); a(f"s_and_b32 s{sRo}, s{sRo}, 7")
    a(f"s_mul_i32 s{sH}, s{sRo}, 21"); a(f"s_lshr_b32 s{sH}, s{sH}, 3")
    a(f"s_lshl_b32 s{sH}, s{sH}, 16"); a(f"s_lshl_b32 s{sRo}, s{sRo}, 16")

_uid=[0]
def uid(p): _uid[0]+=1; return f"{p}{_uid[0]}"
def poll(a, vdst, vaddr, srd, soff, first_tag=None, expect=1, sleep=None):
    L=uid("PL")
    if first_tag is not None:
        a.wait(vm=[first_tag])
        a(f"v_cmp_ne_u32 vcc, {expect}, v{vdst}")
        a(f"s_cbranch_vccz {L}_D")
    a(f"s_mov_b32 s{sT3}, {SPIN_MAX}")
    keep=list(a.vm)
    a.label(L)
    a(f"buffer_load_dword v{vdst}, v{vaddr}, {sr(srd,4)}, {soff} offen sc1")
    a("s_waitcnt vmcnt(0)")
    a(f"v_cmp_ne_u32 vcc, {expect}, v{vdst}")
    a(f"s_cbranch_vccz {L}_D")
    a(f"s_sleep {sleep or O.sleep}")
    a(f"s_sub_u32 s{sT3}, s{sT3}, 1")
    a(f"s_cmp_lg_u32 s{sT3}, 0")
    a(f"s_cbranch_scc1 {L}")
    a.label(L+"_D")
    if first_tag is not None: a.vm=keep
def lds_poll(a, vaddr, vdst, expect, off=0):
    L=uid("LP")
    a(f"s_mov_b32 s{sT3}, {SPIN_MAX}")
    a.label(L); a(f"ds_read_b32 v{vdst}, v{vaddr} offset:{off}"); a("s_waitcnt lgkmcnt(0)")
    a(f"v_cmp_ne_u32 vcc, {expect}, v{vdst}"); a(f"s_cbranch_vccz {L}_D"); a("s_sleep 1")
    a(f"s_sub_u32 s{sT3}, s{sT3}, 1"); a(f"s_cmp_lg_u32 s{sT3}, 0"); a(f"s_cbranch_scc1 {L}")
    a.label(L+"_D")
def lds_inc(a, vaddr, vone, off):
    a("s_mov_b64 exec, 1"); a(f"ds_add_u32 v{vaddr}, v{vone} offset:{off}"); a("s_mov_b64 exec, -1")
def emit(a, ops, tag=None):
    for op in ops:
        for o in (op if isinstance(op,tuple) else (op,)): a(o,tag)

def signal(a, kind, vtmp, tag=None):
    a(f"s_lshl_b32 s{sT}, s{sRB}, 4"); a(f"s_add_u32 s{sT}, s{sT}, s{sCG}"); a(f"s_lshl_b32 s{sT}, s{sT}, 5")
    a(f"s_add_u32 s{sT}, s{sT}, s{sI}"); a(f"s_lshl_b32 s{sT}, s{sT}, 2"); a(f"s_add_u32 s{sT}, s{sT}, {WS_F+kind*32768}")
    a(f"v_mov_b32 v{vtmp}, 1")
    a("s_mov_b64 exec, 1")
    if tag: a.wait(vm=[tag])
    else: a("s_waitcnt vmcnt(0)")
    a(f"buffer_store_dword v{vtmp}, off, {sr(sWS,4)}, s{sT} sc1", "flag")
    a("s_mov_b64 exec, -1")

def flag_lane_ops(vF, vL, t0, t1, sdst, kind):
    return [f"v_and_b32 v{t0}, 15, v{vL}", f"v_bfe_u32 v{t1}, v{vL}, 4, 1", f"v_lshlrev_b32 v{t1}, 2, v{t1}", f"v_lshl_add_u32 v{vF}, v{t0}, 7, v{t1}",
            f"s_lshr_b32 s{sdst}, s{sTR}, 1", f"s_lshl_b32 s{sdst}, s{sdst}, 11", f"s_and_b32 s{sT}, s{sTR}, 1", f"s_lshl_b32 s{sT}, s{sT}, 3",
            f"s_add_u32 s{sdst}, s{sdst}, s{sT}", f"s_add_u32 s{sdst}, s{sdst}, {WS_F+kind*32768}"]
def qaddr_ops(i):
    t,e=i>>1,i&1
    o=[f"s_mul_i32 s{sT}, s{sCG}, 3", f"s_add_u32 s{sT}, s{sT}, {t}", f"s_lshl_b32 s{sT2}, s{sRB}, 2", f"s_add_u32 s{sT2}, s{sT2}, s{sI}",
       (f"s_cmp_ge_u32 s{sT}, 32", f"s_cselect_b32 s{sT3}, 11, 10"), f"s_lshl_b32 s{sT2}, s{sT2}, s{sT3}"]
    if e: o+=[(f"s_cmp_ge_u32 s{sT}, 32", f"s_cselect_b32 s{sT3}, 1, 64"), f"s_lshl_b32 s{sT3}, s{sT3}, 10", f"s_add_u32 s{sT2}, s{sT2}, s{sT3}"]
    return o+[f"s_lshl_b32 s{sT}, s{sT}, 17", f"s_add_u32 s{sT}, s{sT}, s{sT2}"]
def w3_lane_ops(vD, vL, t0, t1):
    return [f"v_bfe_u32 v{t0}, v{vL}, 4, 1", f"v_lshlrev_b32 v{t0}, 2, v{t0}", f"v_and_b32 v{t1}, 7, v{vL}", f"v_xor_b32 v{t0}, v{t0}, v{t1}",
            f"v_lshlrev_b32 v{t0}, 4, v{t0}", f"v_lshrrev_b32 v{t1}, 3, v{vL}", f"v_lshl_add_u32 v{vD}, v{t1}, 10, v{t0}",
            f"v_add_u32 v{vD}, s{sDo}, v{vD}", f"v_add_u32 v{vD+1}, 8192, v{vD}"]

ROWS = list(range(28,39))+[6,13,20] + [0,1,2,3,4,5,7,8,9,10,11,12] + [14,15,16,17,18,19,21,22,23,24,25,26]
NRES=19; NT0=7; NREG=11; NS3=30
LOAD=[0,1,2,3,4,22,23, 5,6,7,8,9,10, 11,12,13,14,15,16, 17,18,19,20,21,24,25,26,27,28,29]
POS={n:p for p,n in enumerate(LOAD)}
A2LIST=list(range(7,13))+list(range(19,26))
def row_of(p,e): return ROWS[2*(p%NRES)+e]
def rot_off(n):
    if n<21: return [f"s_add_u32 s{sT2}, s{sH}, {n<<16}", f"s_add_u32 s{sT3}, s{sH}, {((n-21)<<16)&0xffffffff:#x}", f"s_min_u32 s{sT2}, s{sT2}, s{sT3}"]
    if n==21: return [f"s_and_b32 s{sT2}, s{sI}, 2", f"s_lshl_b32 s{sT2}, s{sT2}, 14", f"s_sub_u32 s{sT2}, {21<<16}, s{sT2}"]
    return [f"s_add_u32 s{sT2}, s{sRo}, {(n-22)<<16}", f"s_and_b32 s{sT2}, s{sT2}, {7<<16}"]
def w3_dma(a, p, vD, tag):
    n=LOAD[p]; R=sWD if n<22 else sWO
    a(f"s_add_u32 m0, s{s1K}, {row_of(p,0)*4096}")
    emit(a,rot_off(n))
    a(f"buffer_load_dwordx4 v{vD}, {sr(R,4)}, s{sT2} offen lds", tag)
    a(f"s_add_u32 m0, s{s1K}, {row_of(p,1)*4096}")
    a(f"buffer_load_dwordx4 v{vD+1}, {sr(R,4)}, s{sT2} offen lds", tag)

def final_reduce(a):
    vL,vA,vO,B = 1,2,6,16
    a(f"v_mbcnt_lo_u32_b32 v{vL}, -1, 0"); a(f"v_mbcnt_hi_u32_b32 v{vL}, -1, v{vL}")
    if not O.fr:
        a(f"v_lshrrev_b32 v3, 3, v{vL}")
        a(f"v_bfe_u32 v4, v{vL}, 4, 1"); a(f"v_bfe_u32 v5, v{vL}, 3, 1"); a(f"v_lshl_or_b32 v4, v5, 1, v4")
        a(f"v_and_b32 v5, 4, v3"); a(f"v_or_b32 v4, v4, v5")
        a(f"v_and_b32 v5, 3, v{vL}"); a(f"v_lshlrev_b32 v5, 1, v5"); a(f"v_xor_b32 v4, v4, v5"); a(f"v_lshlrev_b32 v4, 4, v4")
        a(f"v_lshl_add_u32 v{vA}, v3, 7, v4")
    else:
        a(f"v_lshrrev_b32 v4, 4, v{vL}"); a(f"v_bfe_u32 v5, v{vL}, 3, 1"); a(f"v_lshl_add_u32 v3, v5, 2, v4")
        a(f"v_lshlrev_b32 v{vA}, 8, v4"); a(f"v_lshl_add_u32 v{vA}, v5, 7, v{vA}")
        a(f"v_and_b32 v5, 3, v{vL}"); a(f"v_lshl_add_u32 v{vA}, v5, 5, v{vA}")
        a(f"v_and_b32 v5, 16, v{vL}"); a(f"v_add_u32 v{vA}, v{vA}, v5"); a(f"v_cmp_ne_u32 vcc, 0, v5")
    a(f"v_bfe_u32 v5, v{vL}, 2, 1"); a(f"v_lshl_add_u32 v{vA}, v5, 14, v{vA}")
    a(f"s_lshr_b32 s{sT}, s{sW}, 2"); a(f"s_lshl_b32 s{sT}, s{sT}, 15"); a(f"s_lshl_b32 s{sT2}, s{sI}, 12"); a(f"s_add_u32 s{sT}, s{sT}, s{sT2}")
    a(f"v_add_u32 v{vA}, s{sT}, v{vA}")
    a(f"v_and_b32 v5, 7, v{vL}"); a(f"v_lshlrev_b32 v5, 4, v5"); a(f"v_lshl_add_u32 v{vO}, v3, 10, v5")
    a(f"v_xor_b32 v{vA+1}, 16, v{vA}")
    a(f"s_lshl_b32 s{sT}, s{sTR}, 16"); a(f"s_lshl_b32 s{sT2}, s{sTC}, 7"); a(f"s_add_u32 s{sT}, s{sT}, s{sT2}")
    a(f"s_lshl_b32 s{sT2}, s{sW}, 13"); a(f"s_add_u32 s{sT}, s{sT}, s{sT2}")
    a("s_waitcnt lgkmcnt(0)"); a("s_barrier")
    stamp(a,13)
    for w in range(4):
        for hf in range(2):
            a(f"ds_read_b128 {vr(B+8*w+4*hf,4)}, v{vA+hf} offset:{w*1024}", ("rr",w))
    a.wait(lg=[("rr",1)])
    for r in range(0,8,2): a(f"v_pk_add_f32 {vr(B+r,2)}, {vr(B+r,2)}, {vr(B+8+r,2)}")
    a.wait(lg=[("rr",3)])
    for r in range(0,8,2): a(f"v_pk_add_f32 {vr(B+16+r,2)}, {vr(B+16+r,2)}, {vr(B+24+r,2)}")
    for r in range(0,8,2): a(f"v_pk_add_f32 {vr(B+r,2)}, {vr(B+r,2)}, {vr(B+16+r,2)}")
    if O.fr:
        for r in range(4): a(f"v_cvt_pk_bf16_f32 v{B+12+r}, v{B+2*r}, v{B+2*r+1}")
        for r in range(4): a(f"v_cndmask_b32 v{B+8+r}, v{B+12+r}, v{B+12+(r^2)}, vcc")
    else:
        for r in range(4): a(f"v_cvt_pk_bf16_f32 v{B+8+r}, v{B+2*r}, v{B+2*r+1}")
    aux=[""," sc1"," nt"," sc0 sc1"][O.outaux]
    a(f"buffer_store_dwordx4 {vr(B+8,4)}, v{vO}, {sr(sOUT,4)}, s{sT} offen{aux}", "out")
    stamp(a,14)
    stamp_flush(a,3)

def g_wave(a, lg0):
    vSt,vXa,vTm,vTq,vT2 = 0,1,3,5,7
    WB,NW,ACC,XR = 12,5,32,128
    GF,GA,vGb,vGa = 80,88,92,93
    vC,vS2,vPk,vSy = 4,3,5,6
    sSt,sK = sB,sC
    t0,t1,vL = 12,13,14
    def poison():
        for i in range(2): a(f"buffer_store_dwordx4 v[104:107], v{vSt}, {sr(sWS,4)}, s{82+i} offen sc1")
    def warm2():
        if O.warm:
            a(f"s_mov_b32 exec_hi, 0x7ff"); a(f"buffer_load_dword v99, v98, s[68:71], 0 offen"); a(f"s_mov_b32 exec_hi, -1")
    def warm_slot(k):
        L=uid("GW"); a(f"s_cmp_lg_u32 s84, {k}"); a(f"s_cbranch_scc1 {L}"); warm2()
        if O.pst==-1: poison()
        a.label(L)
    def g_publish():
        a(f"s_cmp_lg_u32 s72, 3"); a("s_cbranch_scc1 G_NOPUB")
        a(f"s_lshl_b32 s{sT}, s{sRB}, 2"); a("v_mov_b32 v100, 1"); a("s_mov_b64 exec, 1"); a("s_waitcnt vmcnt(0)")
        a(f"buffer_store_dword v100, off, {sr(sDBG,4)}, s{sT} sc1"); a("s_mov_b64 exec, -1")
        a.label("G_NOPUB")
    def setup(vi):
        a(f"v_and_b32 v{vL}, 63, v0")
        kargs(a); ids(a)
        late_srds(a); late_scalars(a)
        a(f"v_lshlrev_b32 v{vSt}, 4, v{vL}")
        a(f"v_and_b32 v{t0}, 31, v{vL}"); a(f"v_lshrrev_b32 v{t1}, 5, v{vL}")
        a(f"v_bfe_u32 v{vXa}, v{vL}, 1, 3"); a(f"v_xor_b32 v{vXa}, v{vXa}, v{t1}"); a(f"v_lshlrev_b32 v{vXa}, 4, v{vXa}")
        a(f"v_lshl_add_u32 v{vXa}, v{t0}, 7, v{vXa}")
        a(f"s_lshl_b32 s{sT}, s{sI}, 12"); a(f"v_add_u32 v{vXa}, s{sT}, v{vXa}"); a(f"v_add_u32 v{vXa+1}, {2*SLOT}, v{vXa}")
        a(f"v_lshrrev_b32 v{vGb}, 4, v{vL}"); a(f"v_xor_b32 v{vGb}, v{vGb}, v{vL}"); a(f"v_and_b32 v{vGb}, 1, v{vGb}")
        a(f"v_lshlrev_b32 v{vGb}, 10, v{vGb}"); a(f"v_lshl_add_u32 v{vGb}, v{t1}, 4, v{vGb}"); a(f"v_add_u32 v{vGb}, {L_GW}, v{vGb}")
        a(f"v_bfe_u32 v{t0}, v{vL}, 2, 2"); a(f"v_lshl_add_u32 v{t0}, v{t1}, 3, v{t0}"); a(f"v_lshlrev_b32 v{t0}, 6, v{t0}")
        a(f"v_and_b32 v{t1}, 3, v{vL}"); a(f"v_lshl_add_u32 v{t0}, v{t1}, 3, v{t0}")
        a(f"v_bfe_u32 v{t1}, v{vL}, 4, 1")
        a(f"v_lshl_add_u32 v{t0}, v{t1}, 5, v{t0}")
        a(f"v_add_u32 v{vTq}, 16384, v{t0}"); a(f"v_add_u32 v{vTq+1}, {16384+2*SLOT}, v{t0}")
        a(f"v_mul_u32_u24 v{t1}, 3072, v{t1}"); a(f"v_add_u32 v{vT2}, v{t0}, v{t1}")
        a(f"v_xor_b32 v{vT2+1}, 32, v{vT2}")
        a(f"v_add_u32 v{vT2+2}, {2*SLOT}, v{vT2}"); a(f"v_add_u32 v{vT2+3}, {2*SLOT}, v{vT2+1}")
        a(f"v_cmp_ne_u32 s[64:65], 0, v{t1}")
        for r in (16,17,18,19): a(f"v_mov_b32 v{r}, 0")
        a(f"v_add_u32 v{t0}, {L_Z}, v{vSt}"); a(f"ds_write_b128 v{t0}, v[16:19]")
        a(f"v_mov_b32 v{t0}, {L_SY}"); a(f"ds_write_b128 v{t0}, v[16:19]"); a(f"ds_write_b128 v{t0}, v[16:19] offset:16")
        a("s_waitcnt lgkmcnt(0)")
        stamp0(a)
        a(f"s_lshl_b32 s{sT}, s{sCG}, 2"); a(f"s_add_u32 s72, s{sT}, s{sI}"); a(f"s_cmp_lg_u32 s72, 3"); a(f"s_cbranch_scc1 G_NOINIT{vi}")
        a(f"v_and_b32 v{t0}, 15, v{vL}"); a(f"v_lshrrev_b32 v{t1}, 4, v{vL}"); a(f"v_lshlrev_b32 v{t0}, 7, v{t0}"); a(f"v_lshl_add_u32 v{t0}, v{t1}, 15, v{t0}")
        a(f"s_lshl_b32 s{sT}, s{sRB}, 11"); a(f"s_add_u32 s{sT}, s{sT}, {WS_F}")
        a("s_mov_b32 exec_hi, 0xffff")
        a(f"buffer_store_dwordx4 v[16:19], v{t0}, {sr(sWS,4)}, s{sT} offen sc1")
        a("s_mov_b32 exec_hi, -1")
        a.label(f"G_NOINIT{vi}")
        if O.pst!=-2:
            for r in (104,105,106,107): a(f"v_mov_b32 v{r}, -1")
            a(f"s_and_b32 s{sT2}, s{sI}, 2"); a(f"s_lshl_b32 s{sT}, s{sRB}, 2"); a(f"s_add_u32 s{sT}, s{sT}, s{sT2}"); a(f"s_mul_i32 s{sT}, s{sT}, {A3_TB}")
            a(f"s_and_b32 s{sT2}, s{sI}, 1"); a(f"s_lshl_b32 s{sT3}, s{sCG}, 1"); a(f"s_add_u32 s{sT2}, s{sT2}, s{sT3}"); a(f"s_lshl_b32 s{sT2}, s{sT2}, 10")
            a(f"s_add_u32 s{sT}, s{sT}, s{sT2}"); a(f"s_add_u32 s82, s{sT}, {WS_A3+86*1024}"); a(f"s_add_u32 s83, s82, {A3_TB}")
        if O.warm:
            a(f"s_cmp_eq_u32 s{sI}, 1"); a(f"s_cselect_b32 s68, s{sWU}, s{sWG}"); a(f"s_cselect_b32 s69, s{sWU+1}, s{sWG+1}")
            a(f"s_cmp_eq_u32 s{sI}, 2"); a(f"s_cselect_b32 s68, s{sWD}, s68"); a(f"s_cselect_b32 s69, s{sWD+1}, s69")
            a(f"s_mov_b32 s70, {1376*1024}")
            a(f"s_cmp_eq_u32 s{sI}, 3"); a(f"s_cselect_b32 s68, s{sWO}, s68"); a(f"s_cselect_b32 s69, s{sWO+1}, s69")
            a(f"s_cselect_b32 s70, {512*1024}, s70"); a("s_mov_b32 s71, 0x20000")
            a(f"s_mul_i32 s{sT}, s2, {43*128}")
            a(f"v_lshl_add_u32 v98, v{vL}, 7, s{sT}")
        if O.wmode==1: a(f"s_lshr_b32 s84, s2, 3"); a(f"s_and_b32 s84, s84, {O.wn-1}")
        if O.wmode==2: a(f"s_mov_b32 s84, s{sI}")
        if O.wmode==3: a(f"s_and_b32 s84, s2, {O.wn-1}")
        if O.wst<0 and not O.wmode: warm2()
        if O.wst<0 and O.wmode: warm_slot(0)
        if not O.park:
            for i in range(6): emit(a,qaddr_ops(i)); a(f"s_mov_b32 s{76+i}, s{sT}")
        a("s_setprio 2")

    seq=[]
    for st in range(8):
        for j in range(4):
            for t in range(3): seq.append((st,j,t))
    for j in range(4):
        for u in (3,4,5): seq.append((8,j,u))
    for u in (0,1,2):
        for j in range(4): seq.append((8,j,u))
    for st in range(9,14):
        for j in range(4):
            for u in range(6): seq.append((st,j,u))
    MT=len(seq)
    for u in range(6):
        for st in (14,15):
            for j in range(4): seq.append((st,j,u))
    N=len(seq); AH=NW-1; M8=96
    first={}
    for m,(st,j,t) in enumerate(seq): first.setdefault(st,m)
    ool=[]
    def reads(m):
        st,j,t=seq[m]; q=st&3; wb=WB+4*(m%NW); tg=("r",m)
        if first[st]==m and st<14:
            if O.dbl<=st<13: a("s_waitcnt lgkmcnt(0)")
            if O.p0<=st<O.p0+4: stamp(a,1+3*(st-O.p0),1)
            a("s_barrier")
            if O.p0<=st<O.p0+4: stamp(a,2+3*(st-O.p0),1)
            if st in (0,1,8,9): stamp(a,{0:1,1:2,8:3,9:4}[st])
            if st<9: stamp(a,2+st,3)
            if st==8: stamp(a,1,6)
            if st<9: stamp(a,2+st,5)
        if m==MT:
            a.wait(lg=["c14"])
            a(f"v_cmp_ne_u32 vcc, 4, v2"); a("s_cbranch_vccnz G_W14"); a.label("G_R14")
            def w14():
                a.label("G_W14"); a.lg=[]; lds_poll(a,vSy,2,4,L_C14-L_SY); a("s_branch G_R14")
            ool.append(w14)
            stamp(a,5); stamp(a,1,4)
        if st<8:
            if t==0:
                k=st*4+j; tm=vTm+(k&1)
                if j: a(f"v_xor_b32 v{tm}, {32*j}, v{vXa+(q>>1)}")
                else:
                    a(f"s_add_u32 s{sK}, s{sPH}, {st}"); a(f"s_and_b32 s{sK}, s{sK}, 7"); a(f"s_lshl_b32 s{sK}, s{sK}, 7")
                    a(f"v_add_u32 v{vGa}, s{sK}, v{vGb}")
                a(f"ds_read_b128 {vr(XR+4*k,4)}, v{tm if j else vXa+(q>>1)} offset:{(q&1)*SLOT}", tg)
                a(f"ds_read_b128 {vr(GF+4*(k&1),4)}, v{vGa} offset:{j*32}", tg)
            for e in range(2):
                a(f"ds_read_b64_tr_b16 {vr(wb+2*e,2)}, v{vTq+(q>>1)} offset:{(q&1)*SLOT+(j*3+t)*1024+e*256}", tg)
        else:
            for e in range(2):
                a(f"ds_read_b64_tr_b16 {vr(wb+2*e,2)}, v{vT2+2*(q>>1)+(t&1)} offset:{(q&1)*SLOT+j*6144+(t>>1)*1024+e*256}", tg)
    rp=[0]
    def pump(m):
        while rp[0]<N and rp[0]<=m+AH:
            r=rp[0]; st=seq[r][0]
            if first[st]==r and O.dbl<=st<13 and m<r-AH+O.dl: break
            reads(r); rp[0]+=1
    def mfma(m, vmask):
        st,j,t=seq[m]; k=(st&7)*4+j; A=vr(ACC+16*t,16)
        W,X=vr(WB+4*(m%NW),4),vr(XR+4*k,4)
        a.wait(lg=[("r",m),("r",m+1)] if (O.w2 and m>=MT+8 and m%2==0) else [("r",m)])
        if st<8 and t==0:
            a(f"{MF16} {vr(GA,4)}, {vr(GF+4*(k&1),4)}, {X}, {'0' if k==0 else vr(GA,4)}")
        p,q_=(X,W) if (st<8 and (vmask>>t)&1) else (W,X)
        a(f"{MF} {A}, {p}, {q_}, {'0' if k==0 else A}")
    for vi,vmask in ((1,4),(2,7),(0,0)):
        a.raw(".p2align 12")
        a.label(f"G_V{vi}")
        a.vm=[]; a.lg=list(lg0)
        setup(vi)
        stamp(a,1,3); stamp(a,1,5)
        a.vm=[]; a.lg=[]; rp[0]=0
        pump(-1)
        for m in range(M8):
            if m==M8-6: a("s_waitcnt vmcnt(0)")
            if m==12 and vi==0: g_publish()
            if not O.wmode and m==12*O.wst+1: warm2()
            if O.wmode:
                for k in range(O.wn):
                    if m==12*O.wst+1+k*O.wsp: warm_slot(k)
            if m==O.pst: poison()
            mfma(m,vmask); pump(m)
        if vi: a("s_branch G_P2")
    a.label("G_P2")
    fill={}
    def spread(ops, m0, m1):
        for i,o in enumerate(ops): fill.setdefault(m0+(i*(m1-m0))//len(ops),[]).append(o)
    SS=[0,4,8,11,15,17,20] if not O.park else ([0,3,6,8,11,13,15] if not O.pfast else [0,2,4,5,7,8,10])
    for i in range(6):
        A=ACC+8*i
        ops=[f"s_add_u32 s{sT}, s{s1K}, {PARK}", f"v_add_u32 v{vPk}, s{sT}, v{vSt}"] if (i==0 and O.park) else []
        for r in range(4): ops.append(f"v_cvt_pk_bf16_f32 v{A+r}, v{A+2*r}, v{A+2*r+1}")
        ops.append(f"ds_write_b128 v{vPk}, {vr(A,4)} offset:{i*4096}" if O.park else f"buffer_store_dwordx4 {vr(A,4)}, v{vSt}, {sr(sWS,4)}, s{76+i} offen sc1")
        spread(ops,M8+SS[i],M8+SS[i+1])
    spread([f"v_mul_f32 v{vC}, {f2u(LOG2E):#x}, v{vC}", f"v_exp_f32 v1, -v{vC}", f"v_exp_f32 v{vC}, v{vC}",
            f"v_add_f32 v1, 1.0, v1", f"v_add_f32 v{vC}, 1.0, v{vC}", f"v_rcp_f32 v1, v1", f"v_min_f32 v{vC}, {f2u(1e38):#x}, v{vC}",
            f"v_bfe_u32 v2, v{vSt}, 4, 5", f"s_lshl_b32 s{sT}, s{sI}, 7", f"s_add_u32 s{sT}, s{sT}, {L_G}",
            f"v_lshl_add_u32 v2, v2, 2, s{sT}", f"ds_write_b32 v2, v1", f"v_add_u32 v{vS2}, s{sLT}, v{vSt}",
            f"v_mov_b32 v{vSy}, {L_SY}"], M8+20, M8+27)
    vL,vD,vR,vA,vW,t0,t1,vF,vP = 147,148,150,156,158,162,163,146,145
    WB3,ACC3,AF,WR = 12,32,96,164; NA=O.NA; NF=22-NA; NR=NA+1; assert AF+8*NR<=144
    ops=[f"v_lshrrev_b32 v{vL}, 4, v{vSt}"]+w3_lane_ops(vD,vL,t0,t1)
    ops+=[f"v_lshrrev_b32 v{t0}, 5, v{vL}", f"v_bfe_u32 v{t1}, v{vL}, 2, 2", f"v_lshl_add_u32 v{t0}, v{t0}, 2, v{t1}", f"v_lshlrev_b32 v{vR}, 7, v{t0}",
          f"v_bfe_u32 v{t0}, v{vL}, 3, 1", f"v_lshl_add_u32 v{vR}, v{t0}, 6, v{vR}", f"v_bfe_u32 v{t0}, v{vL}, 4, 1", f"v_lshl_add_u32 v{vR}, v{t0}, 5, v{vR}",
          f"v_and_b32 v{t0}, 3, v{vL}", f"v_lshl_add_u32 v{vR}, v{t0}, 3, v{vR}", f"v_add_u32 v{vR}, s{s1K}, v{vR}",
          f"v_add_u32 v{vR+2}, 65536, v{vR}", f"v_add_u32 v{vR+4}, 131072, v{vR}"]
    ops+=[f"v_xor_b32 v{vR+2*g+1}, 64, v{vR+2*g}" for g in range(3)]
    ops+=[f"s_mul_i32 s{sT}, s{sTR}, {2*A3_TB}", f"s_add_u32 s{sT}, s{sT}, s{s1K}", f"s_add_u32 s{sT}, s{sT}, {WS_A3}",
          f"v_add_u32 v{vA}, s{sT}, v{vSt}", f"v_add_u32 v{vA+1}, {A3_TB}, v{vA}"]
    if not O.fr:
        ops+=[f"v_bfe_u32 v{t0}, v{vL}, 1, 1", f"v_and_b32 v{t1}, 1, v{vL}", f"v_lshl_or_b32 v{t0}, v{t1}, 1, v{t0}", f"v_and_b32 v{t1}, 4, v{vL}",
              f"v_or_b32 v{t0}, v{t0}, v{t1}", f"v_lshrrev_b32 v{t1}, 5, v{vL}", f"v_xor_b32 v{t0}, v{t0}, v{t1}", f"v_lshlrev_b32 v{t0}, 4, v{t0}",
              f"v_and_b32 v{t1}, 7, v{vL}", f"v_lshl_add_u32 v{vW}, v{t1}, 7, v{t0}", f"v_bfe_u32 v{t1}, v{vL}, 3, 2",
              f"v_lshl_add_u32 v{vW}, v{t1}, 12, v{vW}", f"v_add_u32 v{vW}, s{s1K}, v{vW}"]
        ops+=[f"v_xor_b32 v{vW+q}, {32*q}, v{vW}" for q in range(1,4)]
    ops+=[f"s_lshl_b32 s{sT}, s{sRB}, 2", f"s_add_u32 s{sT}, s{sT}, s{sI}", f"s_mul_i32 s{sSt}, s{sT}, {A3_TB}", f"s_lshl_b32 s{sT}, s{sSB}, 11",
          f"s_add_u32 s{sSt}, s{sSt}, s{sT}", f"s_add_u32 s{sSt}, s{sSt}, {WS_A3}", f"s_add_u32 s{sD}, s{sSt}, 4096", f"s_mov_b32 s{sA}, {f2u(-LOG2E):#x}",
          f"v_mov_b32 v1, 1"]+flag_lane_ops(vF,vL,t0,t1,sG_,1)
    spread(ops,first[11]+2,first[13]+12)
    def rd3_ops(p, wb):
        return [(f"ds_read_b64_tr_b16 {vr(wb+4*cb+2*q,2)}, v{vR+2*(row_of(p,q)>>4)+cb} offset:{(row_of(p,q)&15)*4096}", ("r3",p)) for cb in range(2) for q in range(2)]
    def rd3(p,wb):
        for o,t in rd3_ops(p,wb): a(o,t)
    T=XR
    def ffn_epi(n):
        A=ACC+16*n; ops=[]; R=range(8)
        for r in R: ops.append(f"v_mul_f32 v{T+r}, s{sA}, v{A+r}")
        for r in R: ops.append(f"v_exp_f32 v{T+r}, v{T+r}"); ops.append(f"v_mul_f32 v{A+r}, v{A+r}, v{A+8+r}")
        for r in R: ops.append(f"v_fma_f32 v{T+r}, v{T+r}, v{vC}, v{vC}")
        for r in R: ops.append(f"v_rcp_f32 v{T+r}, v{T+r}")
        for r in R: ops.append(f"v_mul_f32 v{A+r}, v{A+r}, v{T+r}")
        for r in range(4): ops.append(f"v_cvt_pk_bf16_f32 v{A+8+r}, v{A+2*r}, v{A+2*r+1}")
        ops.append(f"buffer_store_dwordx4 {vr(A+8,4)}, v{vSt if n<4 else vS2}, {sr(sWS,4)}, s{sSt if n<4 else sD} offen offset:{(n&3)*1024} sc1")
        return ops
    def epi_a(n):
        A=ACC+16*n; ops=[]
        for r in range(8): ops.append(f"v_mul_f32 v{A+8+r}, v{A+r}, v{A+8+r}"); ops.append(f"v_mul_f32 v{A+r}, s{sA}, v{A+r}")
        for r in range(8): ops.append(f"v_exp_f32 v{A+r}, v{A+r}")
        return ops
    def epi_a_pk(n):
        A=ACC+16*n; ops=[]
        for r in range(0,8,2): ops.append(f"v_pk_mul_f32 {vr(A+8+r,2)}, {vr(A+r,2)}, {vr(A+8+r,2)}")
        for r in range(0,8,2): ops.append(f"v_pk_mul_f32 {vr(A+r,2)}, {vr(A+r,2)}, {vr(T+2,2)}")
        for r in range(8): ops.append(f"v_exp_f32 v{A+r}, v{A+r}")
        return ops
    def epi_b1(n):
        A=ACC+16*n
        return [f"v_pk_fma_f32 {vr(A+r,2)}, {vr(A+r,2)}, {vr(T,2)}, {vr(T,2)}" for r in range(0,8,2)]+[f"v_rcp_f32 v{A+r}, v{A+r}" for r in range(8)]
    def epi_b2(n):
        A=ACC+16*n
        ops=[f"v_pk_mul_f32 {vr(A+r,2)}, {vr(A+r,2)}, {vr(A+8+r,2)}" for r in range(0,8,2)]
        ops+=[f"v_cvt_pk_bf16_f32 v{A+8+r}, v{A+2*r}, v{A+2*r+1}" for r in range(4)]
        ops.append(ffn_epi(n)[-1])
        return ops
    for u in range(5): spread(ffn_epi(u) if (not O.tm or u<O.nfull) else epi_a(u), MT+8*(u+1)+(1 if (not O.tm or u<O.nfull) else 2), MT+8*(u+2)+(1 if u<4 else 0))
    a(f"v_cndmask_b32 v{vC}, v{GA}, v{GA+1}, s[64:65]")
    for m in range(M8,N):
        if m>=MT+8 and (m-MT)%8==0: stamp(a,1+(m-MT)//8,4)
        if O.probe==6 and M8<=m<M8+48 and (m-M8)%4==0:
            a.check_pending=False; lgk=list(a.lg); a(f"s_getreg_b32 s{86+(m-M8)//4 if (m-M8)//4<10 else 60+(m-M8)//4-10}, hwreg(HW_REG_SQ_SHADER_TBA_LO)") if False else None; a.check_pending=True
            stamp(a,2+(m-M8)//4,6)
        mfma(m,0)
        if m==MT-AH-3: a(f"ds_read_b32 v2, v{vSy} offset:{L_C14-L_SY}", "c14")
        pump(m)
        if O.pst>=120 and m==O.pst-2: a("v_mov_b64 v[132:133], -1"); a("v_mov_b64 v[134:135], -1")
        if O.pst>=120 and m in (O.pst,O.pst+4): a(f"buffer_store_dwordx4 v[132:135], v{vSt}, {sr(sWS,4)}, s{82+(m!=O.pst)} offen sc1")
        if not O.park and m==first[9]+O.qsig: signal(a,0,vPk)
        if MT<=m<MT+O.npr: rd3(m-MT, WR+8*(m-MT))
        if m==MT+NT0: lds_inc(a,vSy,1,L_C13-L_SY)
        if m==N-AH: lds_inc(a,vSy,1,L_CNT-L_SY)
        emit(a,fill.get(m,[]),"hst")
    stamp(a,6); stamp(a,7,4)
    if not O.tm: emit(a,ffn_epi(5),"hst")
    else:
        emit(a,[f"v_mov_b32 v{T}, v{vC}", f"v_mov_b32 v{T+1}, v{vC}", f"v_mov_b32 v{T+2}, s{sA}", f"v_mov_b32 v{T+3}, s{sA}"])
        us=list(range(O.nfull,6))
        for i,u in enumerate(us):
            if u==5: emit(a,epi_a_pk(5))
            if u==5 and i: emit(a,epi_b2(us[i-1]),"hst")
            emit(a,epi_b1(u))
            if i and u!=5: emit(a,epi_b2(us[i-1]),"hst")
        emit(a,epi_b2(5),"hst")
    stamp(a,7); stamp(a,8,4)
    glist=list(range(13,19))+[p for p in A2LIST[O.nA2:]]
    glist.sort(key=lambda p: (p>=13,p))
    if O.npr<NT0:
        assert O.nA2<=6
        lds_poll(a,vSy,t1,4,L_OF-L_SY)
        for p in range(O.npr,NT0): rd3(p,WR+8*p)
    lds_poll(a,vSy,t1,4,L_CNT-L_SY)
    for p in glist[:O.early]: w3_dma(a,p,vD,("w",p))
    signal(a,1,t0,"hst")
    if O.prio2==1: a("s_setprio 0")
    stamp(a,8)
    def preread():
        a(f"s_lshl_b32 s{sT}, s{sI}, 2"); a(f"v_add_u32 v{t0}, s{sT}, v{vSy}")
        lds_poll(a,t0,t1,1,L_AF-L_SY)
        a.wait(vm=[("w",p) for p in range(NT0,NREG)])
        for p in range(NT0,NREG): rd3(p, WR+8*p)
        a("s_waitcnt lgkmcnt(0)")
    rest=glist[O.early:]+list(range(26,30)); npre=len(rest)-4
    hp=max(len(rest)-O.hpos,npre)
    for i,p in enumerate(rest):
        if i==npre: preread()
        if i==hp: a(f"buffer_load_dword v{vP}, v{vF}, {sr(sWS,4)}, s{sG_} offen sc1", "hf")
        w3_dma(a,p,vD,("w",p))
        if O.thr3: a(f"s_waitcnt vmcnt({O.thr3})")
    stamp(a,9)
    poll(a,vP,vF,sWS,f"s{sG_}",first_tag="hf" if hp<len(rest) else None)
    stamp(a,10)
    def aload_ops(n):
        af=AF+8*(n%NR); ops=[(o,None) for o in rot_off(n)]
        ops.append((f"s_lshr_b32 s{sT2}, s{sT2}, 4",None))
        if n>=22: ops.append((f"s_add_u32 s{sT2}, s{sT2}, {86*1024}",None))
        for tb in range(2):
            ops.append((f"buffer_load_dwordx4 {vr(af+4*tb,4)}, v{vA+tb}, {sr(sWS,4)}, s{sT2} offen sc1", ("a",n)))
        return ops
    def aload(n):
        for o,t in aload_ops(n): a(o,t)
    def chk_ops(n):
        af=AF+8*(n%NR)
        return [f"v_max3_u32 v{t0}, v{af}, v{af+1}, v{af+2}", f"v_max3_u32 v{t1}, v{af+3}, v{af+4}, v{af+5}",
                f"v_max3_u32 v{t0}, v{t0}, v{af+6}, v{af+7}", f"v_max_u32 v{t0}, v{t0}, v{t1}", f"v_cmp_eq_u32 vcc, -1, v{t0}"]
    def check(n, skip=0):
        emit(a,chk_ops(n)[skip:]); a(f"s_cbranch_vccnz G_RT{n}"); a.label(f"G_OK{n}")
        def retry():
            a.label(f"G_RT{n}"); a.vm=[]; a.lg=[]
            a(f"s_mov_b32 s{sE}, {SPIN_MAX}")
            a.label(f"G_RL{n}")
            a(f"s_sleep {O.rsl}")
            aload(n); a("s_waitcnt vmcnt(0)")
            emit(a,chk_ops(n)); a(f"s_cbranch_vccz G_OK{n}")
            a(f"s_sub_u32 s{sE}, s{sE}, 1"); a(f"s_cmp_lg_u32 s{sE}, 0"); a(f"s_cbranch_scc1 G_RL{n}")
            a(f"s_branch G_OK{n}")
        ool.append(retry)
    def step3(n):
        af=AF+8*(n%NR); wb=WR+8*POS[n] if POS[n]<NREG else WB3+8*(n&1)
        if n%2==0 and n<28: stamp(a,1+n//2,2)
        nxt = n+1<NS3 and POS[n+1]>=NREG
        a.wait(vm=[("a",n)]+([("w",POS[n+1])] if nxt else []), lg=[("r3",POS[n])])
        al = aload_ops(n+NA) if n+NA<NS3 else []
        def mf(i):
            tb,cb=i>>1,i&1; A=ACC3+16*i
            p_,q_=(vr(af+4*tb,4),vr(wb+4*cb,4)) if O.fr else (vr(wb+4*cb,4),vr(af+4*tb,4))
            a(f"{MF} {vr(A,16)}, {p_}, {q_}, {'0' if n==0 else vr(A,16)}")
            if O.fr and n==NS3-1 and i==0: a(f"s_mov_b32 m0, s{s1K}")
        if n==21:
            if nxt: rd3(POS[n+1], WB3+8*((n+1)&1))
            for o,t in al: a(o,t)
            a(f"s_cmp_ge_u32 s{sI}, 2"); a(f"s_cbranch_scc1 G_SK21")
            for i in range(4): mf(i)
            a.label(f"G_SK21")
        else:
            mf(0)
            if nxt: rd3(POS[n+1], WB3+8*((n+1)&1))
            mf(1)
            for o,t in al[:-1]: a(o,t)
            mf(2)
            for o,t in al[-1:]: a(o,t)
            if O.ck and 22<=n+1<NS3:
                a.wait(vm=[("a",n+1)]); emit(a,chk_ops(n+1)[:3]); mf(3); check(n+1,3)
                return
            mf(3)
        if 22<=n+1<NS3:
            a.wait(vm=[("a",n+1)]); check(n+1)
    for n in range(NA): aload(n)
    if O.prio2==2: a("s_setprio 0")
    for n in range(NS3):
        if n==21: stamp(a,11)
        step3(n)
    stamp(a,12)
    for p in range(4):
        for q in range(4):
            if not O.fr: a(f"ds_write_b128 v{vW+q}, {vr(ACC3+16*p+4*q,4)} offset:{p*16384}", "red")
            else:
                for r in range(4): a(f"ds_write_addtid_b32 v{ACC3+16*p+4*q+r} offset:{(4*p+q)*4096+r*256}", "red")
    a("s_branch FINAL")
    for f in ool: f()

def a_wave(a, pre):
    vSt,vL,vVo,vT0,vT1,vM,vM2,vBig,vGt = 0,1,2,3,4,5,6,7,8
    vP=10
    MK=12; Q=20; KF=28; VF=68; SM=148; S0=164; S1=180; CM=196; O_=212; P=228; P2=236
    vX0,vX1,vWq,vWg,vWu,vWg2,vWu2,vD,vBig2,vSy,vOne = 228,229,230,231,232,233,234,244,246,247,248
    PK=SM
    sXo,sQo,sFo,sLx,sLq,sK,sIt,sSl = sA,sB,sC,sD,sE,sF,64,65
    def a_setup():
        pre()
        a(f"v_and_b32 v{vL}, 63, v0")
        a(f"v_lshrrev_b32 v{vT0}, 3, v{vL}"); a(f"v_lshrrev_b32 v{vT1}, 4, v{vL}")
        a(f"v_and_b32 v{vX0}, 7, v{vL}"); a(f"v_xor_b32 v{vX0}, v{vX0}, v{vT1}"); a(f"v_lshlrev_b32 v{vX0}, 4, v{vX0}")
        a(f"v_lshl_add_u32 v{vX0}, v{vT0}, 10, v{vX0}")
        a(f"v_xor_b32 v{vX1}, 64, v{vX0}"); a(f"v_add_u32 v{vX1}, {8192-1024}, v{vX1}")
        a(f"v_lshrrev_b32 v{vT0}, 2, v{vL}"); a(f"v_and_b32 v{vT1}, 3, v{vL}")
        a(f"v_mul_u32_u24 v{vWq}, 3072, v{vT0}"); a(f"v_lshl_add_u32 v{vWq}, v{vT1}, 4, v{vWq}")
        a(f"s_lshl_b32 s{sXo}, s{sRB}, 2"); a(f"s_add_u32 s{sXo}, s{sXo}, s{sI}"); a(f"s_lshl_b32 s{sXo}, s{sXo}, 15")
        a(f"s_lshl_b32 s{sT}, s{sI}, 8"); a(f"s_add_u32 s{sT}, s{sT}, s{sCG}"); a(f"s_mul_i32 s{sQo}, s{sT}, 192")
        a(f"s_lshl_b32 s{sLx}, s{sI}, 12"); a(f"s_mul_i32 s{sLq}, s{sI}, 3072")
        a(f"s_mov_b32 s{sIt}, 0")
        a(f"v_lshlrev_b32 v{vSt}, 4, v{vL}")
        a(f"s_mov_b32 m0, {L_GW}")
        if O.tlb:
            a(f"s_lshr_b32 s70, s2, 1"); a(f"s_and_b32 s70, s70, 12"); a(f"s_add_u32 s70, s70, s{sI}")
            a(f"s_lshl_b32 s71, s70, 2"); a(f"s_lshr_b32 s71, 0x98982654, s71"); a("s_and_b32 s71, s71, 15")
            a(f"s_cmp_ge_u32 s70, 8"); a("s_cselect_b32 s71, 10, s71"); a("s_cselect_b32 s70, s70, 8")
            a("s_lshl_b32 s71, s71, 3"); a("s_load_dwordx2 s[74:75], s[0:1], s71")
            a("s_sub_u32 s70, s70, 8"); a("s_lshl_b32 s70, s70, 21"); a("s_bitset1_b32 s70, 7")
        if O.ek: kargs(a); late_srds(a)
        qs(a)
        a("s_waitcnt lgkmcnt(0)")
        qs(a)
        stamp0(a)
        if O.adly: a(f"s_sleep {O.adly}")
        a(f"buffer_load_dwordx4 v{vSt}, {sr(sGW,4)}, 0 offen lds")
        if O.tlb: a("s_load_dword s76, s[74:75], s70")
    def issue1():
        a(f"s_add_u32 s{sK}, s{sPH}, s{sIt}"); a(f"s_and_b32 s{sK}, s{sK}, 7")
        a(f"s_and_b32 s{sSl}, s{sIt}, 3"); a(f"s_mul_i32 s{sSl}, s{sSl}, {SLOT}")
        def wp(t):
            if t==0: a(f"s_add_u32 s{sT3}, s{sSl}, s{sLq}"); a(f"s_mul_i32 s{sT2}, s{sK}, {64*3072}")
            a(f"s_add_u32 m0, s{sT3}, {16384+t*1024-t*64}")
            if t==0: a(f"s_add_u32 s{sT2}, s{sT2}, s{sQo}")
            a(f"buffer_load_dwordx4 v{vWq}, {sr(sWQ,4)}, s{sT2} offen offset:{t*64} lds")
        for t in range(O.wf): wp(t)
        a(f"s_add_u32 m0, s{sLx}, s{sSl}")
        a(f"s_lshl_b32 s{sT}, s{sK}, 7"); a(f"s_add_u32 s{sT}, s{sT}, s{sXo}")
        a(f"buffer_load_dwordx4 v{vX0}, {sr(sX,4)}, s{sT} offen lds")
        qs(a)
        a(f"buffer_load_dwordx4 v{vX1}, {sr(sX,4)}, s{sT} offen offset:1024 lds")
        a(f"s_add_u32 s{sT}, s{sT}, {16384-2048}")
        a(f"buffer_load_dwordx4 v{vX0}, {sr(sX,4)}, s{sT} offen offset:2048 lds")
        a(f"buffer_load_dwordx4 v{vX1}, {sr(sX,4)}, s{sT} offen offset:3072 lds")
        qs(a)
        for t in range(O.wf,3): wp(t)
        qs(a)
    lgE=list(a.lg)
    if O.lay: a("s_branch A_SETUP"); a.lg=[]
    else: a_setup()
    a.label("A_L1")
    issue1()
    a(f"s_add_u32 s{sIt}, s{sIt}, 1"); a(f"s_cmp_eq_u32 s{sIt}, 1")
    if O.probe==5:
        a("s_cbranch_scc0 A_Q"); qflush(a); a("s_branch A_L1"); a.label("A_Q"); a("s_waitcnt lgkmcnt(0)")
    else: a("s_cbranch_scc1 A_L1")
    a("s_waitcnt vmcnt(7)"); a("s_barrier")
    a(f"s_cmp_lt_u32 s{sIt}, 8"); a("s_cbranch_scc1 A_L1")
    a("s_branch A_P2")
    if O.lay:
        a.label("A_SETUP"); a.lg=lgE; a.vm=[]
        a_setup(); a("s_branch A_L1")
    yield
    a.label("A_P2")
    a.lg=[]; a.vm=[(("d",7),set())]*7
    if not O.ek: kargs(a); late_srds(a)
    late_scalars(a)
    a(f"v_mul_u32_u24 v{vWg}, 2752, v{vT0}"); a(f"v_xor_b32 v{vWu}, 2, v{vT1}")
    a(f"v_lshl_add_u32 v{vWu}, v{vWu}, 4, v{vWg}"); a(f"v_lshl_add_u32 v{vWg}, v{vT1}, 4, v{vWg}")
    a(f"v_add_u32 v{vWg2}, s{sLT}, v{vWg}"); a(f"v_add_u32 v{vWu2}, s{sLT}, v{vWu}")
    a(f"s_mul_i32 s{sFo}, s{sI}, {16*2752}"); a(f"s_lshl_b32 s{sT}, s{sSB}, 6"); a(f"s_add_u32 s{sFo}, s{sFo}, s{sT}")
    a("s_waitcnt lgkmcnt(0)")
    a(f"s_lshl_b32 s{sLq}, s{sLq}, 1")
    def dmas(st):
        q=st&3; tg=("d",st)
        a(f"s_add_u32 s{sK}, s{sPH}, {st&7}"); a(f"s_and_b32 s{sK}, s{sK}, 7")
        a(f"s_mul_i32 s{sT2}, s{sK}, {64*2752}"); a(f"s_add_u32 s{sT2}, s{sT2}, s{sFo}")
        for m in range(2):
            for t in range(3):
                v=(vWu2 if m else vWg2) if t==2 else (vWu if m else vWg)
                a(f"s_add_u32 m0, s{sLq}, {q*SLOT+(m*3+t)*1024-t*64}")
                a(f"buffer_load_dwordx4 v{v}, {sr(sWU if m else sWG,4)}, s{sT2} offen offset:{t*64} lds", tg)
    sQB,sKo,sVo,sN = sG_,sA,sB,sD
    korder=[8,0,7,6,5,4,3,2,1,9]
    def setup_attn(part):
        if part==0:
            emit(a,w3_lane_ops(vD,vL,vM,vM2))
            a(f"s_and_b32 s{sT}, s{sI}, 1"); a(f"s_lshl_b32 s{sHead}, s{sCG}, 1"); a(f"s_add_u32 s{sHead}, s{sHead}, s{sT}")
            a(f"s_and_b32 s{sT2}, s{sI}, 2"); a(f"s_lshl_b32 s{sQB}, s{sRB}, 2"); a(f"s_add_u32 s{sQB}, s{sQB}, s{sT2}")
            a(f"v_mov_b32 v{vSy}, {L_SY}"); a(f"v_mov_b32 v{vOne}, 1")
        if part==1:
            a(f"v_mov_b32 v{vGt}, 0x3f803f80"); a(f"v_mov_b32 v{vGt+1}, 0x3f803f80")
            for r in range(0,80,2):
                if r&4: a(f"v_mov_b64 {vr(VF+r,2)}, {vr(vGt,2)}")
        if part==2:
            a(f"v_and_b32 v{vT0}, 31, v{vL}")
            a(f"v_lshrrev_b32 v{vT1}, 5, v{vL}"); a(f"v_lshlrev_b32 v{vT1}, 2, v{vT1}"); a(f"v_sub_u32 v{vT0}, v{vT0}, v{vT1}")
            for r in range(16): a(f"v_cmp_le_i32 {sr(sM+2*r,2)}, {(r&3)+8*(r>>2)}, v{vT0}")
            a(f"v_mov_b32 v{vBig}, 0xffff"); a(f"v_mov_b32 v{vM}, 0xffff0000")
            for i in range(8):
                a(f"v_cndmask_b32 v{MK+i}, 0, v{vBig}, {sr(sM+4*i,2)}")
                a(f"v_cndmask_b32 v{vT1}, 0, v{vM}, {sr(sM+4*i+2,2)}")
                a(f"v_or_b32 v{MK+i}, v{MK+i}, v{vT1}")
            a(f"v_mov_b32 v{vBig}, {f2u(-1e30):#x}"); a(f"v_mov_b32 v{vBig2}, {f2u(2.0**60):#x}")
            a(f"v_and_b32 v{vVo}, 47, v{vL}"); a(f"v_lshlrev_b32 v{vVo}, 4, v{vVo}")
            a(f"v_and_b32 v{vT1}, 16, v{vL}"); a(f"v_lshl_add_u32 v{vVo}, v{vT1}, 6, v{vVo}")
        if part==3:
            a(f"v_and_b32 v{vT0}, 15, v{vL}"); a(f"v_min_u32 v{vT0}, 9, v{vT0}")
            a(f"v_and_b32 v{vT1}, 1, v{vL}"); a(f"v_or_b32 v{vT1}, 8, v{vT1}")
            a(f"v_cmp_le_u32 vcc, 32, v{vL}"); a(f"v_cndmask_b32 v{vT0}, v{vT0}, v{vT1}, vcc")
            a(f"s_sub_u32 s{sT}, s{sQB}, 8"); a(f"v_add_u32 v{vT0}, s{sT}, v{vT0}"); a(f"v_max_i32 v{vT0}, 0, v{vT0}")
            a(f"v_add_u32 v{vT1}, 16, v{vL}"); a(f"v_and_b32 v{vT1}, 48, v{vT1}"); a(f"v_cndmask_b32 v{vT1}, v{vT1}, 0, vcc")
            a(f"v_add_u32 v{vT1}, s{sCG}, v{vT1}"); a(f"v_mul_u32_u24 v{vT1}, 43, v{vT1}"); a(f"v_lshrrev_b32 v{vT1}, 7, v{vT1}")
            a(f"v_lshrrev_b32 v{vM}, 2, v{vT0}"); a(f"v_lshl_add_u32 v{vT1}, v{vM}, 4, v{vT1}"); a(f"v_lshlrev_b32 v{vT1}, 7, v{vT1}")
            a(f"v_and_b32 v{vT0}, 3, v{vT0}"); a(f"v_lshl_add_u32 v{vM2}, v{vT0}, 2, v{vT1}")
            a(f"s_lshl_b32 s{sKo}, s{sHead}, 16")
            a(f"s_and_b32 s{sT}, s{sI}, 1"); a(f"s_lshl_b32 s{sT}, s{sT}, 8")
            a(f"s_lshl_b32 s{sVo}, s{sCG}, 17"); a(f"s_add_u32 s{sVo}, s{sVo}, s{sT}"); a(f"s_add_u32 s{sVo}, s{sVo}, {WS_V}")
            a(f"s_mov_b32 s{sN}, {WS_F}")
        if part==4:
            a(f"v_and_b32 v{vT1}, 31, v{vL}"); a(f"s_and_b32 s{sT}, s{sI}, 2"); a(f"s_lshl_b32 s{sT}, s{sT}, 7"); a(f"s_add_u32 s{sT}, s{sT}, {L_G}")
            a(f"v_lshl_add_u32 v{vT1}, v{vT1}, 2, s{sT}")
            for u in range(2): a(f"ds_read_b32 v{vGt+u}, v{vT1} offset:{u*128}")
            a("s_waitcnt lgkmcnt(0)")
    def unpark():
        a(f"s_add_u32 s{sT}, s{s1K}, {PARK}"); a(f"v_add_u32 v{vT0}, s{sT}, v{vSt}")
        for i in range(6): a(f"ds_read_b128 {vr(PK+4*i,4)}, v{vT0} offset:{i*4096}")
    def qstore(i):
        emit(a,qaddr_ops(i))
        a(f"buffer_store_dwordx4 {vr(PK+4*i,4)}, v{vSt}, {sr(sWS,4)}, s{sT} offen sc1", "qst")
    def vswap(ns):
        for n in ns:
            a.wait(vm=[("v",n)])
            for r in range(4): a(f"v_permlane16_swap_b32 v{VF+8*n+r}, v{VF+8*n+4+r}")
    def a2flag():
        a(f"s_lshl_b32 s{sT3}, s{sI}, 2"); a(f"v_add_u32 v{vT0}, s{sT3}, v{vSy}")
        a("s_waitcnt vmcnt(0)"); a(f"ds_write_b32 v{vT0}, v{vOne} offset:{L_AF-L_SY}")
    def attn_slow():
        for u in range(2):
            Qr=vr(Q+4*u,4); nd=8+u; no=u
            K_=lambda n: vr(KF+4*n,4)
            a(f"s_add_u32 s{sN}, s{sQB}, {u}")
            if u==0: stamp(a,7)
            a(f"{MF} {vr(S0,16)}, {K_(nd)}, {Qr}, 0")
            a(f"{MF} {vr(S1,16)}, {K_(no)}, {Qr}, 0")
            bufs=[CM,O_,S0,S1]
            def smf(d, c="0", buf=None): a(f"{MF} {vr(buf,16)}, {K_(nd-d)}, {Qr}, {c}")
            smf(1,buf=bufs[0]); smf(2,buf=bufs[1])
            a(f"s_cmp_ge_u32 s{sN}, 8"); a(f"s_cbranch_scc1 AT_OLD{u}")
            for r in range(16): a(f"v_mov_b32 v{S1+r}, v{vBig}")
            a.label(f"AT_OLD{u}")
            for r in range(16): a(f"v_cndmask_b32 v{SM+r}, v{S1+r}, v{S0+r}, {sr(sM+2*r,2)}")
            a(f"v_max3_f32 v{vM}, v{SM}, v{SM+1}, v{SM+2}")
            a(f"v_max3_f32 v{vM2}, v{SM+3}, v{SM+4}, v{SM+5}")
            for r in range(6,16,4):
                a(f"v_max3_f32 v{vM}, v{vM}, v{SM+r}, v{SM+r+1}")
                if r+2<16: a(f"v_max3_f32 v{vM2}, v{vM2}, v{SM+r+2}, v{SM+r+3}")
            for d in range(1,8):
                a(f"s_cmp_lt_u32 s{sN}, {d}"); a(f"s_cbranch_scc1 AT_MX{u}")
                if d+2<8: smf(d+2,buf=bufs[(d+1)%4])
                b=bufs[(d-1)%4]
                for r in range(0,16,4):
                    a(f"v_max3_f32 v{vM}, v{vM}, v{b+r}, v{b+r+1}")
                    a(f"v_max3_f32 v{vM2}, v{vM2}, v{b+r+2}, v{b+r+3}")
            a.label(f"AT_MX{u}")
            a(f"v_max_f32 v{vM}, v{vM}, v{vM2}")
            a(f"v_mov_b32 v{vM2}, v{vM}")
            if u==0: a2flag()
            a(f"v_permlane32_swap_b32 v{vM}, v{vM2}")
            a(f"v_max_f32 v{vM}, v{vM}, v{vM2}")
            a(f"v_sub_f32 v{CM}, 0, v{vM}")
            a(f"v_mov_b32 v{CM+1}, v{CM}")
            for r in range(2,16,2): a(f"v_mov_b64 {vr(CM+r,2)}, {vr(CM,2)}")
            sb=[S0,S1]
            a(f"v_sub_f32 v{SM}, v{SM}, v{vM}"); a(f"v_sub_f32 v{SM+1}, v{SM+1}, v{vM}")
            smf(1,vr(CM,16),sb[1])
            for r in range(2,16): a(f"v_sub_f32 v{SM+r}, v{SM+r}, v{vM}")
            for r in range(16): a(f"v_exp_f32 v{SM+r}, v{SM+r}")
            for r in range(8): a(f"v_cvt_pk_bf16_f32 v{P2+r}, v{SM+2*r}, v{SM+2*r+1}")
            for r in range(8): a(f"v_and_b32 v{P+r}, v{P2+r}, v{MK+r}")
            a(f"{MF} {vr(O_,16)}, {vr(VF+8*nd,4)}, {vr(P,4)}, 0")
            for r in range(4): a(f"v_xor_b32 v{P2+r}, v{P2+r}, v{P+r}")
            a(f"{MF} {vr(O_,16)}, {vr(VF+8*nd+4,4)}, {vr(P+4,4)}, {vr(O_,16)}")
            for r in range(4,8): a(f"v_xor_b32 v{P2+r}, v{P2+r}, v{P+r}")
            a(f"{MF} {vr(O_,16)}, {vr(VF+8*no,4)}, {vr(P2,4)}, {vr(O_,16)}"); a(f"{MF} {vr(O_,16)}, {vr(VF+8*no+4,4)}, {vr(P2+4,4)}, {vr(O_,16)}")
            for d in range(1,8):
                a(f"s_cmp_lt_u32 s{sN}, {d}"); a(f"s_cbranch_scc1 AT_FIN{u}")
                b=sb[d&1]; pb=P if d&1 else P2; n=nd-d
                for r in range(4): a(f"v_exp_f32 v{b+r}, v{b+r}")
                if d+1<8: smf(d+1,vr(CM,16),sb[(d+1)&1])
                for r in range(4,9): a(f"v_exp_f32 v{b+r}, v{b+r}")
                for r in range(4): a(f"v_cvt_pk_bf16_f32 v{pb+r}, v{b+2*r}, v{b+2*r+1}")
                for r in range(9,11): a(f"v_exp_f32 v{b+r}, v{b+r}")
                a(f"{MF} {vr(O_,16)}, {vr(VF+8*n,4)}, {vr(pb,4)}, {vr(O_,16)}")
                for r in range(11,16): a(f"v_exp_f32 v{b+r}, v{b+r}")
                for r in range(4,8): a(f"v_cvt_pk_bf16_f32 v{pb+r}, v{b+2*r}, v{b+2*r+1}")
                a(f"{MF} {vr(O_,16)}, {vr(VF+8*n+4,4)}, {vr(pb+4,4)}, {vr(O_,16)}")
            a.label(f"AT_FIN{u}")
            a(f"s_mul_i32 s{sT}, s{sN}, {A3_TB}"); a(f"s_lshl_b32 s{sT2}, s{sHead}, 10"); a(f"s_add_u32 s{sT}, s{sT}, s{sT2}")
            a(f"s_add_u32 s{sT}, s{sT}, {WS_A3+86*1024}")
            a(f"v_rcp_f32 v{vT0}, v{O_+8}")
            a(f"v_mul_f32 v{vT0}, v{vT0}, v{vGt+u}")
            for r in range(8): a(f"v_mul_f32 v{O_+r}, v{O_+r}, v{vT0}")
            for r in range(4): a(f"v_cvt_pk_bf16_f32 v{SM+r}, v{O_+2*r}, v{O_+2*r+1}")
            for r in range(4): a(f"v_min_u32 v{SM+r}, -2, v{SM+r}")
            a(f"buffer_store_dwordx4 {vr(SM,4)}, v{vSt}, {sr(sWS,4)}, s{sT} offen sc1", "ost")
            stamp(a,8+u)
    def attn_fast():
        K_=lambda n: vr(KF+4*n,4)
        sb=[S0,S1]; sOv=0
        def smf(u,d): a(f"{MF} {vr(sb[d&1],16)}, {K_(8+u-d)}, {vr(Q+4*u,4)}, {vr(CM,16)}")
        def head(u):
            for r in range(16): a(f"v_cndmask_b32 v{SM+r}, v{SM+r}, v{S0+r}, {sr(sM+2*r,2)}")
            a(f"v_max3_f32 v{vM}, v{SM}, v{SM+1}, v{SM+2}")
            a(f"v_max3_f32 v{vM2}, v{SM+3}, v{SM+4}, v{SM+5}")
            a(f"v_max3_f32 v{vM}, v{vM}, v{SM+6}, v{SM+7}"); a(f"v_max3_f32 v{vM2}, v{vM2}, v{SM+8}, v{SM+9}")
            a(f"v_max3_f32 v{vM}, v{vM}, v{SM+10}, v{SM+11}"); a(f"v_max3_f32 v{vM2}, v{vM2}, v{SM+12}, v{SM+13}")
            a(f"v_max3_f32 v{vM}, v{vM}, v{SM+14}, v{SM+15}")
            a(f"v_max_f32 v{vM}, v{vM}, v{vM2}")
            a(f"v_mov_b32 v{vM2}, v{vM}")
            a(f"s_mul_i32 s{sT}, s{sQB}, {A3_TB}"); a(f"s_lshl_b32 s{sT2}, s{sHead}, 10")
            a(f"v_permlane32_swap_b32 v{vM}, v{vM2}")
            a(f"v_max_f32 v{vM}, v{vM}, v{vM2}")
            a(f"v_sub_f32 v{CM}, 0, v{vM}")
            a(f"v_sub_f32 v{CM+1}, 0, v{vM}")
            for r in range(2,16,2): a(f"v_mov_b64 {vr(CM+r,2)}, {vr(CM,2)}")
            a(f"v_sub_f32 v{SM}, v{SM}, v{vM}"); a(f"v_sub_f32 v{SM+1}, v{SM+1}, v{vM}")
            smf(u,1)
        def fin(u):
            a(f"s_add_u32 s{sT}, s{sT}, s{sT2}"); a(f"s_add_u32 s{sT}, s{sT}, {WS_A3+86*1024+u*A3_TB}")
            a(f"v_rcp_f32 v{vT0}, v{O_+8}")
            a(f"v_cmp_ngt_f32 vcc, v{vBig2}, v{O_+8}")
            a(f"v_mul_f32 v{vT0}, v{vT0}, v{vGt+u}")
            a("s_branch AT_SLOW" if O.forceslow==u+1 else "s_cbranch_vccnz AT_SLOW")
            for r in range(8): a(f"v_mul_f32 v{O_+r}, v{O_+r}, v{vT0}")
            for r in range(4): a(f"v_cvt_pk_bf16_f32 v{P+r}, v{O_+2*r}, v{O_+2*r+1}")
            for r in range(4): a(f"v_min_u32 v{P+r}, -2, v{P+r}")
            a(f"buffer_store_dwordx4 {vr(P,4)}, v{vSt}, {sr(sWS,4)}, s{sT} offen sc1", "ost")
            stamp(a,8+u)
        def body(u):
            nd=8+u; no=u
            for r in range(2,16): a(f"v_sub_f32 v{SM+r}, v{SM+r}, v{vM}")
            for r in range(16): a(f"v_exp_f32 v{SM+r}, v{SM+r}")
            if u==0: a2flag()
            for r in range(8): a(f"v_cvt_pk_bf16_f32 v{P2+r}, v{SM+2*r}, v{SM+2*r+1}")
            for r in range(6): a(f"v_and_b32 v{P+r}, v{P2+r}, v{MK+r}")
            a(f"{MF} {vr(O_,16)}, {vr(VF+8*nd,4)}, {vr(P,4)}, 0")
            for r in range(6,8): a(f"v_and_b32 v{P+r}, v{P2+r}, v{MK+r}")
            for r in range(4): a(f"v_xor_b32 v{P2+r}, v{P2+r}, v{P+r}")
            a(f"{MF} {vr(O_,16)}, {vr(VF+8*nd+4,4)}, {vr(P+4,4)}, {vr(O_,16)}")
            for r in range(4,8): a(f"v_xor_b32 v{P2+r}, v{P2+r}, v{P+r}")
            pend=[f"{MF} {vr(O_,16)}, {vr(VF+8*no,4)}, {vr(P2,4)}, {vr(O_,16)}", f"{MF} {vr(O_,16)}, {vr(VF+8*no+4,4)}, {vr(P2+4,4)}, {vr(O_,16)}"]
            for d in range(1,8):
                b=sb[d&1]; pb=P if d&1 else P2; n=nd-d
                a(f"v_exp_f32 v{b}, v{b}")
                if len(pend)>1: a(pend.pop(0))
                for r in range(1,4): a(f"v_exp_f32 v{b+r}, v{b+r}")
                a(pend.pop(0))
                for r in range(4,8): a(f"v_exp_f32 v{b+r}, v{b+r}")
                if d<7: smf(u,d+1)
                elif u==0: a(f"{MF} {vr(S0,16)}, {K_(9)}, {vr(Q+4,4)}, 0")
                a(f"v_exp_f32 v{b+8}, v{b+8}")
                for r in range(4): a(f"v_cvt_pk_bf16_f32 v{pb+r}, v{b+2*r}, v{b+2*r+1}")
                for r in range(9,11): a(f"v_exp_f32 v{b+r}, v{b+r}")
                a(f"{MF} {vr(O_,16)}, {vr(VF+8*n,4)}, {vr(pb,4)}, {vr(O_,16)}")
                for r in range(11,14): a(f"v_exp_f32 v{b+r}, v{b+r}")
                if d==7 and u==0: a(f"{MF} {vr(SM,16)}, {K_(1)}, {vr(Q+4,4)}, 0")
                for r in range(14,16): a(f"v_exp_f32 v{b+r}, v{b+r}")
                for r in range(4,8): a(f"v_cvt_pk_bf16_f32 v{pb+r}, v{b+2*r}, v{b+2*r+1}")
                pend=[f"{MF} {vr(O_,16)}, {vr(VF+8*n+4,4)}, {vr(pb+4,4)}, {vr(O_,16)}"]
            a(pend.pop(0))
        stamp(a,7)
        a(f"{MF} {vr(S0,16)}, {K_(8)}, {vr(Q,4)}, 0")
        a(f"{MF} {vr(SM,16)}, {K_(0)}, {vr(Q,4)}, 0")
        head(0); body(0); head(1); fin(0)
        a(f"s_mul_i32 s{sT}, s{sQB}, {A3_TB}")
        body(1); fin(1)
    def apoison():
        a(f"v_mov_b64 {vr(S1,2)}, -1"); a(f"v_mov_b64 {vr(S1+2,2)}, -1")
        a(f"s_mul_i32 s{sT}, s{sQB}, {A3_TB}"); a(f"s_lshl_b32 s{sT2}, s{sHead}, 10"); a(f"s_add_u32 s{sT}, s{sT}, s{sT2}"); a(f"s_add_u32 s{sT}, s{sT}, {WS_A3+86*1024}")
        a(f"buffer_store_dwordx4 {vr(S1,4)}, v{vSt}, {sr(sWS,4)}, s{sT} offen sc1"); a(f"s_add_u32 s{sT}, s{sT}, {A3_TB}")
        a(f"buffer_store_dwordx4 {vr(S1,4)}, v{vSt}, {sr(sWS,4)}, s{sT} offen sc1")
    stages={k:([k+2] if k<O.dbl else [k+2,k+3] if k==O.dbl else [k+3]) for k in range(6,13)}
    t0sched=[{7:[0],10:[1],11:[2,3],12:[4,5,6]},{7:[0],8:[1],10:[2],11:[3,4],12:[5,6]},{10:[0,1],11:[2,3],12:[4,5,6]},{11:[0,1,2],12:[3,4,5,6]},{12:[0,1,2,3,4,5,6]},{7:[0],8:[1],10:[2,3],12:[4,5,6]},{7:[0],8:[1],10:[2,3]},{7:[0],10:[1],12:[2]},{10:[0],12:[1]},{},{12:[0,1]},{7:[0],8:[1],10:[2],12:[3]},{6:[0],7:[1],8:[2],9:[3],10:[4],12:[5,6]},{7:[0,1],10:[2,3],12:[4,5,6]},{7:[0,1,2],10:[3,4],12:[5,6]},{7:[0],8:[1],9:[2],10:[3,4],12:[5,6]},{8:[0,1],10:[2,3],12:[4,5,6]},{7:[0,1],9:[2,3],12:[4,5,6]}][O.t0s]
    t0post=[p for p in range(NT0) if not any(p in v for v in t0sched.values())]
    a(f"v_and_b32 v{vBig}, 15, v{vL}"); a(f"v_lshlrev_b32 v{vBig}, 2, v{vBig}")
    for k in range(6,13):
        if k==6: a(f"buffer_load_dword v{vP}, v{vBig}, {sr(sDBG,4)}, 0 offen sc1", "init")
        if k==9 and O.park: unpark()
        if k==8 and O.s8: a(f"s_sleep {O.s8}")
        for st in stages[k]: dmas(st)
        if k==6: setup_attn(0)
        if k==9 and O.park:
            a("s_waitcnt lgkmcnt(0)")
        if O.park:
            for i in [{9:[0,1,2],10:[3,4,5]},{9:[0,1],10:[2,3],11:[4,5]},{9:[0,1,2,3,4,5]},{9:[0,1],10:[2,3,4,5]}][O.qsch].get(k,[]): qstore(i)
        if k==O.pa: apoison()
        for p in t0sched.get(k,[]): w3_dma(a,p,vD,("t0",p))
        if O.p0<=k<O.p0+4: stamp(a,3+3*(k-O.p0),1)
        if k in (8,9,10,11): setup_attn(k-7)
        if k==O.sigk and O.park: signal(a,0,vT0,"qst")
        a.wait(vm=[("d",k+1)])
        if k==7: poll(a,vP,vBig,sDBG,"0",first_tag="init")
        if O.p0<=k+1<O.p0+4: stamp(a,1+3*(k+1-O.p0),1)
        a("s_barrier")
        if O.p0<=k+1<O.p0+4: stamp(a,2+3*(k+1-O.p0),1)
        if k+1 in (8,13): stamp(a,{8:3,13:4}[k+1])
    assert all(p>=O.npr for p in t0post)
    a(f"buffer_load_dword v{vP}, v{vM2}, {sr(sWS,4)}, s{sN} offen sc1", "qf")
    late = bool(t0post) or O.pa==13
    if O.npr<NT0:
        a.wait(vm=[("d",15)]+[("t0",p) for p in range(O.npr)]); lds_inc(a,vSy,vOne,L_C14-L_SY)
        if not late: a("s_waitcnt vmcnt(1)"); lds_inc(a,vSy,vOne,L_OF-L_SY)
    else:
        a("s_waitcnt vmcnt(1)"); lds_inc(a,vSy,vOne,L_C14-L_SY)
    def latework(thr):
        if O.pa==13: apoison()
        for p in t0post:
            if thr: a(f"s_waitcnt vmcnt({thr})")
            w3_dma(a,p,vD,("t0",p))
    if late and O.tp==0: latework(0)
    poll(a,vP,vM2,sWS,f"s{sN}",first_tag="qf")
    stamp(a,5)
    a(f"s_lshl_b32 s{sT}, s{sQB}, 10"); a(f"s_add_u32 s{sT}, s{sT}, s{sKo}")
    for u in range(2): a(f"buffer_load_dwordx4 {vr(Q+4*u,4)}, v{vSt}, {sr(sWS,4)}, s{sT} offen offset:{u*1024} sc1", ("q",u))
    a(f"s_add_u32 s{sKo}, s{sKo}, {WS_K}")
    for n in korder:
        a(f"s_add_i32 s{sT}, s{sQB}, {n-8}"); a(f"s_max_i32 s{sT}, s{sT}, 0"); a(f"s_lshl_b32 s{sT}, s{sT}, 11"); a(f"s_add_u32 s{sT}, s{sT}, s{sVo}")
        a(f"buffer_load_dwordx4 {vr(VF+8*n,4)}, v{vVo}, {sr(sWS,4)}, s{sT} offen sc1", ("v",n))
        if O.thr: a(f"s_waitcnt vmcnt({O.thr})")
    for n in korder:
        a(f"s_add_i32 s{sT}, s{sQB}, {n-8}"); a(f"s_max_i32 s{sT}, s{sT}, 0"); a(f"s_lshl_b32 s{sT}, s{sT}, 10"); a(f"s_add_u32 s{sT}, s{sT}, s{sKo}")
        a(f"buffer_load_dwordx4 {vr(KF+4*n,4)}, v{vSt}, {sr(sWS,4)}, s{sT} offen sc1", ("k",n))
        if O.thr: a(f"s_waitcnt vmcnt({O.thr})")
    if late and O.tp==0:
        a.wait(vm=[("q",0)]); lds_inc(a,vSy,vOne,L_OF-L_SY)
    if late and O.tp==1:
        latework(O.thrA); a("s_waitcnt vmcnt(0)"); lds_inc(a,vSy,vOne,L_OF-L_SY)
    stamp(a,6)
    if O.nA2: lds_poll(a,vSy,vT1,4,L_C13-L_SY)
    if O.ap: a("s_setprio 3")
    prep=[]
    def qscale(h):
        a.wait(vm=[("q",1)])
        for r in range(4*h,4*h+4):
            a(f"v_lshlrev_b32 v{S0+2*r}, 16, v{Q+r}"); a(f"v_and_b32 v{S0+2*r+1}, 0xffff0000, v{Q+r}")
        for r in range(8*h,8*h+8): a(f"v_mul_f32 v{S0+r}, {f2u(0.25*LOG2E):#x}, v{S0+r}")
        for r in range(4*h,4*h+4): a(f"v_cvt_pk_bf16_f32 v{Q+r}, v{S0+2*r}, v{S0+2*r+1}")
    prep=[lambda:qscale(0),lambda:qscale(1)]+[(lambda i=i: vswap(korder[2*i:2*i+2])) for i in range(5)]
    for i,p in enumerate(A2LIST[:O.nA2]):
        if O.thrA: a(f"s_waitcnt vmcnt({O.thrA})")
        w3_dma(a,p,vD,("a2",p))
        if prep and not O.ap: prep.pop(0)()
    if O.afl: a2flag()
    if O.ap: a("s_setprio 0")
    stamp(a,10)
    for f in prep: f()
    a.wait(vm=[("k",n) for n in range(10)])
    if O.prio2: a("s_setprio 1")
    a(f"s_cmp_lt_u32 s{sQB}, 8"); a("s_cbranch_scc1 AT_SLOW")
    vm0=list(a.vm)
    attn_fast()
    a.label("AT_DONE")
    yield
    a.label("AT_SLOW"); a.vm=list(vm0); a.lg=[]
    attn_slow(); a("s_branch AT_DONE")
    yield

def ids(a):
    a(f"s_bfe_u32 s{sRB}, s2, 0x10002"); a(f"s_lshl_b32 s{sRB}, s{sRB}, 3")
    a(f"s_bfe_u32 s{sT}, s2, 0x30003"); a(f"s_add_u32 s{sRB}, s{sRB}, s{sT}")
    a(f"s_and_b32 s{sCG}, s2, 3"); a(f"s_lshl_b32 s{sCG}, s{sCG}, 2")
    a(f"s_lshr_b32 s{sT}, s2, 6"); a(f"s_add_u32 s{sCG}, s{sCG}, s{sT}")
    if O.rot==1:
        a(f"s_lshl_b32 s{sPH}, s{sT}, 1"); a(f"s_add_u32 s{sPH}, s{sPH}, s{sRB}"); a(f"s_and_b32 s{sT}, s2, 1"); a(f"s_add_u32 s{sPH}, s{sPH}, s{sT}")
    elif O.rot==2:
        a(f"s_add_u32 s{sPH}, s{sT}, s{sRB}"); a(f"s_lshl_b32 s{sPH}, s{sPH}, 2")
    elif O.rot==6:
        a(f"s_add_u32 s{sPH}, s{sT}, s{sRB}"); a(f"s_lshl_b32 s{sPH}, s{sPH}, 1"); a(f"s_and_b32 s{sT}, s2, 1"); a(f"s_add_u32 s{sPH}, s{sPH}, s{sT}")
    elif O.rot==7:
        a(f"s_add_u32 s{sPH}, s{sT}, s{sRB}"); a(f"s_lshl_b32 s{sPH}, s{sPH}, 2"); a(f"s_and_b32 s{sT}, s2, 3"); a(f"s_add_u32 s{sPH}, s{sPH}, s{sT}")
        a(f"s_bfe_u32 s{sT}, s2, 0x10002"); a(f"s_lshl_b32 s{sT}, s{sT}, 1"); a(f"s_add_u32 s{sPH}, s{sPH}, s{sT}")
    elif O.rot==4:
        a(f"s_and_b32 s{sPH}, s2, 7")
    elif O.rot==5:
        a(f"s_add_u32 s{sPH}, s{sT}, s{sRB}"); a(f"s_lshl_b32 s{sPH}, s{sPH}, 2"); a(f"s_and_b32 s{sT}, s2, 3"); a(f"s_add_u32 s{sPH}, s{sPH}, s{sT}")
    else: a(f"s_mov_b32 s{sPH}, 0")
    a(f"s_and_b32 s{sI}, s{sW}, 3")

def kernel():
    a=Asm()
    if O.stamp: a(f"{O.stamp} s[96:97]")
    a("s_getpc_b64 s[66:67]")
    a("v_lshrrev_b32 v1, 6, v0")
    a(f"s_load_dwordx2 {sr(sX,2)}, s[0:1], 0"); a(f"s_load_dwordx2 {sr(sWQ,2)}, s[0:1], 8"); a(f"s_load_dwordx2 {sr(sGW,2)}, s[0:1], 56")
    a(f"v_readfirstlane_b32 s{sW}, v1")
    a("s_lshr_b32 s3, s2, 8"); a("s_cbranch_scc1 END")
    if O.stamp:
        a(f"v_mov_b32 v{vSTAMP}, 0")
    a(f"s_cmp_{'ge' if O.swap else 'lt'}_u32 s{sW}, 4"); a("s_cbranch_scc1 G_STUB")
    lg=list(a.lg)
    def pre():
        a(f"s_mov_b32 s{sX+3}, 0x20000"); a(f"s_mov_b32 s{sWQ+3}, s{sX+3}"); a(f"s_mov_b32 s{sGW+3}, s{sX+3}")
        a(f"s_lshl_b32 s{sX+2}, s{sX+3}, 4"); a(f"s_mul_i32 s{sWQ+2}, s{sX+3}, 12"); a(f"s_movk_i32 s{sGW+2}, 1024")
        qs(a)
        ids(a)
    A=a_wave(a,pre)
    next(A)
    a.label("G_STUB"); a.vm=[]; a.lg=list(lg)
    if O.codepf:
        a(f"s_lshr_b32 s{sT}, s2, 3"); a(f"s_lshl_b32 s{sT}, s{sT}, 7"); a(f"s_and_b32 s{sT2}, s{sW}, 3"); a(f"s_lshl_b32 s{sT2}, s{sT2}, 14"); a(f"s_add_u32 s{sT}, s{sT}, s{sT2}")
        a(f"v_and_b32 v12, 3, v0"); a(f"v_lshl_add_u32 v12, v12, 12, s{sT}")
        a("s_mov_b64 exec, 15")
        a(f"global_load_dword v97, v12, s[66:67]", "cpf")
        a("s_mov_b64 exec, -1")
    a(f"s_and_b32 s{sCG}, s2, 3"); a(f"s_lshl_b32 s{sCG}, s{sCG}, 2")
    a(f"s_lshr_b32 s{sT}, s2, 6"); a(f"s_add_u32 s{sCG}, s{sCG}, s{sT}")
    a(f"s_cmp_eq_u32 s{sCG}, 10"); a("s_cbranch_scc1 G_V1")
    a(f"s_cmp_gt_u32 s{sCG}, 10"); a("s_cbranch_scc1 G_V2")
    a("s_branch G_V0")
    next(A)
    a.label("FINAL")
    final_reduce(a)
    a.label("END")
    a("s_endpgm")
    next(A)
    g_wave(a,lg)
    return a
def kargs(a):
    for d,off in ((sWS,80),(sDBG,72),(sWG,32),(sWU,40),(sWD,48),(sWO,16),(sOUT,64)):
        a(f"s_load_dwordx2 {sr(d,2)}, s[0:1], {off}")
_q=[0]
def qs(a):
    if O.probe==5 and _q[0]<12:
        a(f"{O.stamp} s[{68+2*_q[0]}:{69+2*_q[0]}]"); _q[0]+=1
def qflush(a):
    if O.probe==5:
        a("s_waitcnt lgkmcnt(0)")
        for i in range(_q[0]): a(f"v_writelane_b32 v{vSTAMP}, s{68+2*i}, {i+1}")
        _q[0]=99
def stamp0(a):
    if O.stamp: a(f"v_writelane_b32 v{vSTAMP}, s96, 0")

PROMO=("v_exp_f32","v_rcp_f32","v_mul_f32","v_add_f32","v_sub_f32","v_and_b32","v_xor_b32","v_or_b32","v_mov_b32","v_max_f32","v_lshlrev_b32","v_mov_b64","v_add_u32","v_lshrrev_b32","v_min_f32")
def align_pass(a):
    import subprocess, re, tempfile
    d=tempfile.mkdtemp()
    open(d+"/a.s","w").write('.amdgcn_target "amdgcn-amd-amdhsa--gfx950"\n.text\nK:\n'+a.text().replace(".p2align 12\n",""))
    subprocess.run(["clang","-x","assembler","-target","amdgcn-amd-amdhsa","-mcpu=gfx950","-c",d+"/a.s","-o",d+"/a.o"],check=True)
    dis=subprocess.run(["llvm-objdump","-d","--mcpu=gfx950",d+"/a.o"],capture_output=True,text=True).stdout
    sizes=[4*len(m.group(1).split()) for m in re.finditer(r"// [0-9A-F]{12}: ((?:[0-9A-F]{8} ?)+)",dis)]
    idx=[i for i,l in enumerate(a.out) if l.startswith("  ") and not l.startswith("  ;")]
    assert len(idx)==len(sizes),(len(idx),len(sizes))
    off=0; cand=None; n=0; bad=0
    for i,sz in zip(idx,sizes):
        mn=a.out[i].split()[0]
        if a.out[i-2].startswith(".p2align"): off=(off+7)//8*8; cand=None
        if sz>=8:
            if off%8==4:
                if cand is not None:
                    m2=a.out[cand].split()[0]; a.out[cand]=a.out[cand].replace(m2,m2+"_e64",1); off+=4; n+=1
                else: bad+=1
            cand=None
        elif mn in PROMO:
            if off%8==0 or cand is None: cand=i
        off+=sz
    print("align: promoted",n,"left misaligned",bad,"bytes",off,file=sys.stderr)

def build():
    a=kernel()
    if O.align: align_pass(a)
    print("instrs",len(a.seq),"nops",a.nops,file=sys.stderr)
    K=NAME+"_kernel"
    s=f"; @launch grid=(256,1,1) block=(512,1,1) lds={LDS_SIZE}\n"
    s+='.amdgcn_target "amdgcn-amd-amdhsa--gfx950"\n'
    s+=f".text\n.p2align 12\n.globl {K}\n.p2align 8\n.type {K},@function\n{K}:\n"
    s+=a.text()
    s+="  s_endpgm\n.fill 8192, 4, 0xBF800000\n"
    s+=f""".section .rodata,"a"
.p2align 6
.amdhsa_kernel {K}
  .amdhsa_next_free_vgpr 256
  .amdhsa_next_free_sgpr 102
  .amdhsa_accum_offset 256
  .amdhsa_group_segment_fixed_size 0
  .amdhsa_kernarg_size 88
  .amdhsa_user_sgpr_count 2
  .amdhsa_user_sgpr_kernarg_segment_ptr 1
  .amdhsa_system_sgpr_workgroup_id_x 1
.end_amdhsa_kernel
"""
    return s

if __name__=="__main__":
    args=sys.argv[1:]
    out=f"cdna_kernels/{NAME}.s"
    for x in args:
        if x=="--stamp": O.stamp="s_memrealtime"
        elif x=="--cyc": O.stamp="s_memtime"
        elif x.startswith("--"):
            k,v=x[2:].split("="); assert hasattr(O,k); setattr(O,k,int(v))
        else: out=x
    open(out,"w").write(build())
```

```python
import sys, math, struct
sys.path.insert(0, "work")
from asmlib import *

NAME = "gated_mix__sliding_block__swiglu_ffn__prompt"
MB = 1<<20
WS_Q, WS_K, WS_V, WS_A3, WS_F, WS_ST = 0, 2*MB, 4*MB, 6*MB, 14*MB, 15*MB
WS_SIZE = 16*MB
A3_TB = 118*1024
LOG2E = math.log2(math.e)
def f2u(f): return struct.unpack("<I", struct.pack("<f", f))[0]
MF = "v_mfma_f32_32x32x16_bf16"
MF16 = "v_mfma_f32_16x16x32_bf16"
SLOT=28672
L_GW, L_Z, L_G, L_SY, LDS_SIZE = 159744, 160768, 161792, 162304, 162560
L_CNT, L_C14, L_C13, L_OF, L_AF = L_SY, L_SY+4, L_SY+8, L_SY+12, L_SY+16
PARK=33*4096
SPIN_MAX = 200000
OOB = 0x40000000

class Opt:
    stamp=None; probe=0; p0=9
    rot=5; codepf=1; warm=1; wst=0; outaux=2; sleep=2; align=1; forceslow=0
    NA=4; dl=1; thr=0; thrA=6; thr3=6; nA2=0; early=2; hpos=3; qs=4; w2=1; prio2=2; t0s=5; osl=4; dbl=11; park=0; qsig=24; sigk=10; rsl=1; pst=-2; wmode=1; wn=8; wsp=6; ap=0; afl=0; pa=12; ord=1; tm=0; nfull=0; warmx=0; adly=0; lay=1; cpl=0; fr=1; ck=1; ek=1; swap=1; npr=4; tp=0; s8=0; qsch=0; pfast=0; wf=1; tlb=0; amp=0; awg=75
O=Opt()

sWS,sX,sWQ,sWG,sWU,sWD,sWO,sOUT,sGW,sDBG = 4,8,12,16,20,24,28,32,36,40
sW,sI,sRB,sCG,sSB,sPH,sT,sT2,sT3,sTR,sTC = 44,45,46,47,48,49,50,51,52,53,54
sA,sB,sC,sD,sE,sF,sG_,sH,sLT = 55,56,57,58,59,60,61,62,63
sM=64
s1K,sDo,sHead,sRo = 98,99,100,101
vSTAMP=11

def stamp(a, idx, probe=0):
    if O.amp and idx!=O.amp: return
    if O.stamp and (probe==O.probe or idx in (0,15)):
        a(f"{O.stamp} s[96:97]"); a("s_waitcnt lgkmcnt(0)")
        a(f"v_writelane_b32 v{vSTAMP}, s96, {idx}")
def stamp_flush(a, vtmp):
    if O.amp:
        a("s_waitcnt vmcnt(0)"); stamp(a,15)
        a(f"s_cmp_lg_u32 s2, {O.awg}"); a("s_cbranch_scc1 END"); a(f"s_cmp_lg_u32 s{sW}, 4"); a("s_cbranch_scc1 END")
        a("s_nop 4"); a(f"v_readlane_b32 s60, v{vSTAMP}, 0"); a(f"v_readlane_b32 s61, v{vSTAMP}, {O.amp}"); a("s_nop 4")
        a("s_sub_u32 s61, s61, s60"); a("s_mul_i32 s61, s61, 10"); a("s_add_u32 s61, s61, 2500"); a("s_min_u32 s61, s61, 40000")
        a.label("AMP"); a("s_memrealtime s[62:63]"); a("s_waitcnt lgkmcnt(0)"); a("s_sub_u32 s62, s62, s60"); a("s_cmp_lt_u32 s62, s61"); a("s_cbranch_scc1 AMP")
        return
    if O.stamp:
        a("s_waitcnt vmcnt(0)"); stamp(a,15)
        a(f"s_lshl_b32 s{sT}, s2, 3"); a(f"s_add_u32 s{sT}, s{sT}, s{sW}"); a(f"s_xor_b32 s{sT}, s{sT}, {4 if O.swap else 0}"); a(f"s_lshl_b32 s{sT}, s{sT}, 6")
        a(f"s_add_u32 s{sT}, s{sT}, {WS_ST}")
        a(f"v_mbcnt_lo_u32_b32 v{vtmp}, -1, 0"); a(f"v_lshlrev_b32 v{vtmp}, 2, v{vtmp}")
        a("s_mov_b64 exec, 0xffff")
        a(f"buffer_store_dword v{vSTAMP}, v{vtmp}, {sr(sWS,4)}, s{sT} offen")

def srd_tail(a, d, size):
    a(f"s_mov_b32 s{d+2}, {size:#x}"); a(f"s_mov_b32 s{d+3}, 0x20000")
def late_srds(a):
    for d,size in ((sWS,WS_SIZE),(sDBG,256),(sWG,512*2752),(sWU,512*2752),(sWD,1376*1024),(sWO,512*1024),(sOUT,2*MB)):
        srd_tail(a,d,size)
def late_scalars(a):
    a(f"s_mul_i32 s{sT}, s{sCG}, 43"); a(f"s_lshr_b32 s{sT}, s{sT}, 7")
    a(f"s_mul_i32 s{sSB}, s{sCG}, 3"); a(f"s_sub_u32 s{sSB}, s{sSB}, s{sT}")
    a(f"s_mul_i32 s{sT}, s{sT}, 3"); a(f"s_sub_u32 s{sT}, s{sCG}, s{sT}"); a(f"s_cmp_eq_u32 s{sT}, 2")
    a(f"s_cselect_b32 s{sLT}, {OOB:#x}, 0")
    a(f"s_and_b32 s{sTR}, s2, 7"); a(f"s_lshl_b32 s{sTR}, s{sTR}, 2"); a(f"s_bfe_u32 s{sT}, s2, 0x20003"); a(f"s_add_u32 s{sTR}, s{sTR}, s{sT}")
    a(f"s_lshr_b32 s{sTC}, s2, 5")
    a(f"s_lshl_b32 s{s1K}, s{sI}, 10")
    a(f"s_lshl_b32 s{sDo}, s{sI}, 14"); a(f"s_lshl_b32 s{sT}, s{sTC}, 7"); a(f"s_add_u32 s{sDo}, s{sDo}, s{sT}")
    a(f"s_lshl_b32 s{sRo}, s{sTR}, 1"); a(f"s_add_u32 s{sRo}, s{sRo}, s{sTC}"); a(f"s_and_b32 s{sRo}, s{sRo}, 7")
    a(f"s_mul_i32 s{sH}, s{sRo}, 21"); a(f"s_lshr_b32 s{sH}, s{sH}, 3")
    a(f"s_lshl_b32 s{sH}, s{sH}, 16"); a(f"s_lshl_b32 s{sRo}, s{sRo}, 16")

_uid=[0]
def uid(p): _uid[0]+=1; return f"{p}{_uid[0]}"
def poll(a, vdst, vaddr, srd, soff, first_tag=None, expect=1, sleep=None):
    L=uid("PL")
    if first_tag is not None:
        a.wait(vm=[first_tag])
        a(f"v_cmp_ne_u32 vcc, {expect}, v{vdst}")
        a(f"s_cbranch_vccz {L}_D")
    a(f"s_mov_b32 s{sT3}, {SPIN_MAX}")
    keep=list(a.vm)
    a.label(L)
    a(f"buffer_load_dword v{vdst}, v{vaddr}, {sr(srd,4)}, {soff} offen sc1")
    a("s_waitcnt vmcnt(0)")
    a(f"v_cmp_ne_u32 vcc, {expect}, v{vdst}")
    a(f"s_cbranch_vccz {L}_D")
    a(f"s_sleep {sleep or O.sleep}")
    a(f"s_sub_u32 s{sT3}, s{sT3}, 1")
    a(f"s_cmp_lg_u32 s{sT3}, 0")
    a(f"s_cbranch_scc1 {L}")
    a.label(L+"_D")
    if first_tag is not None: a.vm=keep
def lds_poll(a, vaddr, vdst, expect, off=0):
    L=uid("LP")
    a(f"s_mov_b32 s{sT3}, {SPIN_MAX}")
    a.label(L); a(f"ds_read_b32 v{vdst}, v{vaddr} offset:{off}"); a("s_waitcnt lgkmcnt(0)")
    a(f"v_cmp_ne_u32 vcc, {expect}, v{vdst}"); a(f"s_cbranch_vccz {L}_D"); a("s_sleep 1")
    a(f"s_sub_u32 s{sT3}, s{sT3}, 1"); a(f"s_cmp_lg_u32 s{sT3}, 0"); a(f"s_cbranch_scc1 {L}")
    a.label(L+"_D")
def lds_inc(a, vaddr, vone, off):
    a("s_mov_b64 exec, 1"); a(f"ds_add_u32 v{vaddr}, v{vone} offset:{off}"); a("s_mov_b64 exec, -1")
def emit(a, ops, tag=None):
    for op in ops:
        for o in (op if isinstance(op,tuple) else (op,)): a(o,tag)

def signal(a, kind, vtmp, tag=None):
    a(f"s_lshl_b32 s{sT}, s{sRB}, 4"); a(f"s_add_u32 s{sT}, s{sT}, s{sCG}"); a(f"s_lshl_b32 s{sT}, s{sT}, 5")
    a(f"s_add_u32 s{sT}, s{sT}, s{sI}"); a(f"s_lshl_b32 s{sT}, s{sT}, 2"); a(f"s_add_u32 s{sT}, s{sT}, {WS_F+kind*32768}")
    a(f"v_mov_b32 v{vtmp}, 1")
    a("s_mov_b64 exec, 1")
    if tag: a.wait(vm=[tag])
    else: a("s_waitcnt vmcnt(0)")
    a(f"buffer_store_dword v{vtmp}, off, {sr(sWS,4)}, s{sT} sc1", "flag")
    a("s_mov_b64 exec, -1")

def flag_lane_ops(vF, vL, t0, t1, sdst, kind):
    return [f"v_and_b32 v{t0}, 15, v{vL}", f"v_bfe_u32 v{t1}, v{vL}, 4, 1", f"v_lshlrev_b32 v{t1}, 2, v{t1}", f"v_lshl_add_u32 v{vF}, v{t0}, 7, v{t1}",
            f"s_lshr_b32 s{sdst}, s{sTR}, 1", f"s_lshl_b32 s{sdst}, s{sdst}, 11", f"s_and_b32 s{sT}, s{sTR}, 1", f"s_lshl_b32 s{sT}, s{sT}, 3",
            f"s_add_u32 s{sdst}, s{sdst}, s{sT}", f"s_add_u32 s{sdst}, s{sdst}, {WS_F+kind*32768}"]
def qaddr_ops(i):
    t,e=i>>1,i&1
    o=[f"s_mul_i32 s{sT}, s{sCG}, 3", f"s_add_u32 s{sT}, s{sT}, {t}", f"s_lshl_b32 s{sT2}, s{sRB}, 2", f"s_add_u32 s{sT2}, s{sT2}, s{sI}",
       (f"s_cmp_ge_u32 s{sT}, 32", f"s_cselect_b32 s{sT3}, 11, 10"), f"s_lshl_b32 s{sT2}, s{sT2}, s{sT3}"]
    if e: o+=[(f"s_cmp_ge_u32 s{sT}, 32", f"s_cselect_b32 s{sT3}, 1, 64"), f"s_lshl_b32 s{sT3}, s{sT3}, 10", f"s_add_u32 s{sT2}, s{sT2}, s{sT3}"]
    return o+[f"s_lshl_b32 s{sT}, s{sT}, 17", f"s_add_u32 s{sT}, s{sT}, s{sT2}"]
def w3_lane_ops(vD, vL, t0, t1):
    return [f"v_bfe_u32 v{t0}, v{vL}, 4, 1", f"v_lshlrev_b32 v{t0}, 2, v{t0}", f"v_and_b32 v{t1}, 7, v{vL}", f"v_xor_b32 v{t0}, v{t0}, v{t1}",
            f"v_lshlrev_b32 v{t0}, 4, v{t0}", f"v_lshrrev_b32 v{t1}, 3, v{vL}", f"v_lshl_add_u32 v{vD}, v{t1}, 10, v{t0}",
            f"v_add_u32 v{vD}, s{sDo}, v{vD}", f"v_add_u32 v{vD+1}, 8192, v{vD}"]

ROWS = list(range(28,39))+[6,13,20] + [0,1,2,3,4,5,7,8,9,10,11,12] + [14,15,16,17,18,19,21,22,23,24,25,26]
NRES=19; NT0=7; NREG=11; NS3=30
LOAD=[0,1,2,3,4,22,23, 5,6,7,8,9,10, 11,12,13,14,15,16, 17,18,19,20,21,24,25,26,27,28,29]
POS={n:p for p,n in enumerate(LOAD)}
A2LIST=list(range(7,13))+list(range(19,26))
def row_of(p,e): return ROWS[2*(p%NRES)+e]
def rot_off(n):
    if n<21: return [f"s_add_u32 s{sT2}, s{sH}, {n<<16}", f"s_add_u32 s{sT3}, s{sH}, {((n-21)<<16)&0xffffffff:#x}", f"s_min_u32 s{sT2}, s{sT2}, s{sT3}"]
    if n==21: return [f"s_and_b32 s{sT2}, s{sI}, 2", f"s_lshl_b32 s{sT2}, s{sT2}, 14", f"s_sub_u32 s{sT2}, {21<<16}, s{sT2}"]
    return [f"s_add_u32 s{sT2}, s{sRo}, {(n-22)<<16}", f"s_and_b32 s{sT2}, s{sT2}, {7<<16}"]
def w3_dma(a, p, vD, tag):
    n=LOAD[p]; R=sWD if n<22 else sWO
    a(f"s_add_u32 m0, s{s1K}, {row_of(p,0)*4096}")
    emit(a,rot_off(n))
    a(f"buffer_load_dwordx4 v{vD}, {sr(R,4)}, s{sT2} offen lds", tag)
    a(f"s_add_u32 m0, s{s1K}, {row_of(p,1)*4096}")
    a(f"buffer_load_dwordx4 v{vD+1}, {sr(R,4)}, s{sT2} offen lds", tag)

def final_reduce(a):
    vL,vA,vO,B = 1,2,6,16
    a(f"v_mbcnt_lo_u32_b32 v{vL}, -1, 0"); a(f"v_mbcnt_hi_u32_b32 v{vL}, -1, v{vL}")
    if not O.fr:
        a(f"v_lshrrev_b32 v3, 3, v{vL}")
        a(f"v_bfe_u32 v4, v{vL}, 4, 1"); a(f"v_bfe_u32 v5, v{vL}, 3, 1"); a(f"v_lshl_or_b32 v4, v5, 1, v4")
        a(f"v_and_b32 v5, 4, v3"); a(f"v_or_b32 v4, v4, v5")
        a(f"v_and_b32 v5, 3, v{vL}"); a(f"v_lshlrev_b32 v5, 1, v5"); a(f"v_xor_b32 v4, v4, v5"); a(f"v_lshlrev_b32 v4, 4, v4")
        a(f"v_lshl_add_u32 v{vA}, v3, 7, v4")
    else:
        a(f"v_lshrrev_b32 v4, 4, v{vL}"); a(f"v_bfe_u32 v5, v{vL}, 3, 1"); a(f"v_lshl_add_u32 v3, v5, 2, v4")
        a(f"v_lshlrev_b32 v{vA}, 8, v4"); a(f"v_lshl_add_u32 v{vA}, v5, 7, v{vA}")
        a(f"v_and_b32 v5, 3, v{vL}"); a(f"v_lshl_add_u32 v{vA}, v5, 5, v{vA}")
        a(f"v_and_b32 v5, 16, v{vL}"); a(f"v_add_u32 v{vA}, v{vA}, v5"); a(f"v_cmp_ne_u32 vcc, 0, v5")
    a(f"v_bfe_u32 v5, v{vL}, 2, 1"); a(f"v_lshl_add_u32 v{vA}, v5, 14, v{vA}")
    a(f"s_lshr_b32 s{sT}, s{sW}, 2"); a(f"s_lshl_b32 s{sT}, s{sT}, 15"); a(f"s_lshl_b32 s{sT2}, s{sI}, 12"); a(f"s_add_u32 s{sT}, s{sT}, s{sT2}")
    a(f"v_add_u32 v{vA}, s{sT}, v{vA}")
    a(f"v_and_b32 v5, 7, v{vL}"); a(f"v_lshlrev_b32 v5, 4, v5"); a(f"v_lshl_add_u32 v{vO}, v3, 10, v5")
    a(f"v_xor_b32 v{vA+1}, 16, v{vA}")
    a(f"s_lshl_b32 s{sT}, s{sTR}, 16"); a(f"s_lshl_b32 s{sT2}, s{sTC}, 7"); a(f"s_add_u32 s{sT}, s{sT}, s{sT2}")
    a(f"s_lshl_b32 s{sT2}, s{sW}, 13"); a(f"s_add_u32 s{sT}, s{sT}, s{sT2}")
    a("s_waitcnt lgkmcnt(0)"); a("s_barrier")
    stamp(a,13)
    for w in range(4):
        for hf in range(2):
            a(f"ds_read_b128 {vr(B+8*w+4*hf,4)}, v{vA+hf} offset:{w*1024}", ("rr",w))
    a.wait(lg=[("rr",1)])
    for r in range(0,8,2): a(f"v_pk_add_f32 {vr(B+r,2)}, {vr(B+r,2)}, {vr(B+8+r,2)}")
    a.wait(lg=[("rr",3)])
    for r in range(0,8,2): a(f"v_pk_add_f32 {vr(B+16+r,2)}, {vr(B+16+r,2)}, {vr(B+24+r,2)}")
    for r in range(0,8,2): a(f"v_pk_add_f32 {vr(B+r,2)}, {vr(B+r,2)}, {vr(B+16+r,2)}")
    if O.fr:
        for r in range(4): a(f"v_cvt_pk_bf16_f32 v{B+12+r}, v{B+2*r}, v{B+2*r+1}")
        for r in range(4): a(f"v_cndmask_b32 v{B+8+r}, v{B+12+r}, v{B+12+(r^2)}, vcc")
    else:
        for r in range(4): a(f"v_cvt_pk_bf16_f32 v{B+8+r}, v{B+2*r}, v{B+2*r+1}")
    aux=[""," sc1"," nt"," sc0 sc1"][O.outaux]
    a(f"buffer_store_dwordx4 {vr(B+8,4)}, v{vO}, {sr(sOUT,4)}, s{sT} offen{aux}", "out")
    stamp(a,14)
    stamp_flush(a,3)

def g_wave(a, lg0):
    vSt,vXa,vTm,vTq,vT2 = 0,1,3,5,7
    WB,NW,ACC,XR = 12,5,32,128
    GF,GA,vGb,vGa = 80,88,92,93
    vC,vS2,vPk,vSy = 4,3,5,6
    sSt,sK = sB,sC
    t0,t1,vL = 12,13,14
    def poison():
        for i in range(2): a(f"buffer_store_dwordx4 v[104:107], v{vSt}, {sr(sWS,4)}, s{82+i} offen sc1")
    def warm2():
        if O.warm:
            a(f"s_mov_b32 exec_hi, 0x7ff"); a(f"buffer_load_dword v99, v98, s[68:71], 0 offen"); a(f"s_mov_b32 exec_hi, -1")
    def warm_slot(k):
        L=uid("GW"); a(f"s_cmp_lg_u32 s84, {k}"); a(f"s_cbranch_scc1 {L}"); warm2()
        if O.pst==-1: poison()
        a.label(L)
    def g_publish():
        a(f"s_cmp_lg_u32 s72, 3"); a("s_cbranch_scc1 G_NOPUB")
        a(f"s_lshl_b32 s{sT}, s{sRB}, 2"); a("v_mov_b32 v100, 1"); a("s_mov_b64 exec, 1"); a("s_waitcnt vmcnt(0)")
        a(f"buffer_store_dword v100, off, {sr(sDBG,4)}, s{sT} sc1"); a("s_mov_b64 exec, -1")
        a.label("G_NOPUB")
    def setup(vi):
        a(f"v_and_b32 v{vL}, 63, v0")
        kargs(a); ids(a)
        late_srds(a); late_scalars(a)
        a(f"v_lshlrev_b32 v{vSt}, 4, v{vL}")
        a(f"v_and_b32 v{t0}, 31, v{vL}"); a(f"v_lshrrev_b32 v{t1}, 5, v{vL}")
        a(f"v_bfe_u32 v{vXa}, v{vL}, 1, 3"); a(f"v_xor_b32 v{vXa}, v{vXa}, v{t1}"); a(f"v_lshlrev_b32 v{vXa}, 4, v{vXa}")
        a(f"v_lshl_add_u32 v{vXa}, v{t0}, 7, v{vXa}")
        a(f"s_lshl_b32 s{sT}, s{sI}, 12"); a(f"v_add_u32 v{vXa}, s{sT}, v{vXa}"); a(f"v_add_u32 v{vXa+1}, {2*SLOT}, v{vXa}")
        a(f"v_lshrrev_b32 v{vGb}, 4, v{vL}"); a(f"v_xor_b32 v{vGb}, v{vGb}, v{vL}"); a(f"v_and_b32 v{vGb}, 1, v{vGb}")
        a(f"v_lshlrev_b32 v{vGb}, 10, v{vGb}"); a(f"v_lshl_add_u32 v{vGb}, v{t1}, 4, v{vGb}"); a(f"v_add_u32 v{vGb}, {L_GW}, v{vGb}")
        a(f"v_bfe_u32 v{t0}, v{vL}, 2, 2"); a(f"v_lshl_add_u32 v{t0}, v{t1}, 3, v{t0}"); a(f"v_lshlrev_b32 v{t0}, 6, v{t0}")
        a(f"v_and_b32 v{t1}, 3, v{vL}"); a(f"v_lshl_add_u32 v{t0}, v{t1}, 3, v{t0}")
        a(f"v_bfe_u32 v{t1}, v{vL}, 4, 1")
        a(f"v_lshl_add_u32 v{t0}, v{t1}, 5, v{t0}")
        a(f"v_add_u32 v{vTq}, 16384, v{t0}"); a(f"v_add_u32 v{vTq+1}, {16384+2*SLOT}, v{t0}")
        a(f"v_mul_u32_u24 v{t1}, 3072, v{t1}"); a(f"v_add_u32 v{vT2}, v{t0}, v{t1}")
        a(f"v_xor_b32 v{vT2+1}, 32, v{vT2}")
        a(f"v_add_u32 v{vT2+2}, {2*SLOT}, v{vT2}"); a(f"v_add_u32 v{vT2+3}, {2*SLOT}, v{vT2+1}")
        a(f"v_cmp_ne_u32 s[64:65], 0, v{t1}")
        for r in (16,17,18,19): a(f"v_mov_b32 v{r}, 0")
        a(f"v_add_u32 v{t0}, {L_Z}, v{vSt}"); a(f"ds_write_b128 v{t0}, v[16:19]")
        a(f"v_mov_b32 v{t0}, {L_SY}"); a(f"ds_write_b128 v{t0}, v[16:19]"); a(f"ds_write_b128 v{t0}, v[16:19] offset:16")
        a("s_waitcnt lgkmcnt(0)")
        stamp0(a)
        a(f"s_lshl_b32 s{sT}, s{sCG}, 2"); a(f"s_add_u32 s72, s{sT}, s{sI}"); a(f"s_cmp_lg_u32 s72, 3"); a(f"s_cbranch_scc1 G_NOINIT{vi}")
        a(f"v_and_b32 v{t0}, 15, v{vL}"); a(f"v_lshrrev_b32 v{t1}, 4, v{vL}"); a(f"v_lshlrev_b32 v{t0}, 7, v{t0}"); a(f"v_lshl_add_u32 v{t0}, v{t1}, 15, v{t0}")
        a(f"s_lshl_b32 s{sT}, s{sRB}, 11"); a(f"s_add_u32 s{sT}, s{sT}, {WS_F}")
        a("s_mov_b32 exec_hi, 0xffff")
        a(f"buffer_store_dwordx4 v[16:19], v{t0}, {sr(sWS,4)}, s{sT} offen sc1")
        a("s_mov_b32 exec_hi, -1")
        a.label(f"G_NOINIT{vi}")
        if O.pst!=-2:
            for r in (104,105,106,107): a(f"v_mov_b32 v{r}, -1")
            a(f"s_and_b32 s{sT2}, s{sI}, 2"); a(f"s_lshl_b32 s{sT}, s{sRB}, 2"); a(f"s_add_u32 s{sT}, s{sT}, s{sT2}"); a(f"s_mul_i32 s{sT}, s{sT}, {A3_TB}")
            a(f"s_and_b32 s{sT2}, s{sI}, 1"); a(f"s_lshl_b32 s{sT3}, s{sCG}, 1"); a(f"s_add_u32 s{sT2}, s{sT2}, s{sT3}"); a(f"s_lshl_b32 s{sT2}, s{sT2}, 10")
            a(f"s_add_u32 s{sT}, s{sT}, s{sT2}"); a(f"s_add_u32 s82, s{sT}, {WS_A3+86*1024}"); a(f"s_add_u32 s83, s82, {A3_TB}")
        if O.warm:
            a(f"s_cmp_eq_u32 s{sI}, 1"); a(f"s_cselect_b32 s68, s{sWU}, s{sWG}"); a(f"s_cselect_b32 s69, s{sWU+1}, s{sWG+1}")
            a(f"s_cmp_eq_u32 s{sI}, 2"); a(f"s_cselect_b32 s68, s{sWD}, s68"); a(f"s_cselect_b32 s69, s{sWD+1}, s69")
            a(f"s_mov_b32 s70, {1376*1024}")
            a(f"s_cmp_eq_u32 s{sI}, 3"); a(f"s_cselect_b32 s68, s{sWO}, s68"); a(f"s_cselect_b32 s69, s{sWO+1}, s69")
            a(f"s_cselect_b32 s70, {512*1024}, s70"); a("s_mov_b32 s71, 0x20000")
            a(f"s_mul_i32 s{sT}, s2, {43*128}")
            a(f"v_lshl_add_u32 v98, v{vL}, 7, s{sT}")
        if O.wmode==1: a(f"s_lshr_b32 s84, s2, 3"); a(f"s_and_b32 s84, s84, {O.wn-1}")
        if O.wmode==2: a(f"s_mov_b32 s84, s{sI}")
        if O.wmode==3: a(f"s_and_b32 s84, s2, {O.wn-1}")
        if O.wst<0 and not O.wmode: warm2()
        if O.wst<0 and O.wmode: warm_slot(0)
        if not O.park:
            for i in range(6): emit(a,qaddr_ops(i)); a(f"s_mov_b32 s{76+i}, s{sT}")
        a("s_setprio 2")

    seq=[]
    for st in range(8):
        for j in range(4):
            for t in range(3): seq.append((st,j,t))
    for j in range(4):
        for u in (3,4,5): seq.append((8,j,u))
    for u in (0,1,2):
        for j in range(4): seq.append((8,j,u))
    for st in range(9,14):
        for j in range(4):
            for u in range(6): seq.append((st,j,u))
    MT=len(seq)
    for u in range(6):
        for st in (14,15):
            for j in range(4): seq.append((st,j,u))
    N=len(seq); AH=NW-1; M8=96
    first={}
    for m,(st,j,t) in enumerate(seq): first.setdefault(st,m)
    ool=[]
    def reads(m):
        st,j,t=seq[m]; q=st&3; wb=WB+4*(m%NW); tg=("r",m)
        if first[st]==m and st<14:
            if O.dbl<=st<13: a("s_waitcnt lgkmcnt(0)")
            if O.p0<=st<O.p0+4: stamp(a,1+3*(st-O.p0),1)
            a("s_barrier")
            if O.p0<=st<O.p0+4: stamp(a,2+3*(st-O.p0),1)
            if st in (0,1,8,9): stamp(a,{0:1,1:2,8:3,9:4}[st])
            if st<9: stamp(a,2+st,3)
            if st==8: stamp(a,1,6)
            if st<9: stamp(a,2+st,5)
        if m==MT:
            a.wait(lg=["c14"])
            a(f"v_cmp_ne_u32 vcc, 4, v2"); a("s_cbranch_vccnz G_W14"); a.label("G_R14")
            def w14():
                a.label("G_W14"); a.lg=[]; lds_poll(a,vSy,2,4,L_C14-L_SY); a("s_branch G_R14")
            ool.append(w14)
            stamp(a,5); stamp(a,1,4)
        if st<8:
            if t==0:
                k=st*4+j; tm=vTm+(k&1)
                if j: a(f"v_xor_b32 v{tm}, {32*j}, v{vXa+(q>>1)}")
                else:
                    a(f"s_add_u32 s{sK}, s{sPH}, {st}"); a(f"s_and_b32 s{sK}, s{sK}, 7"); a(f"s_lshl_b32 s{sK}, s{sK}, 7")
                    a(f"v_add_u32 v{vGa}, s{sK}, v{vGb}")
                a(f"ds_read_b128 {vr(XR+4*k,4)}, v{tm if j else vXa+(q>>1)} offset:{(q&1)*SLOT}", tg)
                a(f"ds_read_b128 {vr(GF+4*(k&1),4)}, v{vGa} offset:{j*32}", tg)
            for e in range(2):
                a(f"ds_read_b64_tr_b16 {vr(wb+2*e,2)}, v{vTq+(q>>1)} offset:{(q&1)*SLOT+(j*3+t)*1024+e*256}", tg)
        else:
            for e in range(2):
                a(f"ds_read_b64_tr_b16 {vr(wb+2*e,2)}, v{vT2+2*(q>>1)+(t&1)} offset:{(q&1)*SLOT+j*6144+(t>>1)*1024+e*256}", tg)
    rp=[0]
    def pump(m):
        while rp[0]<N and rp[0]<=m+AH:
            r=rp[0]; st=seq[r][0]
            if first[st]==r and O.dbl<=st<13 and m<r-AH+O.dl: break
            reads(r); rp[0]+=1
    def mfma(m, vmask):
        st,j,t=seq[m]; k=(st&7)*4+j; A=vr(ACC+16*t,16)
        W,X=vr(WB+4*(m%NW),4),vr(XR+4*k,4)
        a.wait(lg=[("r",m),("r",m+1)] if (O.w2 and m>=MT+8 and m%2==0) else [("r",m)])
        if st<8 and t==0:
            a(f"{MF16} {vr(GA,4)}, {vr(GF+4*(k&1),4)}, {X}, {'0' if k==0 else vr(GA,4)}")
        p,q_=(X,W) if (st<8 and (vmask>>t)&1) else (W,X)
        a(f"{MF} {A}, {p}, {q_}, {'0' if k==0 else A}")
    for vi,vmask in ((1,4),(2,7),(0,0)):
        a.raw(".p2align 12")
        a.label(f"G_V{vi}")
        a.vm=[]; a.lg=list(lg0)
        setup(vi)
        stamp(a,1,3); stamp(a,1,5)
        a.vm=[]; a.lg=[]; rp[0]=0
        pump(-1)
        for m in range(M8):
            if m==M8-6: a("s_waitcnt vmcnt(0)")
            if m==12 and vi==0: g_publish()
            if not O.wmode and m==12*O.wst+1: warm2()
            if O.wmode:
                for k in range(O.wn):
                    if m==12*O.wst+1+k*O.wsp: warm_slot(k)
            if m==O.pst: poison()
            mfma(m,vmask); pump(m)
        if vi: a("s_branch G_P2")
    a.label("G_P2")
    fill={}
    def spread(ops, m0, m1):
        for i,o in enumerate(ops): fill.setdefault(m0+(i*(m1-m0))//len(ops),[]).append(o)
    SS=[0,4,8,11,15,17,20] if not O.park else ([0,3,6,8,11,13,15] if not O.pfast else [0,2,4,5,7,8,10])
    for i in range(6):
        A=ACC+8*i
        ops=[f"s_add_u32 s{sT}, s{s1K}, {PARK}", f"v_add_u32 v{vPk}, s{sT}, v{vSt}"] if (i==0 and O.park) else []
        for r in range(4): ops.append(f"v_cvt_pk_bf16_f32 v{A+r}, v{A+2*r}, v{A+2*r+1}")
        ops.append(f"ds_write_b128 v{vPk}, {vr(A,4)} offset:{i*4096}" if O.park else f"buffer_store_dwordx4 {vr(A,4)}, v{vSt}, {sr(sWS,4)}, s{76+i} offen sc1")
        spread(ops,M8+SS[i],M8+SS[i+1])
    spread([f"v_mul_f32 v{vC}, {f2u(LOG2E):#x}, v{vC}", f"v_exp_f32 v1, -v{vC}", f"v_exp_f32 v{vC}, v{vC}",
            f"v_add_f32 v1, 1.0, v1", f"v_add_f32 v{vC}, 1.0, v{vC}", f"v_rcp_f32 v1, v1", f"v_min_f32 v{vC}, {f2u(1e38):#x}, v{vC}",
            f"v_bfe_u32 v2, v{vSt}, 4, 5", f"s_lshl_b32 s{sT}, s{sI}, 7", f"s_add_u32 s{sT}, s{sT}, {L_G}",
            f"v_lshl_add_u32 v2, v2, 2, s{sT}", f"ds_write_b32 v2, v1", f"v_add_u32 v{vS2}, s{sLT}, v{vSt}",
            f"v_mov_b32 v{vSy}, {L_SY}"], M8+20, M8+27)
    vL,vD,vR,vA,vW,t0,t1,vF,vP = 147,148,150,156,158,162,163,146,145
    WB3,ACC3,AF,WR = 12,32,96,164; NA=O.NA; NF=22-NA; NR=NA+1; assert AF+8*NR<=144
    ops=[f"v_lshrrev_b32 v{vL}, 4, v{vSt}"]+w3_lane_ops(vD,vL,t0,t1)
    ops+=[f"v_lshrrev_b32 v{t0}, 5, v{vL}", f"v_bfe_u32 v{t1}, v{vL}, 2, 2", f"v_lshl_add_u32 v{t0}, v{t0}, 2, v{t1}", f"v_lshlrev_b32 v{vR}, 7, v{t0}",
          f"v_bfe_u32 v{t0}, v{vL}, 3, 1", f"v_lshl_add_u32 v{vR}, v{t0}, 6, v{vR}", f"v_bfe_u32 v{t0}, v{vL}, 4, 1", f"v_lshl_add_u32 v{vR}, v{t0}, 5, v{vR}",
          f"v_and_b32 v{t0}, 3, v{vL}", f"v_lshl_add_u32 v{vR}, v{t0}, 3, v{vR}", f"v_add_u32 v{vR}, s{s1K}, v{vR}",
          f"v_add_u32 v{vR+2}, 65536, v{vR}", f"v_add_u32 v{vR+4}, 131072, v{vR}"]
    ops+=[f"v_xor_b32 v{vR+2*g+1}, 64, v{vR+2*g}" for g in range(3)]
    ops+=[f"s_mul_i32 s{sT}, s{sTR}, {2*A3_TB}", f"s_add_u32 s{sT}, s{sT}, s{s1K}", f"s_add_u32 s{sT}, s{sT}, {WS_A3}",
          f"v_add_u32 v{vA}, s{sT}, v{vSt}", f"v_add_u32 v{vA+1}, {A3_TB}, v{vA}"]
    if not O.fr:
        ops+=[f"v_bfe_u32 v{t0}, v{vL}, 1, 1", f"v_and_b32 v{t1}, 1, v{vL}", f"v_lshl_or_b32 v{t0}, v{t1}, 1, v{t0}", f"v_and_b32 v{t1}, 4, v{vL}",
              f"v_or_b32 v{t0}, v{t0}, v{t1}", f"v_lshrrev_b32 v{t1}, 5, v{vL}", f"v_xor_b32 v{t0}, v{t0}, v{t1}", f"v_lshlrev_b32 v{t0}, 4, v{t0}",
              f"v_and_b32 v{t1}, 7, v{vL}", f"v_lshl_add_u32 v{vW}, v{t1}, 7, v{t0}", f"v_bfe_u32 v{t1}, v{vL}, 3, 2",
              f"v_lshl_add_u32 v{vW}, v{t1}, 12, v{vW}", f"v_add_u32 v{vW}, s{s1K}, v{vW}"]
        ops+=[f"v_xor_b32 v{vW+q}, {32*q}, v{vW}" for q in range(1,4)]
    ops+=[f"s_lshl_b32 s{sT}, s{sRB}, 2", f"s_add_u32 s{sT}, s{sT}, s{sI}", f"s_mul_i32 s{sSt}, s{sT}, {A3_TB}", f"s_lshl_b32 s{sT}, s{sSB}, 11",
          f"s_add_u32 s{sSt}, s{sSt}, s{sT}", f"s_add_u32 s{sSt}, s{sSt}, {WS_A3}", f"s_add_u32 s{sD}, s{sSt}, 4096", f"s_mov_b32 s{sA}, {f2u(-LOG2E):#x}",
          f"v_mov_b32 v1, 1"]+flag_lane_ops(vF,vL,t0,t1,sG_,1)
    spread(ops,first[11]+2,first[13]+12)
    def rd3_ops(p, wb):
        return [(f"ds_read_b64_tr_b16 {vr(wb+4*cb+2*q,2)}, v{vR+2*(row_of(p,q)>>4)+cb} offset:{(row_of(p,q)&15)*4096}", ("r3",p)) for cb in range(2) for q in range(2)]
    def rd3(p,wb):
        for o,t in rd3_ops(p,wb): a(o,t)
    T=XR
    def ffn_epi(n):
        A=ACC+16*n; ops=[]; R=range(8)
        for r in R: ops.append(f"v_mul_f32 v{T+r}, s{sA}, v{A+r}")
        for r in R: ops.append(f"v_exp_f32 v{T+r}, v{T+r}"); ops.append(f"v_mul_f32 v{A+r}, v{A+r}, v{A+8+r}")
        for r in R: ops.append(f"v_fma_f32 v{T+r}, v{T+r}, v{vC}, v{vC}")
        for r in R: ops.append(f"v_rcp_f32 v{T+r}, v{T+r}")
        for r in R: ops.append(f"v_mul_f32 v{A+r}, v{A+r}, v{T+r}")
        for r in range(4): ops.append(f"v_cvt_pk_bf16_f32 v{A+8+r}, v{A+2*r}, v{A+2*r+1}")
        ops.append(f"buffer_store_dwordx4 {vr(A+8,4)}, v{vSt if n<4 else vS2}, {sr(sWS,4)}, s{sSt if n<4 else sD} offen offset:{(n&3)*1024} sc1")
        return ops
    def epi_a(n):
        A=ACC+16*n; ops=[]
        for r in range(8): ops.append(f"v_mul_f32 v{A+8+r}, v{A+r}, v{A+8+r}"); ops.append(f"v_mul_f32 v{A+r}, s{sA}, v{A+r}")
        for r in range(8): ops.append(f"v_exp_f32 v{A+r}, v{A+r}")
        return ops
    def epi_a_pk(n):
        A=ACC+16*n; ops=[]
        for r in range(0,8,2): ops.append(f"v_pk_mul_f32 {vr(A+8+r,2)}, {vr(A+r,2)}, {vr(A+8+r,2)}")
        for r in range(0,8,2): ops.append(f"v_pk_mul_f32 {vr(A+r,2)}, {vr(A+r,2)}, {vr(T+2,2)}")
        for r in range(8): ops.append(f"v_exp_f32 v{A+r}, v{A+r}")
        return ops
    def epi_b1(n):
        A=ACC+16*n
        return [f"v_pk_fma_f32 {vr(A+r,2)}, {vr(A+r,2)}, {vr(T,2)}, {vr(T,2)}" for r in range(0,8,2)]+[f"v_rcp_f32 v{A+r}, v{A+r}" for r in range(8)]
    def epi_b2(n):
        A=ACC+16*n
        ops=[f"v_pk_mul_f32 {vr(A+r,2)}, {vr(A+r,2)}, {vr(A+8+r,2)}" for r in range(0,8,2)]
        ops+=[f"v_cvt_pk_bf16_f32 v{A+8+r}, v{A+2*r}, v{A+2*r+1}" for r in range(4)]
        ops.append(ffn_epi(n)[-1])
        return ops
    for u in range(5): spread(ffn_epi(u) if (not O.tm or u<O.nfull) else epi_a(u), MT+8*(u+1)+(1 if (not O.tm or u<O.nfull) else 2), MT+8*(u+2)+(1 if u<4 else 0))
    a(f"v_cndmask_b32 v{vC}, v{GA}, v{GA+1}, s[64:65]")
    for m in range(M8,N):
        if m>=MT+8 and (m-MT)%8==0: stamp(a,1+(m-MT)//8,4)
        if O.probe==6 and M8<=m<M8+48 and (m-M8)%4==0:
            a.check_pending=False; lgk=list(a.lg); a(f"s_getreg_b32 s{86+(m-M8)//4 if (m-M8)//4<10 else 60+(m-M8)//4-10}, hwreg(HW_REG_SQ_SHADER_TBA_LO)") if False else None; a.check_pending=True
            stamp(a,2+(m-M8)//4,6)
        mfma(m,0)
        if m==MT-AH-3: a(f"ds_read_b32 v2, v{vSy} offset:{L_C14-L_SY}", "c14")
        pump(m)
        if O.pst>=120 and m==O.pst-2: a("v_mov_b64 v[132:133], -1"); a("v_mov_b64 v[134:135], -1")
        if O.pst>=120 and m in (O.pst,O.pst+4): a(f"buffer_store_dwordx4 v[132:135], v{vSt}, {sr(sWS,4)}, s{82+(m!=O.pst)} offen sc1")
        if not O.park and m==first[9]+O.qsig: signal(a,0,vPk)
        if MT<=m<MT+O.npr: rd3(m-MT, WR+8*(m-MT))
        if m==MT+NT0: lds_inc(a,vSy,1,L_C13-L_SY)
        if m==N-AH: lds_inc(a,vSy,1,L_CNT-L_SY)
        emit(a,fill.get(m,[]),"hst")
    stamp(a,6); stamp(a,7,4)
    if not O.tm: emit(a,ffn_epi(5),"hst")
    else:
        emit(a,[f"v_mov_b32 v{T}, v{vC}", f"v_mov_b32 v{T+1}, v{vC}", f"v_mov_b32 v{T+2}, s{sA}", f"v_mov_b32 v{T+3}, s{sA}"])
        us=list(range(O.nfull,6))
        for i,u in enumerate(us):
            if u==5: emit(a,epi_a_pk(5))
            if u==5 and i: emit(a,epi_b2(us[i-1]),"hst")
            emit(a,epi_b1(u))
            if i and u!=5: emit(a,epi_b2(us[i-1]),"hst")
        emit(a,epi_b2(5),"hst")
    stamp(a,7); stamp(a,8,4)
    glist=list(range(13,19))+[p for p in A2LIST[O.nA2:]]
    glist.sort(key=lambda p: (p>=13,p))
    if O.npr<NT0:
        assert O.nA2<=6
        lds_poll(a,vSy,t1,4,L_OF-L_SY)
        for p in range(O.npr,NT0): rd3(p,WR+8*p)
    lds_poll(a,vSy,t1,4,L_CNT-L_SY)
    for p in glist[:O.early]: w3_dma(a,p,vD,("w",p))
    signal(a,1,t0,"hst")
    if O.prio2==1: a("s_setprio 0")
    stamp(a,8)
    def preread():
        a(f"s_lshl_b32 s{sT}, s{sI}, 2"); a(f"v_add_u32 v{t0}, s{sT}, v{vSy}")
        lds_poll(a,t0,t1,1,L_AF-L_SY)
        a.wait(vm=[("w",p) for p in range(NT0,NREG)])
        for p in range(NT0,NREG): rd3(p, WR+8*p)
        a("s_waitcnt lgkmcnt(0)")
    rest=glist[O.early:]+list(range(26,30)); npre=len(rest)-4
    hp=max(len(rest)-O.hpos,npre)
    for i,p in enumerate(rest):
        if i==npre: preread()
        if i==hp: a(f"buffer_load_dword v{vP}, v{vF}, {sr(sWS,4)}, s{sG_} offen sc1", "hf")
        w3_dma(a,p,vD,("w",p))
        if O.thr3: a(f"s_waitcnt vmcnt({O.thr3})")
    stamp(a,9)
    poll(a,vP,vF,sWS,f"s{sG_}",first_tag="hf" if hp<len(rest) else None)
    stamp(a,10)
    def aload_ops(n):
        af=AF+8*(n%NR); ops=[(o,None) for o in rot_off(n)]
        ops.append((f"s_lshr_b32 s{sT2}, s{sT2}, 4",None))
        if n>=22: ops.append((f"s_add_u32 s{sT2}, s{sT2}, {86*1024}",None))
        for tb in range(2):
            ops.append((f"buffer_load_dwordx4 {vr(af+4*tb,4)}, v{vA+tb}, {sr(sWS,4)}, s{sT2} offen sc1", ("a",n)))
        return ops
    def aload(n):
        for o,t in aload_ops(n): a(o,t)
    def chk_ops(n):
        af=AF+8*(n%NR)
        return [f"v_max3_u32 v{t0}, v{af}, v{af+1}, v{af+2}", f"v_max3_u32 v{t1}, v{af+3}, v{af+4}, v{af+5}",
                f"v_max3_u32 v{t0}, v{t0}, v{af+6}, v{af+7}", f"v_max_u32 v{t0}, v{t0}, v{t1}", f"v_cmp_eq_u32 vcc, -1, v{t0}"]
    def check(n, skip=0):
        emit(a,chk_ops(n)[skip:]); a(f"s_cbranch_vccnz G_RT{n}"); a.label(f"G_OK{n}")
        def retry():
            a.label(f"G_RT{n}"); a.vm=[]; a.lg=[]
            a(f"s_mov_b32 s{sE}, {SPIN_MAX}")
            a.label(f"G_RL{n}")
            a(f"s_sleep {O.rsl}")
            aload(n); a("s_waitcnt vmcnt(0)")
            emit(a,chk_ops(n)); a(f"s_cbranch_vccz G_OK{n}")
            a(f"s_sub_u32 s{sE}, s{sE}, 1"); a(f"s_cmp_lg_u32 s{sE}, 0"); a(f"s_cbranch_scc1 G_RL{n}")
            a(f"s_branch G_OK{n}")
        ool.append(retry)
    def step3(n):
        af=AF+8*(n%NR); wb=WR+8*POS[n] if POS[n]<NREG else WB3+8*(n&1)
        if n%2==0 and n<28: stamp(a,1+n//2,2)
        nxt = n+1<NS3 and POS[n+1]>=NREG
        a.wait(vm=[("a",n)]+([("w",POS[n+1])] if nxt else []), lg=[("r3",POS[n])])
        al = aload_ops(n+NA) if n+NA<NS3 else []
        def mf(i):
            tb,cb=i>>1,i&1; A=ACC3+16*i
            p_,q_=(vr(af+4*tb,4),vr(wb+4*cb,4)) if O.fr else (vr(wb+4*cb,4),vr(af+4*tb,4))
            a(f"{MF} {vr(A,16)}, {p_}, {q_}, {'0' if n==0 else vr(A,16)}")
            if O.fr and n==NS3-1 and i==0: a(f"s_mov_b32 m0, s{s1K}")
        if n==21:
            if nxt: rd3(POS[n+1], WB3+8*((n+1)&1))
            for o,t in al: a(o,t)
            a(f"s_cmp_ge_u32 s{sI}, 2"); a(f"s_cbranch_scc1 G_SK21")
            for i in range(4): mf(i)
            a.label(f"G_SK21")
        else:
            mf(0)
            if nxt: rd3(POS[n+1], WB3+8*((n+1)&1))
            mf(1)
            for o,t in al[:-1]: a(o,t)
            mf(2)
            for o,t in al[-1:]: a(o,t)
            if O.ck and 22<=n+1<NS3:
                a.wait(vm=[("a",n+1)]); emit(a,chk_ops(n+1)[:3]); mf(3); check(n+1,3)
                return
            mf(3)
        if 22<=n+1<NS3:
            a.wait(vm=[("a",n+1)]); check(n+1)
    for n in range(NA): aload(n)
    if O.prio2==2: a("s_setprio 0")
    for n in range(NS3):
        if n==21: stamp(a,11)
        step3(n)
    stamp(a,12)
    for p in range(4):
        for q in range(4):
            if not O.fr: a(f"ds_write_b128 v{vW+q}, {vr(ACC3+16*p+4*q,4)} offset:{p*16384}", "red")
            else:
                for r in range(4): a(f"ds_write_addtid_b32 v{ACC3+16*p+4*q+r} offset:{(4*p+q)*4096+r*256}", "red")
    a("s_branch FINAL")
    for f in ool: f()

def a_wave(a, pre):
    vSt,vL,vVo,vT0,vT1,vM,vM2,vBig,vGt = 0,1,2,3,4,5,6,7,8
    vP=10
    MK=12; Q=20; KF=28; VF=68; SM=148; S0=164; S1=180; CM=196; O_=212; P=228; P2=236
    vX0,vX1,vWq,vWg,vWu,vWg2,vWu2,vD,vBig2,vSy,vOne = 228,229,230,231,232,233,234,244,246,247,248
    PK=SM
    sXo,sQo,sFo,sLx,sLq,sK,sIt,sSl = sA,sB,sC,sD,sE,sF,64,65
    def a_setup():
        pre()
        a(f"v_and_b32 v{vL}, 63, v0")
        a(f"v_lshrrev_b32 v{vT0}, 3, v{vL}"); a(f"v_lshrrev_b32 v{vT1}, 4, v{vL}")
        a(f"v_and_b32 v{vX0}, 7, v{vL}"); a(f"v_xor_b32 v{vX0}, v{vX0}, v{vT1}"); a(f"v_lshlrev_b32 v{vX0}, 4, v{vX0}")
        a(f"v_lshl_add_u32 v{vX0}, v{vT0}, 10, v{vX0}")
        a(f"v_xor_b32 v{vX1}, 64, v{vX0}"); a(f"v_add_u32 v{vX1}, {8192-1024}, v{vX1}")
        a(f"v_lshrrev_b32 v{vT0}, 2, v{vL}"); a(f"v_and_b32 v{vT1}, 3, v{vL}")
        a(f"v_mul_u32_u24 v{vWq}, 3072, v{vT0}"); a(f"v_lshl_add_u32 v{vWq}, v{vT1}, 4, v{vWq}")
        a(f"s_lshl_b32 s{sXo}, s{sRB}, 2"); a(f"s_add_u32 s{sXo}, s{sXo}, s{sI}"); a(f"s_lshl_b32 s{sXo}, s{sXo}, 15")
        a(f"s_lshl_b32 s{sT}, s{sI}, 8"); a(f"s_add_u32 s{sT}, s{sT}, s{sCG}"); a(f"s_mul_i32 s{sQo}, s{sT}, 192")
        a(f"s_lshl_b32 s{sLx}, s{sI}, 12"); a(f"s_mul_i32 s{sLq}, s{sI}, 3072")
        a(f"s_mov_b32 s{sIt}, 0")
        a(f"v_lshlrev_b32 v{vSt}, 4, v{vL}")
        a(f"s_mov_b32 m0, {L_GW}")
        if O.tlb:
            a(f"s_lshr_b32 s70, s2, 1"); a(f"s_and_b32 s70, s70, 12"); a(f"s_add_u32 s70, s70, s{sI}")
            a(f"s_lshl_b32 s71, s70, 2"); a(f"s_lshr_b32 s71, 0x98982654, s71"); a("s_and_b32 s71, s71, 15")
            a(f"s_cmp_ge_u32 s70, 8"); a("s_cselect_b32 s71, 10, s71"); a("s_cselect_b32 s70, s70, 8")
            a("s_lshl_b32 s71, s71, 3"); a("s_load_dwordx2 s[74:75], s[0:1], s71")
            a("s_sub_u32 s70, s70, 8"); a("s_lshl_b32 s70, s70, 21"); a("s_bitset1_b32 s70, 7")
        if O.ek: kargs(a); late_srds(a)
        qs(a)
        a("s_waitcnt lgkmcnt(0)")
        qs(a)
        stamp0(a)
        if O.adly: a(f"s_sleep {O.adly}")
        a(f"buffer_load_dwordx4 v{vSt}, {sr(sGW,4)}, 0 offen lds")
        if O.tlb: a("s_load_dword s76, s[74:75], s70")
    def issue1():
        a(f"s_add_u32 s{sK}, s{sPH}, s{sIt}"); a(f"s_and_b32 s{sK}, s{sK}, 7")
        a(f"s_and_b32 s{sSl}, s{sIt}, 3"); a(f"s_mul_i32 s{sSl}, s{sSl}, {SLOT}")
        def wp(t):
            if t==0: a(f"s_add_u32 s{sT3}, s{sSl}, s{sLq}"); a(f"s_mul_i32 s{sT2}, s{sK}, {64*3072}")
            a(f"s_add_u32 m0, s{sT3}, {16384+t*1024-t*64}")
            if t==0: a(f"s_add_u32 s{sT2}, s{sT2}, s{sQo}")
            a(f"buffer_load_dwordx4 v{vWq}, {sr(sWQ,4)}, s{sT2} offen offset:{t*64} lds")
        for t in range(O.wf): wp(t)
        a(f"s_add_u32 m0, s{sLx}, s{sSl}")
        a(f"s_lshl_b32 s{sT}, s{sK}, 7"); a(f"s_add_u32 s{sT}, s{sT}, s{sXo}")
        a(f"buffer_load_dwordx4 v{vX0}, {sr(sX,4)}, s{sT} offen lds")
        qs(a)
        a(f"buffer_load_dwordx4 v{vX1}, {sr(sX,4)}, s{sT} offen offset:1024 lds")
        a(f"s_add_u32 s{sT}, s{sT}, {16384-2048}")
        a(f"buffer_load_dwordx4 v{vX0}, {sr(sX,4)}, s{sT} offen offset:2048 lds")
        a(f"buffer_load_dwordx4 v{vX1}, {sr(sX,4)}, s{sT} offen offset:3072 lds")
        qs(a)
        for t in range(O.wf,3): wp(t)
        qs(a)
    lgE=list(a.lg)
    if O.lay: a("s_branch A_SETUP"); a.lg=[]
    else: a_setup()
    a.label("A_L1")
    issue1()
    a(f"s_add_u32 s{sIt}, s{sIt}, 1"); a(f"s_cmp_eq_u32 s{sIt}, 1")
    if O.probe==5:
        a("s_cbranch_scc0 A_Q"); qflush(a); a("s_branch A_L1"); a.label("A_Q"); a("s_waitcnt lgkmcnt(0)")
    else: a("s_cbranch_scc1 A_L1")
    a("s_waitcnt vmcnt(7)"); a("s_barrier")
    a(f"s_cmp_lt_u32 s{sIt}, 8"); a("s_cbranch_scc1 A_L1")
    a("s_branch A_P2")
    if O.lay:
        a.label("A_SETUP"); a.lg=lgE; a.vm=[]
        a_setup(); a("s_branch A_L1")
    yield
    a.label("A_P2")
    a.lg=[]; a.vm=[(("d",7),set())]*7
    if not O.ek: kargs(a); late_srds(a)
    late_scalars(a)
    a(f"v_mul_u32_u24 v{vWg}, 2752, v{vT0}"); a(f"v_xor_b32 v{vWu}, 2, v{vT1}")
    a(f"v_lshl_add_u32 v{vWu}, v{vWu}, 4, v{vWg}"); a(f"v_lshl_add_u32 v{vWg}, v{vT1}, 4, v{vWg}")
    a(f"v_add_u32 v{vWg2}, s{sLT}, v{vWg}"); a(f"v_add_u32 v{vWu2}, s{sLT}, v{vWu}")
    a(f"s_mul_i32 s{sFo}, s{sI}, {16*2752}"); a(f"s_lshl_b32 s{sT}, s{sSB}, 6"); a(f"s_add_u32 s{sFo}, s{sFo}, s{sT}")
    a("s_waitcnt lgkmcnt(0)")
    a(f"s_lshl_b32 s{sLq}, s{sLq}, 1")
    def dmas(st):
        q=st&3; tg=("d",st)
        a(f"s_add_u32 s{sK}, s{sPH}, {st&7}"); a(f"s_and_b32 s{sK}, s{sK}, 7")
        a(f"s_mul_i32 s{sT2}, s{sK}, {64*2752}"); a(f"s_add_u32 s{sT2}, s{sT2}, s{sFo}")
        for m in range(2):
            for t in range(3):
                v=(vWu2 if m else vWg2) if t==2 else (vWu if m else vWg)
                a(f"s_add_u32 m0, s{sLq}, {q*SLOT+(m*3+t)*1024-t*64}")
                a(f"buffer_load_dwordx4 v{v}, {sr(sWU if m else sWG,4)}, s{sT2} offen offset:{t*64} lds", tg)
    sQB,sKo,sVo,sN = sG_,sA,sB,sD
    korder=[8,0,7,6,5,4,3,2,1,9]
    def setup_attn(part):
        if part==0:
            emit(a,w3_lane_ops(vD,vL,vM,vM2))
            a(f"s_and_b32 s{sT}, s{sI}, 1"); a(f"s_lshl_b32 s{sHead}, s{sCG}, 1"); a(f"s_add_u32 s{sHead}, s{sHead}, s{sT}")
            a(f"s_and_b32 s{sT2}, s{sI}, 2"); a(f"s_lshl_b32 s{sQB}, s{sRB}, 2"); a(f"s_add_u32 s{sQB}, s{sQB}, s{sT2}")
            a(f"v_mov_b32 v{vSy}, {L_SY}"); a(f"v_mov_b32 v{vOne}, 1")
        if part==1:
            a(f"v_mov_b32 v{vGt}, 0x3f803f80"); a(f"v_mov_b32 v{vGt+1}, 0x3f803f80")
            for r in range(0,80,2):
                if r&4: a(f"v_mov_b64 {vr(VF+r,2)}, {vr(vGt,2)}")
        if part==2:
            a(f"v_and_b32 v{vT0}, 31, v{vL}")
            a(f"v_lshrrev_b32 v{vT1}, 5, v{vL}"); a(f"v_lshlrev_b32 v{vT1}, 2, v{vT1}"); a(f"v_sub_u32 v{vT0}, v{vT0}, v{vT1}")
            for r in range(16): a(f"v_cmp_le_i32 {sr(sM+2*r,2)}, {(r&3)+8*(r>>2)}, v{vT0}")
            a(f"v_mov_b32 v{vBig}, 0xffff"); a(f"v_mov_b32 v{vM}, 0xffff0000")
            for i in range(8):
                a(f"v_cndmask_b32 v{MK+i}, 0, v{vBig}, {sr(sM+4*i,2)}")
                a(f"v_cndmask_b32 v{vT1}, 0, v{vM}, {sr(sM+4*i+2,2)}")
                a(f"v_or_b32 v{MK+i}, v{MK+i}, v{vT1}")
            a(f"v_mov_b32 v{vBig}, {f2u(-1e30):#x}"); a(f"v_mov_b32 v{vBig2}, {f2u(2.0**60):#x}")
            a(f"v_and_b32 v{vVo}, 47, v{vL}"); a(f"v_lshlrev_b32 v{vVo}, 4, v{vVo}")
            a(f"v_and_b32 v{vT1}, 16, v{vL}"); a(f"v_lshl_add_u32 v{vVo}, v{vT1}, 6, v{vVo}")
        if part==3:
            a(f"v_and_b32 v{vT0}, 15, v{vL}"); a(f"v_min_u32 v{vT0}, 9, v{vT0}")
            a(f"v_and_b32 v{vT1}, 1, v{vL}"); a(f"v_or_b32 v{vT1}, 8, v{vT1}")
            a(f"v_cmp_le_u32 vcc, 32, v{vL}"); a(f"v_cndmask_b32 v{vT0}, v{vT0}, v{vT1}, vcc")
            a(f"s_sub_u32 s{sT}, s{sQB}, 8"); a(f"v_add_u32 v{vT0}, s{sT}, v{vT0}"); a(f"v_max_i32 v{vT0}, 0, v{vT0}")
            a(f"v_add_u32 v{vT1}, 16, v{vL}"); a(f"v_and_b32 v{vT1}, 48, v{vT1}"); a(f"v_cndmask_b32 v{vT1}, v{vT1}, 0, vcc")
            a(f"v_add_u32 v{vT1}, s{sCG}, v{vT1}"); a(f"v_mul_u32_u24 v{vT1}, 43, v{vT1}"); a(f"v_lshrrev_b32 v{vT1}, 7, v{vT1}")
            a(f"v_lshrrev_b32 v{vM}, 2, v{vT0}"); a(f"v_lshl_add_u32 v{vT1}, v{vM}, 4, v{vT1}"); a(f"v_lshlrev_b32 v{vT1}, 7, v{vT1}")
            a(f"v_and_b32 v{vT0}, 3, v{vT0}"); a(f"v_lshl_add_u32 v{vM2}, v{vT0}, 2, v{vT1}")
            a(f"s_lshl_b32 s{sKo}, s{sHead}, 16")
            a(f"s_and_b32 s{sT}, s{sI}, 1"); a(f"s_lshl_b32 s{sT}, s{sT}, 8")
            a(f"s_lshl_b32 s{sVo}, s{sCG}, 17"); a(f"s_add_u32 s{sVo}, s{sVo}, s{sT}"); a(f"s_add_u32 s{sVo}, s{sVo}, {WS_V}")
            a(f"s_mov_b32 s{sN}, {WS_F}")
        if part==4:
            a(f"v_and_b32 v{vT1}, 31, v{vL}"); a(f"s_and_b32 s{sT}, s{sI}, 2"); a(f"s_lshl_b32 s{sT}, s{sT}, 7"); a(f"s_add_u32 s{sT}, s{sT}, {L_G}")
            a(f"v_lshl_add_u32 v{vT1}, v{vT1}, 2, s{sT}")
            for u in range(2): a(f"ds_read_b32 v{vGt+u}, v{vT1} offset:{u*128}")
            a("s_waitcnt lgkmcnt(0)")
    def unpark():
        a(f"s_add_u32 s{sT}, s{s1K}, {PARK}"); a(f"v_add_u32 v{vT0}, s{sT}, v{vSt}")
        for i in range(6): a(f"ds_read_b128 {vr(PK+4*i,4)}, v{vT0} offset:{i*4096}")
    def qstore(i):
        emit(a,qaddr_ops(i))
        a(f"buffer_store_dwordx4 {vr(PK+4*i,4)}, v{vSt}, {sr(sWS,4)}, s{sT} offen sc1", "qst")
    def vswap(ns):
        for n in ns:
            a.wait(vm=[("v",n)])
            for r in range(4): a(f"v_permlane16_swap_b32 v{VF+8*n+r}, v{VF+8*n+4+r}")
    def a2flag():
        a(f"s_lshl_b32 s{sT3}, s{sI}, 2"); a(f"v_add_u32 v{vT0}, s{sT3}, v{vSy}")
        a("s_waitcnt vmcnt(0)"); a(f"ds_write_b32 v{vT0}, v{vOne} offset:{L_AF-L_SY}")
    def attn_slow():
        for u in range(2):
            Qr=vr(Q+4*u,4); nd=8+u; no=u
            K_=lambda n: vr(KF+4*n,4)
            a(f"s_add_u32 s{sN}, s{sQB}, {u}")
            if u==0: stamp(a,7)
            a(f"{MF} {vr(S0,16)}, {K_(nd)}, {Qr}, 0")
            a(f"{MF} {vr(S1,16)}, {K_(no)}, {Qr}, 0")
            bufs=[CM,O_,S0,S1]
            def smf(d, c="0", buf=None): a(f"{MF} {vr(buf,16)}, {K_(nd-d)}, {Qr}, {c}")
            smf(1,buf=bufs[0]); smf(2,buf=bufs[1])
            a(f"s_cmp_ge_u32 s{sN}, 8"); a(f"s_cbranch_scc1 AT_OLD{u}")
            for r in range(16): a(f"v_mov_b32 v{S1+r}, v{vBig}")
            a.label(f"AT_OLD{u}")
            for r in range(16): a(f"v_cndmask_b32 v{SM+r}, v{S1+r}, v{S0+r}, {sr(sM+2*r,2)}")
            a(f"v_max3_f32 v{vM}, v{SM}, v{SM+1}, v{SM+2}")
            a(f"v_max3_f32 v{vM2}, v{SM+3}, v{SM+4}, v{SM+5}")
            for r in range(6,16,4):
                a(f"v_max3_f32 v{vM}, v{vM}, v{SM+r}, v{SM+r+1}")
                if r+2<16: a(f"v_max3_f32 v{vM2}, v{vM2}, v{SM+r+2}, v{SM+r+3}")
            for d in range(1,8):
                a(f"s_cmp_lt_u32 s{sN}, {d}"); a(f"s_cbranch_scc1 AT_MX{u}")
                if d+2<8: smf(d+2,buf=bufs[(d+1)%4])
                b=bufs[(d-1)%4]
                for r in range(0,16,4):
                    a(f"v_max3_f32 v{vM}, v{vM}, v{b+r}, v{b+r+1}")
                    a(f"v_max3_f32 v{vM2}, v{vM2}, v{b+r+2}, v{b+r+3}")
            a.label(f"AT_MX{u}")
            a(f"v_max_f32 v{vM}, v{vM}, v{vM2}")
            a(f"v_mov_b32 v{vM2}, v{vM}")
            if u==0: a2flag()
            a(f"v_permlane32_swap_b32 v{vM}, v{vM2}")
            a(f"v_max_f32 v{vM}, v{vM}, v{vM2}")
            a(f"v_sub_f32 v{CM}, 0, v{vM}")
            a(f"v_mov_b32 v{CM+1}, v{CM}")
            for r in range(2,16,2): a(f"v_mov_b64 {vr(CM+r,2)}, {vr(CM,2)}")
            sb=[S0,S1]
            a(f"v_sub_f32 v{SM}, v{SM}, v{vM}"); a(f"v_sub_f32 v{SM+1}, v{SM+1}, v{vM}")
            smf(1,vr(CM,16),sb[1])
            for r in range(2,16): a(f"v_sub_f32 v{SM+r}, v{SM+r}, v{vM}")
            for r in range(16): a(f"v_exp_f32 v{SM+r}, v{SM+r}")
            for r in range(8): a(f"v_cvt_pk_bf16_f32 v{P2+r}, v{SM+2*r}, v{SM+2*r+1}")
            for r in range(8): a(f"v_and_b32 v{P+r}, v{P2+r}, v{MK+r}")
            a(f"{MF} {vr(O_,16)}, {vr(VF+8*nd,4)}, {vr(P,4)}, 0")
            for r in range(4): a(f"v_xor_b32 v{P2+r}, v{P2+r}, v{P+r}")
            a(f"{MF} {vr(O_,16)}, {vr(VF+8*nd+4,4)}, {vr(P+4,4)}, {vr(O_,16)}")
            for r in range(4,8): a(f"v_xor_b32 v{P2+r}, v{P2+r}, v{P+r}")
            a(f"{MF} {vr(O_,16)}, {vr(VF+8*no,4)}, {vr(P2,4)}, {vr(O_,16)}"); a(f"{MF} {vr(O_,16)}, {vr(VF+8*no+4,4)}, {vr(P2+4,4)}, {vr(O_,16)}")
            for d in range(1,8):
                a(f"s_cmp_lt_u32 s{sN}, {d}"); a(f"s_cbranch_scc1 AT_FIN{u}")
                b=sb[d&1]; pb=P if d&1 else P2; n=nd-d
                for r in range(4): a(f"v_exp_f32 v{b+r}, v{b+r}")
                if d+1<8: smf(d+1,vr(CM,16),sb[(d+1)&1])
                for r in range(4,9): a(f"v_exp_f32 v{b+r}, v{b+r}")
                for r in range(4): a(f"v_cvt_pk_bf16_f32 v{pb+r}, v{b+2*r}, v{b+2*r+1}")
                for r in range(9,11): a(f"v_exp_f32 v{b+r}, v{b+r}")
                a(f"{MF} {vr(O_,16)}, {vr(VF+8*n,4)}, {vr(pb,4)}, {vr(O_,16)}")
                for r in range(11,16): a(f"v_exp_f32 v{b+r}, v{b+r}")
                for r in range(4,8): a(f"v_cvt_pk_bf16_f32 v{pb+r}, v{b+2*r}, v{b+2*r+1}")
                a(f"{MF} {vr(O_,16)}, {vr(VF+8*n+4,4)}, {vr(pb+4,4)}, {vr(O_,16)}")
            a.label(f"AT_FIN{u}")
            a(f"s_mul_i32 s{sT}, s{sN}, {A3_TB}"); a(f"s_lshl_b32 s{sT2}, s{sHead}, 10"); a(f"s_add_u32 s{sT}, s{sT}, s{sT2}")
            a(f"s_add_u32 s{sT}, s{sT}, {WS_A3+86*1024}")
            a(f"v_rcp_f32 v{vT0}, v{O_+8}")
            a(f"v_mul_f32 v{vT0}, v{vT0}, v{vGt+u}")
            for r in range(8): a(f"v_mul_f32 v{O_+r}, v{O_+r}, v{vT0}")
            for r in range(4): a(f"v_cvt_pk_bf16_f32 v{SM+r}, v{O_+2*r}, v{O_+2*r+1}")
            for r in range(4): a(f"v_min_u32 v{SM+r}, -2, v{SM+r}")
            a(f"buffer_store_dwordx4 {vr(SM,4)}, v{vSt}, {sr(sWS,4)}, s{sT} offen sc1", "ost")
            stamp(a,8+u)
    def attn_fast():
        K_=lambda n: vr(KF+4*n,4)
        sb=[S0,S1]; sOv=0
        def smf(u,d): a(f"{MF} {vr(sb[d&1],16)}, {K_(8+u-d)}, {vr(Q+4*u,4)}, {vr(CM,16)}")
        def head(u):
            for r in range(16): a(f"v_cndmask_b32 v{SM+r}, v{SM+r}, v{S0+r}, {sr(sM+2*r,2)}")
            a(f"v_max3_f32 v{vM}, v{SM}, v{SM+1}, v{SM+2}")
            a(f"v_max3_f32 v{vM2}, v{SM+3}, v{SM+4}, v{SM+5}")
            a(f"v_max3_f32 v{vM}, v{vM}, v{SM+6}, v{SM+7}"); a(f"v_max3_f32 v{vM2}, v{vM2}, v{SM+8}, v{SM+9}")
            a(f"v_max3_f32 v{vM}, v{vM}, v{SM+10}, v{SM+11}"); a(f"v_max3_f32 v{vM2}, v{vM2}, v{SM+12}, v{SM+13}")
            a(f"v_max3_f32 v{vM}, v{vM}, v{SM+14}, v{SM+15}")
            a(f"v_max_f32 v{vM}, v{vM}, v{vM2}")
            a(f"v_mov_b32 v{vM2}, v{vM}")
            a(f"s_mul_i32 s{sT}, s{sQB}, {A3_TB}"); a(f"s_lshl_b32 s{sT2}, s{sHead}, 10")
            a(f"v_permlane32_swap_b32 v{vM}, v{vM2}")
            a(f"v_max_f32 v{vM}, v{vM}, v{vM2}")
            a(f"v_sub_f32 v{CM}, 0, v{vM}")
            a(f"v_sub_f32 v{CM+1}, 0, v{vM}")
            for r in range(2,16,2): a(f"v_mov_b64 {vr(CM+r,2)}, {vr(CM,2)}")
            a(f"v_sub_f32 v{SM}, v{SM}, v{vM}"); a(f"v_sub_f32 v{SM+1}, v{SM+1}, v{vM}")
            smf(u,1)
        def fin(u):
            a(f"s_add_u32 s{sT}, s{sT}, s{sT2}"); a(f"s_add_u32 s{sT}, s{sT}, {WS_A3+86*1024+u*A3_TB}")
            a(f"v_rcp_f32 v{vT0}, v{O_+8}")
            a(f"v_cmp_ngt_f32 vcc, v{vBig2}, v{O_+8}")
            a(f"v_mul_f32 v{vT0}, v{vT0}, v{vGt+u}")
            a("s_branch AT_SLOW" if O.forceslow==u+1 else "s_cbranch_vccnz AT_SLOW")
            for r in range(8): a(f"v_mul_f32 v{O_+r}, v{O_+r}, v{vT0}")
            for r in range(4): a(f"v_cvt_pk_bf16_f32 v{P+r}, v{O_+2*r}, v{O_+2*r+1}")
            for r in range(4): a(f"v_min_u32 v{P+r}, -2, v{P+r}")
            a(f"buffer_store_dwordx4 {vr(P,4)}, v{vSt}, {sr(sWS,4)}, s{sT} offen sc1", "ost")
            stamp(a,8+u)
        def body(u):
            nd=8+u; no=u
            for r in range(2,16): a(f"v_sub_f32 v{SM+r}, v{SM+r}, v{vM}")
            for r in range(16): a(f"v_exp_f32 v{SM+r}, v{SM+r}")
            if u==0: a2flag()
            for r in range(8): a(f"v_cvt_pk_bf16_f32 v{P2+r}, v{SM+2*r}, v{SM+2*r+1}")
            for r in range(6): a(f"v_and_b32 v{P+r}, v{P2+r}, v{MK+r}")
            a(f"{MF} {vr(O_,16)}, {vr(VF+8*nd,4)}, {vr(P,4)}, 0")
            for r in range(6,8): a(f"v_and_b32 v{P+r}, v{P2+r}, v{MK+r}")
            for r in range(4): a(f"v_xor_b32 v{P2+r}, v{P2+r}, v{P+r}")
            a(f"{MF} {vr(O_,16)}, {vr(VF+8*nd+4,4)}, {vr(P+4,4)}, {vr(O_,16)}")
            for r in range(4,8): a(f"v_xor_b32 v{P2+r}, v{P2+r}, v{P+r}")
            pend=[f"{MF} {vr(O_,16)}, {vr(VF+8*no,4)}, {vr(P2,4)}, {vr(O_,16)}", f"{MF} {vr(O_,16)}, {vr(VF+8*no+4,4)}, {vr(P2+4,4)}, {vr(O_,16)}"]
            for d in range(1,8):
                b=sb[d&1]; pb=P if d&1 else P2; n=nd-d
                a(f"v_exp_f32 v{b}, v{b}")
                if len(pend)>1: a(pend.pop(0))
                for r in range(1,4): a(f"v_exp_f32 v{b+r}, v{b+r}")
                a(pend.pop(0))
                for r in range(4,8): a(f"v_exp_f32 v{b+r}, v{b+r}")
                if d<7: smf(u,d+1)
                elif u==0: a(f"{MF} {vr(S0,16)}, {K_(9)}, {vr(Q+4,4)}, 0")
                a(f"v_exp_f32 v{b+8}, v{b+8}")
                for r in range(4): a(f"v_cvt_pk_bf16_f32 v{pb+r}, v{b+2*r}, v{b+2*r+1}")
                for r in range(9,11): a(f"v_exp_f32 v{b+r}, v{b+r}")
                a(f"{MF} {vr(O_,16)}, {vr(VF+8*n,4)}, {vr(pb,4)}, {vr(O_,16)}")
                for r in range(11,14): a(f"v_exp_f32 v{b+r}, v{b+r}")
                if d==7 and u==0: a(f"{MF} {vr(SM,16)}, {K_(1)}, {vr(Q+4,4)}, 0")
                for r in range(14,16): a(f"v_exp_f32 v{b+r}, v{b+r}")
                for r in range(4,8): a(f"v_cvt_pk_bf16_f32 v{pb+r}, v{b+2*r}, v{b+2*r+1}")
                pend=[f"{MF} {vr(O_,16)}, {vr(VF+8*n+4,4)}, {vr(pb+4,4)}, {vr(O_,16)}"]
            a(pend.pop(0))
        stamp(a,7)
        a(f"{MF} {vr(S0,16)}, {K_(8)}, {vr(Q,4)}, 0")
        a(f"{MF} {vr(SM,16)}, {K_(0)}, {vr(Q,4)}, 0")
        head(0); body(0); head(1); fin(0)
        a(f"s_mul_i32 s{sT}, s{sQB}, {A3_TB}")
        body(1); fin(1)
    def apoison():
        a(f"v_mov_b64 {vr(S1,2)}, -1"); a(f"v_mov_b64 {vr(S1+2,2)}, -1")
        a(f"s_mul_i32 s{sT}, s{sQB}, {A3_TB}"); a(f"s_lshl_b32 s{sT2}, s{sHead}, 10"); a(f"s_add_u32 s{sT}, s{sT}, s{sT2}"); a(f"s_add_u32 s{sT}, s{sT}, {WS_A3+86*1024}")
        a(f"buffer_store_dwordx4 {vr(S1,4)}, v{vSt}, {sr(sWS,4)}, s{sT} offen sc1"); a(f"s_add_u32 s{sT}, s{sT}, {A3_TB}")
        a(f"buffer_store_dwordx4 {vr(S1,4)}, v{vSt}, {sr(sWS,4)}, s{sT} offen sc1")
    stages={k:([k+2] if k<O.dbl else [k+2,k+3] if k==O.dbl else [k+3]) for k in range(6,13)}
    t0sched=[{7:[0],10:[1],11:[2,3],12:[4,5,6]},{7:[0],8:[1],10:[2],11:[3,4],12:[5,6]},{10:[0,1],11:[2,3],12:[4,5,6]},{11:[0,1,2],12:[3,4,5,6]},{12:[0,1,2,3,4,5,6]},{7:[0],8:[1],10:[2,3],12:[4,5,6]},{7:[0],8:[1],10:[2,3]},{7:[0],10:[1],12:[2]},{10:[0],12:[1]},{},{12:[0,1]},{7:[0],8:[1],10:[2],12:[3]},{6:[0],7:[1],8:[2],9:[3],10:[4],12:[5,6]},{7:[0,1],10:[2,3],12:[4,5,6]},{7:[0,1,2],10:[3,4],12:[5,6]},{7:[0],8:[1],9:[2],10:[3,4],12:[5,6]},{8:[0,1],10:[2,3],12:[4,5,6]},{7:[0,1],9:[2,3],12:[4,5,6]}][O.t0s]
    t0post=[p for p in range(NT0) if not any(p in v for v in t0sched.values())]
    a(f"v_and_b32 v{vBig}, 15, v{vL}"); a(f"v_lshlrev_b32 v{vBig}, 2, v{vBig}")
    for k in range(6,13):
        if k==6: a(f"buffer_load_dword v{vP}, v{vBig}, {sr(sDBG,4)}, 0 offen sc1", "init")
        if k==9 and O.park: unpark()
        if k==8 and O.s8: a(f"s_sleep {O.s8}")
        for st in stages[k]: dmas(st)
        if k==6: setup_attn(0)
        if k==9 and O.park:
            a("s_waitcnt lgkmcnt(0)")
        if O.park:
            for i in [{9:[0,1,2],10:[3,4,5]},{9:[0,1],10:[2,3],11:[4,5]},{9:[0,1,2,3,4,5]},{9:[0,1],10:[2,3,4,5]}][O.qsch].get(k,[]): qstore(i)
        if k==O.pa: apoison()
        for p in t0sched.get(k,[]): w3_dma(a,p,vD,("t0",p))
        if O.p0<=k<O.p0+4: stamp(a,3+3*(k-O.p0),1)
        if k in (8,9,10,11): setup_attn(k-7)
        if k==O.sigk and O.park: signal(a,0,vT0,"qst")
        a.wait(vm=[("d",k+1)])
        if k==7: poll(a,vP,vBig,sDBG,"0",first_tag="init")
        if O.p0<=k+1<O.p0+4: stamp(a,1+3*(k+1-O.p0),1)
        a("s_barrier")
        if O.p0<=k+1<O.p0+4: stamp(a,2+3*(k+1-O.p0),1)
        if k+1 in (8,13): stamp(a,{8:3,13:4}[k+1])
    assert all(p>=O.npr for p in t0post)
    a(f"buffer_load_dword v{vP}, v{vM2}, {sr(sWS,4)}, s{sN} offen sc1", "qf")
    late = bool(t0post) or O.pa==13
    if O.npr<NT0:
        a.wait(vm=[("d",15)]+[("t0",p) for p in range(O.npr)]); lds_inc(a,vSy,vOne,L_C14-L_SY)
        if not late: a("s_waitcnt vmcnt(1)"); lds_inc(a,vSy,vOne,L_OF-L_SY)
    else:
        a("s_waitcnt vmcnt(1)"); lds_inc(a,vSy,vOne,L_C14-L_SY)
    def latework(thr):
        if O.pa==13: apoison()
        for p in t0post:
            if thr: a(f"s_waitcnt vmcnt({thr})")
            w3_dma(a,p,vD,("t0",p))
    if late and O.tp==0: latework(0)
    poll(a,vP,vM2,sWS,f"s{sN}",first_tag="qf")
    stamp(a,5)
    a(f"s_lshl_b32 s{sT}, s{sQB}, 10"); a(f"s_add_u32 s{sT}, s{sT}, s{sKo}")
    for u in range(2): a(f"buffer_load_dwordx4 {vr(Q+4*u,4)}, v{vSt}, {sr(sWS,4)}, s{sT} offen offset:{u*1024} sc1", ("q",u))
    a(f"s_add_u32 s{sKo}, s{sKo}, {WS_K}")
    for n in korder:
        a(f"s_add_i32 s{sT}, s{sQB}, {n-8}"); a(f"s_max_i32 s{sT}, s{sT}, 0"); a(f"s_lshl_b32 s{sT}, s{sT}, 11"); a(f"s_add_u32 s{sT}, s{sT}, s{sVo}")
        a(f"buffer_load_dwordx4 {vr(VF+8*n,4)}, v{vVo}, {sr(sWS,4)}, s{sT} offen sc1", ("v",n))
        if O.thr: a(f"s_waitcnt vmcnt({O.thr})")
    for n in korder:
        a(f"s_add_i32 s{sT}, s{sQB}, {n-8}"); a(f"s_max_i32 s{sT}, s{sT}, 0"); a(f"s_lshl_b32 s{sT}, s{sT}, 10"); a(f"s_add_u32 s{sT}, s{sT}, s{sKo}")
        a(f"buffer_load_dwordx4 {vr(KF+4*n,4)}, v{vSt}, {sr(sWS,4)}, s{sT} offen sc1", ("k",n))
        if O.thr: a(f"s_waitcnt vmcnt({O.thr})")
    if late and O.tp==0:
        a.wait(vm=[("q",0)]); lds_inc(a,vSy,vOne,L_OF-L_SY)
    if late and O.tp==1:
        latework(O.thrA); a("s_waitcnt vmcnt(0)"); lds_inc(a,vSy,vOne,L_OF-L_SY)
    stamp(a,6)
    if O.nA2: lds_poll(a,vSy,vT1,4,L_C13-L_SY)
    if O.ap: a("s_setprio 3")
    prep=[]
    def qscale(h):
        a.wait(vm=[("q",1)])
        for r in range(4*h,4*h+4):
            a(f"v_lshlrev_b32 v{S0+2*r}, 16, v{Q+r}"); a(f"v_and_b32 v{S0+2*r+1}, 0xffff0000, v{Q+r}")
        for r in range(8*h,8*h+8): a(f"v_mul_f32 v{S0+r}, {f2u(0.25*LOG2E):#x}, v{S0+r}")
        for r in range(4*h,4*h+4): a(f"v_cvt_pk_bf16_f32 v{Q+r}, v{S0+2*r}, v{S0+2*r+1}")
    prep=[lambda:qscale(0),lambda:qscale(1)]+[(lambda i=i: vswap(korder[2*i:2*i+2])) for i in range(5)]
    for i,p in enumerate(A2LIST[:O.nA2]):
        if O.thrA: a(f"s_waitcnt vmcnt({O.thrA})")
        w3_dma(a,p,vD,("a2",p))
        if prep and not O.ap: prep.pop(0)()
    if O.afl: a2flag()
    if O.ap: a("s_setprio 0")
    stamp(a,10)
    for f in prep: f()
    a.wait(vm=[("k",n) for n in range(10)])
    if O.prio2: a("s_setprio 1")
    a(f"s_cmp_lt_u32 s{sQB}, 8"); a("s_cbranch_scc1 AT_SLOW")
    vm0=list(a.vm)
    attn_fast()
    a.label("AT_DONE")
    yield
    a.label("AT_SLOW"); a.vm=list(vm0); a.lg=[]
    attn_slow(); a("s_branch AT_DONE")
    yield

def ids(a):
    a(f"s_bfe_u32 s{sRB}, s2, 0x10002"); a(f"s_lshl_b32 s{sRB}, s{sRB}, 3")
    a(f"s_bfe_u32 s{sT}, s2, 0x30003"); a(f"s_add_u32 s{sRB}, s{sRB}, s{sT}")
    a(f"s_and_b32 s{sCG}, s2, 3"); a(f"s_lshl_b32 s{sCG}, s{sCG}, 2")
    a(f"s_lshr_b32 s{sT}, s2, 6"); a(f"s_add_u32 s{sCG}, s{sCG}, s{sT}")
    if O.rot==1:
        a(f"s_lshl_b32 s{sPH}, s{sT}, 1"); a(f"s_add_u32 s{sPH}, s{sPH}, s{sRB}"); a(f"s_and_b32 s{sT}, s2, 1"); a(f"s_add_u32 s{sPH}, s{sPH}, s{sT}")
    elif O.rot==2:
        a(f"s_add_u32 s{sPH}, s{sT}, s{sRB}"); a(f"s_lshl_b32 s{sPH}, s{sPH}, 2")
    elif O.rot==6:
        a(f"s_add_u32 s{sPH}, s{sT}, s{sRB}"); a(f"s_lshl_b32 s{sPH}, s{sPH}, 1"); a(f"s_and_b32 s{sT}, s2, 1"); a(f"s_add_u32 s{sPH}, s{sPH}, s{sT}")
    elif O.rot==7:
        a(f"s_add_u32 s{sPH}, s{sT}, s{sRB}"); a(f"s_lshl_b32 s{sPH}, s{sPH}, 2"); a(f"s_and_b32 s{sT}, s2, 3"); a(f"s_add_u32 s{sPH}, s{sPH}, s{sT}")
        a(f"s_bfe_u32 s{sT}, s2, 0x10002"); a(f"s_lshl_b32 s{sT}, s{sT}, 1"); a(f"s_add_u32 s{sPH}, s{sPH}, s{sT}")
    elif O.rot==4:
        a(f"s_and_b32 s{sPH}, s2, 7")
    elif O.rot==5:
        a(f"s_add_u32 s{sPH}, s{sT}, s{sRB}"); a(f"s_lshl_b32 s{sPH}, s{sPH}, 2"); a(f"s_and_b32 s{sT}, s2, 3"); a(f"s_add_u32 s{sPH}, s{sPH}, s{sT}")
    else: a(f"s_mov_b32 s{sPH}, 0")
    a(f"s_and_b32 s{sI}, s{sW}, 3")

def kernel():
    a=Asm()
    if O.stamp: a(f"{O.stamp} s[96:97]")
    a("s_getpc_b64 s[66:67]")
    a("v_lshrrev_b32 v1, 6, v0")
    a(f"s_load_dwordx2 {sr(sX,2)}, s[0:1], 0"); a(f"s_load_dwordx2 {sr(sWQ,2)}, s[0:1], 8"); a(f"s_load_dwordx2 {sr(sGW,2)}, s[0:1], 56")
    a(f"v_readfirstlane_b32 s{sW}, v1")
    a("s_lshr_b32 s3, s2, 8"); a("s_cbranch_scc1 END")
    if O.stamp:
        a(f"v_mov_b32 v{vSTAMP}, 0")
    a(f"s_cmp_{'ge' if O.swap else 'lt'}_u32 s{sW}, 4"); a("s_cbranch_scc1 G_STUB")
    lg=list(a.lg)
    def pre():
        a(f"s_mov_b32 s{sX+3}, 0x20000"); a(f"s_mov_b32 s{sWQ+3}, s{sX+3}"); a(f"s_mov_b32 s{sGW+3}, s{sX+3}")
        a(f"s_lshl_b32 s{sX+2}, s{sX+3}, 4"); a(f"s_mul_i32 s{sWQ+2}, s{sX+3}, 12"); a(f"s_movk_i32 s{sGW+2}, 1024")
        qs(a)
        ids(a)
    A=a_wave(a,pre)
    next(A)
    a.label("G_STUB"); a.vm=[]; a.lg=list(lg)
    if O.codepf:
        a(f"s_lshr_b32 s{sT}, s2, 3"); a(f"s_lshl_b32 s{sT}, s{sT}, 7"); a(f"s_and_b32 s{sT2}, s{sW}, 3"); a(f"s_lshl_b32 s{sT2}, s{sT2}, 14"); a(f"s_add_u32 s{sT}, s{sT}, s{sT2}")
        a(f"v_and_b32 v12, 3, v0"); a(f"v_lshl_add_u32 v12, v12, 12, s{sT}")
        a("s_mov_b64 exec, 15")
        a(f"global_load_dword v97, v12, s[66:67]", "cpf")
        a("s_mov_b64 exec, -1")
    a(f"s_and_b32 s{sCG}, s2, 3"); a(f"s_lshl_b32 s{sCG}, s{sCG}, 2")
    a(f"s_lshr_b32 s{sT}, s2, 6"); a(f"s_add_u32 s{sCG}, s{sCG}, s{sT}")
    a(f"s_cmp_eq_u32 s{sCG}, 10"); a("s_cbranch_scc1 G_V1")
    a(f"s_cmp_gt_u32 s{sCG}, 10"); a("s_cbranch_scc1 G_V2")
    a("s_branch G_V0")
    next(A)
    a.label("FINAL")
    final_reduce(a)
    a.label("END")
    a("s_endpgm")
    next(A)
    g_wave(a,lg)
    return a
def kargs(a):
    for d,off in ((sWS,80),(sDBG,72),(sWG,32),(sWU,40),(sWD,48),(sWO,16),(sOUT,64)):
        a(f"s_load_dwordx2 {sr(d,2)}, s[0:1], {off}")
_q=[0]
def qs(a):
    if O.probe==5 and _q[0]<12:
        a(f"{O.stamp} s[{68+2*_q[0]}:{69+2*_q[0]}]"); _q[0]+=1
def qflush(a):
    if O.probe==5:
        a("s_waitcnt lgkmcnt(0)")
        for i in range(_q[0]): a(f"v_writelane_b32 v{vSTAMP}, s{68+2*i}, {i+1}")
        _q[0]=99
def stamp0(a):
    if O.stamp: a(f"v_writelane_b32 v{vSTAMP}, s96, 0")

PROMO=("v_exp_f32","v_rcp_f32","v_mul_f32","v_add_f32","v_sub_f32","v_and_b32","v_xor_b32","v_or_b32","v_mov_b32","v_max_f32","v_lshlrev_b32","v_mov_b64","v_add_u32","v_lshrrev_b32","v_min_f32")
def align_pass(a):
    import subprocess, re, tempfile
    d=tempfile.mkdtemp()
    open(d+"/a.s","w").write('.amdgcn_target "amdgcn-amd-amdhsa--gfx950"\n.text\nK:\n'+a.text().replace(".p2align 12\n",""))
    subprocess.run(["clang","-x","assembler","-target","amdgcn-amd-amdhsa","-mcpu=gfx950","-c",d+"/a.s","-o",d+"/a.o"],check=True)
    dis=subprocess.run(["llvm-objdump","-d","--mcpu=gfx950",d+"/a.o"],capture_output=True,text=True).stdout
    sizes=[4*len(m.group(1).split()) for m in re.finditer(r"// [0-9A-F]{12}: ((?:[0-9A-F]{8} ?)+)",dis)]
    idx=[i for i,l in enumerate(a.out) if l.startswith("  ") and not l.startswith("  ;")]
    assert len(idx)==len(sizes),(len(idx),len(sizes))
    off=0; cand=None; n=0; bad=0
    for i,sz in zip(idx,sizes):
        mn=a.out[i].split()[0]
        if a.out[i-2].startswith(".p2align"): off=(off+7)//8*8; cand=None
        if sz>=8:
            if off%8==4:
                if cand is not None:
                    m2=a.out[cand].split()[0]; a.out[cand]=a.out[cand].replace(m2,m2+"_e64",1); off+=4; n+=1
                else: bad+=1
            cand=None
        elif mn in PROMO:
            if off%8==0 or cand is None: cand=i
        off+=sz
    print("align: promoted",n,"left misaligned",bad,"bytes",off,file=sys.stderr)

def build():
    a=kernel()
    if O.align: align_pass(a)
    print("instrs",len(a.seq),"nops",a.nops,file=sys.stderr)
    K=NAME+"_kernel"
    s=f"; @launch grid=(256,1,1) block=(512,1,1) lds={LDS_SIZE}\n"
    s+='.amdgcn_target "amdgcn-amd-amdhsa--gfx950"\n'
    s+=f".text\n.p2align 12\n.globl {K}\n.p2align 8\n.type {K},@function\n{K}:\n"
    s+=a.text()
    s+="  s_endpgm\n.fill 8192, 4, 0xBF800000\n"
    s+=f""".section .rodata,"a"
.p2align 6
.amdhsa_kernel {K}
  .amdhsa_next_free_vgpr 256
  .amdhsa_next_free_sgpr 102
  .amdhsa_accum_offset 256
  .amdhsa_group_segment_fixed_size 0
  .amdhsa_kernarg_size 88
  .amdhsa_user_sgpr_count 2
  .amdhsa_user_sgpr_kernarg_segment_ptr 1
  .amdhsa_system_sgpr_workgroup_id_x 1
.end_amdhsa_kernel
"""
    return s

if __name__=="__main__":
    args=sys.argv[1:]
    out=f"cdna_kernels/{NAME}.s"
    for x in args:
        if x=="--stamp": O.stamp="s_memrealtime"
        elif x=="--cyc": O.stamp="s_memtime"
        elif x.startswith("--"):
            k,v=x[2:].split("="); assert hasattr(O,k); setattr(O,k,int(v))
        else: out=x
    open(out,"w").write(build())
```
